```python
import torch

def _softmax(x, axis=-1):
    return torch.softmax(x, dim=axis)

def _gelu(x):
    return torch.nn.functional.gelu(x, approximate='tanh')

def _silu(x):
    return torch.nn.functional.silu(x)

def _sigmoid(x):
    return torch.sigmoid(x)

def _layernorm(x, axis=-1, eps=1e-05):
    m = x.mean(dim=axis, keepdim=True)
    v = x.var(dim=axis, keepdim=True, unbiased=False)
    return (x - m) / torch.sqrt(v + eps)

def _scatter_add(tgt, idx, src, axis=0):
    return tgt.clone().index_add_(axis, idx, src)

def _segment_sum(src, seg, n):
    out = torch.zeros((n,) + src.shape[1:], dtype=src.dtype)
    return out.index_add_(0, seg, src)

def _pad(x, pw):
    flat = tuple((v for pair in reversed(pw) for v in pair))
    return torch.nn.functional.pad(x, flat)
kernel_name = 'interleave_layers__memory_aug_recurrent_mem_tr__sliding_local_dilated__prompt'

def setup_inputs():

    _w = lambda a: (lambda t: t.to(torch.bfloat16) if t.is_floating_point() else t)(torch.as_tensor(a))

    def _A_setup():
        B, S, Dm = (1, 2048, 640)
        H, Dh = (32, 192)
        M, seg = (8, 32)
        seg = min(seg, S)
        S = S // seg * seg
        return {'x': _w((lambda *s: torch.randn(*s, dtype=torch.bfloat16) * 0.05)(B, S, Dm)), 'mem0': _w((lambda *s: torch.randn(*s, dtype=torch.bfloat16) * 0.8)(B, M, Dm)), 'Wq': _w((lambda *s: torch.randn(*s, dtype=torch.bfloat16) * 1.6)(Dm, H, Dh) * Dm ** (-0.5)), 'Wk': _w((lambda *s: torch.randn(*s, dtype=torch.bfloat16) * 1.6)(Dm, H, Dh) * Dm ** (-0.5)), 'Wv': _w((lambda *s: torch.randn(*s, dtype=torch.bfloat16) * 0.8)(Dm, H, Dh) * Dm ** (-0.5)), 'Wo': _w((lambda *s: torch.randn(*s, dtype=torch.bfloat16) * 0.8)(H, Dh, Dm) * (H * Dh) ** (-0.5)), 'seg_len': seg}
    _A_in = _A_setup()

    def _B_setup():
        B, S, D = (1, 2048, 640)
        return {'x': _w((lambda *s: torch.randn(*s, dtype=torch.bfloat16) * 0.05)(B, S, D)), 'wqkv': _w((lambda *s: torch.randn(*s, dtype=torch.bfloat16) * 0.05)(D, 3 * D)), 'wo': _w((lambda *s: torch.randn(*s, dtype=torch.bfloat16) * 0.05)(D, D))}
    _B_in = _B_setup()
    return {'A_x': _A_in['x'], 'A_mem0': _A_in['mem0'], 'A_Wq': _A_in['Wq'], 'A_Wk': _A_in['Wk'], 'A_Wv': _A_in['Wv'], 'A_Wo': _A_in['Wo'], 'A_seg_len': _A_in['seg_len'], 'B_x': _B_in['x'], 'B_wqkv': _B_in['wqkv'], 'B_wo': _B_in['wo']}

def reference(A_x, A_mem0, A_Wq, A_Wk, A_Wv, A_Wo, A_seg_len, B_x, B_wqkv, B_wo):

    def _A_ref(x, mem0, Wq, Wk, Wv, Wo, seg_len):
        B, S, Dm = x.shape
        H, Dh = (Wq.shape[1], Wq.shape[2])
        M = mem0.shape[1]
        scale = Dh ** (-0.5)
        n_seg = S // seg_len
        L = M + seg_len
        idx = torch.arange(L)
        mask = (idx[:, None] < M) | (idx[:, None] >= idx[None, :])
        mem = mem0
        outs = []
        for s in range(n_seg):
            xs = x[:, s * seg_len:(s + 1) * seg_len, :].clone()
            h = torch.concatenate([mem, xs], axis=1)
            q = torch.einsum('btd,dhe->bhte', h, Wq)
            k = torch.einsum('btd,dhe->bhte', h, Wk)
            v = torch.einsum('btd,dhe->bhte', h, Wv)
            scores = torch.einsum('bhqe,bhke->bhqk', q, k) * scale
            scores = torch.where(mask[None, None], scores, -1000000000.0)
            p = _softmax(scores, axis=-1)
            o = torch.einsum('bhqk,bhke->bhqe', p, v)
            o = torch.einsum('bhte,hed->btd', o, Wo)
            mem = o[:, :M, :].clone()
            outs.append(o[:, M:, :])
        return torch.concatenate(outs, axis=1)

    def _B_ref(x, wqkv, wo):
        B, S, D = x.shape
        H = 32
        Dh = D // H
        W, dil = (8, 2)
        qkv = (lambda x, *d: x.permute(*d))((x @ wqkv).reshape(B, S, 3, H, Dh), 2, 0, 3, 1, 4)
        q, k, v = (qkv[0], qkv[1], qkv[2])
        scale = Dh ** (-0.5)
        pos = torch.arange(S)
        off = torch.arange(W) * dil
        idx = pos[:, None] - off[None, :]
        mask = idx >= 0
        idx_c = torch.where(mask, idx, 0).reshape(-1)
        kg = k[:, :, idx_c, :].reshape(B, H, S, W, Dh)
        vg = v[:, :, idx_c, :].reshape(B, H, S, W, Dh)
        logits = torch.einsum('bhsd,bhswd->bhsw', q, kg) * scale
        logits = torch.where(mask[None, None, :, :], logits, -1000000000.0)
        attn = _softmax(logits, axis=-1)
        o = torch.einsum('bhsw,bhswd->bhsd', attn, vg)
        return (lambda x, *d: x.permute(*d))(o, 0, 2, 1, 3).reshape(B, S, D) @ wo
    x = A_x
    x = x + _A_ref(_layernorm(x, axis=-1), A_mem0, A_Wq, A_Wk, A_Wv, A_Wo, A_seg_len)
    x = x + _B_ref(_layernorm(x, axis=-1), B_wqkv, B_wo)
    x = x + _A_ref(_layernorm(x, axis=-1), A_mem0, A_Wq, A_Wk, A_Wv, A_Wo, A_seg_len)
    x = x + _B_ref(_layernorm(x, axis=-1), B_wqkv, B_wo)
    return x
```

```python
import re

def v(a, n=1): return "v%d" % a if n == 1 else "v[%d:%d]" % (a, a + n - 1)
def a_(a, n=1): return "a%d" % a if n == 1 else "a[%d:%d]" % (a, a + n - 1)
def s(a, n=1): return "s%d" % a if n == 1 else "s[%d:%d]" % (a, a + n - 1)
def R(u, n=1):
    if u < 256:
        assert u + n <= 256, (u, n)
        return v(u, n)
    return a_(u - 256, n)

_reg = re.compile(r'^(-|abs\(|\|)?([vas])(\d+|\[(\d+):(\d+)\])\)?\|?$')
def regs(tok):
    tok = tok.strip()
    if tok in ('vcc',): return {('s', 106), ('s', 107)}
    if tok == 'vcc_lo': return {('s', 106)}
    if tok == 'vcc_hi': return {('s', 107)}
    if tok == 'exec': return {('s', 126), ('s', 127)}
    if tok == 'm0': return {('s', 124)}
    m = _reg.match(tok)
    if not m: return set()
    f = m.group(2)
    if m.group(4) is not None: lo, hi = int(m.group(4)), int(m.group(5))
    else: lo = hi = int(m.group(3))
    if f == 'a': f, lo, hi = 'v', lo + 256, hi + 256
    return {(f, i) for i in range(lo, hi + 1)}

TRANS = ('v_exp_', 'v_log_', 'v_rcp_', 'v_rsq_', 'v_sqrt_', 'v_sin_', 'v_cos_')
class I:
    def __init__(self, text):
        self.text = text
        t = text.split(';')[0].strip()
        self.label = t.endswith(':')
        self.kind = 'none'; self.w = set(); self.r = set(); self.states = 0
        self.passes = 0; self.C = set(); self.AB = set(); self.dpp = False; self.perm = False
        self.rdlane = False; self.trans = False; self.wide_data = set(); self.ldsdma = False
        self.lanesel = set(); self.branch = False
        if not t or self.label or t.startswith('.'): return
        p = t.split(None, 1); mn = p[0]; self.mn = mn
        rest = p[1] if len(p) > 1 else ''
        rest = re.sub(r'(op_sel|op_sel_hi|neg_lo|neg_hi|quad_perm):\[[^\]]*\]', lambda m: m.group(0).replace(',', '/'), rest)
        ops = [o.strip() for o in rest.split(',')] if rest else []
        if ops:
            last = ops[-1].split()
            mods = last[1:]; ops[-1] = last[0] if last else ''
        else: mods = []
        self.states = 1
        rs = [regs(o) for o in ops]
        U = lambda L: set().union(*L) if L else set()
        if mn == 's_nop': self.kind = 'salu'; self.states = int(ops[0], 0) + 1; return
        if mn.startswith('v_mfma') or mn.startswith('v_smfmac'):
            self.kind = 'mfma'; self.passes = 8 if '32x32' in mn else 4
            self.w = rs[0]
            if mn.startswith('v_smfmac'): self.C = rs[0]; self.AB = rs[1] | rs[2] | rs[3]
            else: self.C = rs[3]; self.AB = rs[1] | rs[2]
            self.r = self.C | self.AB; return
        if mn.startswith('v_'):
            self.kind = 'valu'
            self.trans = mn.startswith(TRANS)
            self.dpp = ('_dpp' in mn) or any(m.startswith(('row_', 'quad_perm', 'wave_')) for m in mods)
            if mn.startswith('v_swap'):
                self.w = rs[0] | rs[1]; self.r = rs[0] | rs[1]; return
            if mn.startswith('v_permlane'):
                self.perm = True; self.w = rs[0] | rs[1]; self.r = rs[0] | rs[1]; return
            if mn.startswith(('v_readfirstlane', 'v_readlane')):
                self.rdlane = True; self.w = rs[0]; self.r = U(rs[1:])
                if len(rs) > 2: self.lanesel = rs[2]
                return
            if mn.startswith('v_writelane'):
                self.w = rs[0]; self.r = U(rs); self.lanesel = rs[2]; return
            if '_co_' in mn or mn.startswith(('v_div_scale', 'v_mad_u64')):
                self.w = rs[0] | rs[1]; self.r = U(rs[2:]); return
            self.w = rs[0]; self.r = U(rs[1:])
            if mn.startswith(('v_fmac', 'v_dot2c', 'v_pk_fmac')) or self.dpp: self.r |= rs[0]
            if mn.startswith('v_cmpx'): raise Exception('no cmpx please')
            return
        if mn.startswith('ds_'):
            self.kind = 'mem'
            if mn.startswith(('ds_read', 'ds_bpermute', 'ds_permute', 'ds_swizzle')) or '_rtn' in mn:
                self.w = rs[0]; self.r = U(rs[1:])
            else: self.r = U(rs)
            return
        if mn.startswith(('buffer_', 'global_')):
            self.kind = 'vmem'
            lds = 'lds' in mods or '_lds_' in mn
            self.ldsdma = lds
            if mn.startswith(('buffer_wbl2', 'buffer_inv')): return
            if 'load' in mn and not lds: self.w = rs[0]; self.r = U(rs[1:])
            elif 'atomic' in mn and 'sc0' in mods:
                self.w = rs[0]; self.r = U(rs)
            else:
                self.r = U(rs)
                if 'x4' in mn or 'x3' in mn:
                    if 'store' in mn: self.wide_data = rs[0] if mn.startswith('buffer') else rs[1]
            return
        if mn.startswith('s_'):
            self.kind = 'salu'
            if mn.startswith(('s_cbranch', 's_branch', 's_setpc', 's_swappc', 's_endpgm')): self.branch = True; return
            if mn.startswith(('s_cmp', 's_waitcnt', 's_barrier', 's_sleep', 's_setprio', 's_bitcmp')):
                self.r = U(rs); return
            self.w = rs[0] if rs else set(); self.r = U(rs[1:])
            if 'saveexec' in mn: self.w = self.w | regs('exec')
            return
        raise Exception('unknown instr ' + text)

def need(p, c):
    n = 0
    pv = {x for x in p.w if x[0] == 'v'}; ps = {x for x in p.w if x[0] == 's'}
    if p.kind == 'valu':
        if c.kind == 'mfma' and pv & c.r: n = max(n, 2)
        if c.kind == 'valu':
            if (c.dpp or c.perm) and pv & c.r: n = max(n, 2)
            if c.rdlane and pv & c.r: n = max(n, 1)
            if p.trans and not c.trans and pv & c.r: n = max(n, 1)
            if ps & c.r: n = max(n, 2)
            if ps & c.lanesel: n = max(n, 4)
        if c.kind == 'vmem' and ps & c.r: n = max(n, 5)
        if p.trans and c.kind in ('mem', 'vmem') and pv & c.r: n = max(n, 1)
    if p.kind == 'mfma':
        big = p.passes == 8
        if c.kind == 'mfma':
            if p.w & c.AB: n = max(n, 12 if big else 8)
            if p.w & c.C and not (p.w == c.C and p.mn == c.mn): n = max(n, 10 if big else 6)
            if p.w & c.w and not (p.w & c.C): n = max(n, 10 if big else 6)
        elif c.kind in ('valu', 'mem', 'vmem'):
            if p.w & (c.r | c.w): n = max(n, 12 if big else 8)
            if c.kind == 'valu' and p.C & c.w: n = max(n, 7 if big else 3)
    if p.kind == 'salu' and ('s', 124) in p.w and c.ldsdma: n = max(n, 1)
    if p.kind == 'vmem' and p.wide_data and p.wide_data & c.w: n = max(n, 2)
    return n

class Asm:
    def __init__(self): self.L = []; self.uid = 0
    def __call__(self, text):
        for l in text.split('\n'):
            l = l.strip()
            if l: self.L.append(l)
    def lab(self, base):
        self.uid += 1; return "L_%s_%d" % (base, self.uid)
    def finish(self):
        ins = [I(t) for t in self.L]
        out = []
        def pad_for(hist, c):
            h = [p for p in hist[-48:] if p.states][-24:]
            n = 0
            for i, p in enumerate(h):
                k = need(p, c)
                if not k: continue
                t = 0; last = None; prev = None
                for q in h[i:] + [c]:
                    if prev is not None:
                        t += prev.states
                        if q is c: tn = t
                        if q.kind == 'mfma' and last is not None: t = max(t, last)
                    if q.kind == 'mfma': last = t + q.passes
                    prev = q
                if t < k + 1: n = max(n, k + 1 - tn)
            return n
        for c in ins:
            if c.states:
                n = pad_for(out, c)
                while n > 0:
                    k = min(n, 16); out.append(I('s_nop %d' % (k - 1))); n -= k
            out.append(c)
        for _ in range(3):
            pos = {x.text.split(';')[0].strip()[:-1]: i for i, x in enumerate(out) if x.label}
            changed = False; res = []
            for i, c in enumerate(out):
                if c.branch and c.mn.startswith(('s_cbranch', 's_branch')):
                    tgt = c.text.split(';')[0].split()[1]
                    hist = res[-40:] + [c]; n = 0; d = 0
                    for t in out[pos[tgt]:pos[tgt] + 60]:
                        if d >= 20: break
                        if t.states:
                            n = max(n, pad_for(hist, t) - 0)
                            hist = hist + [t]; d += t.states
                            if t.branch and t.mn == 's_branch': break
                    if n > 0:
                        changed = True
                        while n > 0:
                            k = min(n, 16); res.append(I('s_nop %d' % (k - 1))); n -= k
                res.append(c)
            out = res
            if not changed: break
        return "\n".join(("" if x.label else "  ") + x.text for x in out) + "\n"
```

```python
from asmlib import *
from layout import *
NAME = 'interleave_layers__memory_aug_recurrent_mem_tr__sliding_local_dilated__prompt'
WS = 's[4:7]'; TS = 's[8:11]'
sW, sRole, sBud, sMix = 12, 13, 14, 15
pX, pMem, pWq, pWk, pWv, pWo = 16, 18, 20, 22, 24, 26
pBq, pBo, pOut, pDbg, pWs = 32, 34, 36, 38, 40
OOBS = 0x20000000
BUDGET = 100000
LDS_MISC = 40000
DBG_HOLD = 12
DBG_READY = 8

LS = {'q': 64 * QKV_SEG, 'o': 64 * O_SEG, 'p': 64 * 5 * TILE}
def temp_srd(A, p, nbytes):
    A("s_mov_b32 s8, s%d\ns_mov_b32 s9, s%d\ns_mov_b32 s10, %d\ns_mov_b32 s11, 0x20000" % (p, p + 1, nbytes))

def tick(d, g): return "s_mul_i32 s%d, s%d, 65\ns_and_b32 s%d, s%d, 0xc4" % (d, g, d, d)
def prologue(A, opt):
    A("s_cmp_ge_u32 s2, 256\ns_cbranch_scc1 L_end")
    A("s_load_dwordx8 s[16:23], s[0:1], 0\ns_load_dwordx4 s[24:27], s[0:1], 32\ns_load_dwordx8 s[32:39], s[0:1], 64\ns_load_dwordx2 s[40:41], s[0:1], 96")
    A("s_getreg_b32 s42, hwreg(HW_REG_XCC_ID)\ns_and_b32 s42, s42, 7")
    opt.setdefault('xmap', [0, 6, 1, 7, 2, 4, 3, 5])
    if opt.get('xmap'): A("s_lshl_b32 s42, s42, 2\ns_lshr_b32 s42, 0x%x, s42\ns_and_b32 s42, s42, 7" % sum(g << (4 * x) for x, g in enumerate(opt['xmap'])))
    if opt.get('lstamp'): A("s_memrealtime s[30:31]")
    A("v_lshrrev_b32 v1, 6, v0\nv_readfirstlane_b32 s%d, v1" % sW)
    A("s_mov_b32 s%d, 0\ns_mov_b32 s%d, 0" % (sBud, sMix))
    A("s_waitcnt lgkmcnt(0)")
    A("s_mov_b32 s4, s40\ns_mov_b32 s5, s41\ns_mov_b32 s6, %d\ns_mov_b32 s7, 0x20000" % WS_SIZE)
    temp_srd(A, pDbg, 256)
    A("v_mov_b32 v3, %d" % LDS_MISC)
    A("s_cmp_lg_u32 s%d, 0\ns_cbranch_scc1 L_tick_done" % sW)
    A("s_mov_b64 exec, 1\nv_mov_b32 v8, 1\ns_mov_b32 s44, 0")
    if opt.get('forcemix'): A("s_branch L_tick_next")
    A(tick(43, 42) + "\nbuffer_atomic_add v8, off, %s, s43 sc0\ns_waitcnt vmcnt(0)\nv_readfirstlane_b32 s45, v8" % TS)
    A("s_and_b32 s45, s45, 0xffff\ns_cmp_lt_u32 s45, 32\ns_cbranch_scc1 L_tick_got")
    A("L_tick_next:")
    A("s_mov_b32 s42, s44\ns_add_u32 s44, s44, 1\nv_mov_b32 v8, 0x10001\n" + tick(43, 42))
    A("buffer_atomic_add v8, off, %s, s43 sc0\ns_waitcnt vmcnt(0)\nv_readfirstlane_b32 s45, v8" % TS)
    A("s_and_b32 s45, s45, 0xffff\ns_cmp_lt_u32 s45, 32\ns_cbranch_scc1 L_tick_got")
    A("s_cmp_lt_u32 s44, 8\ns_cbranch_scc1 L_tick_next")
    A("s_mov_b32 s42, 8\ns_mov_b32 s45, 0")
    A("L_tick_got:\ns_lshl_b32 s42, s42, 5\ns_add_u32 s42, s42, s45\nv_mov_b32 v8, s42\nds_write_b32 v3, v8\ns_waitcnt lgkmcnt(0)\ns_mov_b64 exec, -1")
    A("L_tick_done:")
    A("s_barrier\nds_read_b32 v8, v3\ns_waitcnt lgkmcnt(0)\nv_readfirstlane_b32 s%d, v8" % sRole)
    A("s_barrier")
    A("v_and_b32 v0, 63, v0")
    A("s_cmp_ge_u32 s%d, 256\ns_cbranch_scc1 L_end" % sRole)
    if opt.get('lstamp'): A("s_memrealtime s[28:29]\ns_waitcnt lgkmcnt(0)\ns_mov_b32 s31, s28")

def fill(A, sSlice, opt):
    if opt.get('nofill'): return
    A("v_mov_b32 v4, -1\nv_mov_b32 v5, -1\nv_mov_b32 v6, -1\nv_mov_b32 v7, -1\nv_lshlrev_b32 v8, 4, v0")
    A("s_mul_i32 s96, s%d, %d\ns_lshl_b32 s97, s%d, 10\ns_add_u32 s96, s96, s97\ns_add_u32 s96, s96, %d" % (sSlice, SYNC_PER_WG, sW, SYNC0))
    l = A.lab('fill')
    A("s_add_u32 s97, s96, %d\n%s:\nbuffer_store_dwordx4 v[4:7], v8, %s, s96 offen sc1\ns_add_u32 s96, s96, 4096\ns_cmp_lt_u32 s96, s97\ns_cbranch_scc1 %s" % (SYNC_PER_WG, l, WS, l))
    signal_ready(A, 8)

def signal_ready(A, vt):
    l = A.lab('sig')
    A("s_waitcnt vmcnt(0)\ns_barrier\ns_cmp_lg_u32 s%d, 0\ns_cbranch_scc1 %s" % (sW, l))
    A("s_mov_b64 exec, 1\nv_mov_b32 v%d, %d\nv_mov_b32 v%d, 1" % (vt, DBG_READY, vt + 1))
    A("global_atomic_add v%d, v%d, s[%d:%d]\ns_mov_b64 exec, -1" % (vt, vt + 1, pDbg, pDbg + 1))
    A(l + ":")

def wait_word(A, vt, n, sleep=8):
    l = A.lab('rdy'); d = A.lab('rdyd')
    A(l + ":")
    A("global_load_dword v%d, v%d, s[%d:%d] sc1\ns_waitcnt vmcnt(0)\nv_readfirstlane_b32 s%d, v%d" % (vt + 1, vt, pDbg, pDbg + 1, sMix, vt + 1))
    A("s_and_b32 s3, s%d, 0xffff\ns_cmp_ge_u32 s3, %d\ns_cbranch_scc1 %s" % (sMix, n, d))
    A("s_sleep %d\ns_add_u32 s%d, s%d, 1\ns_cmp_lt_u32 s%d, %d\ns_cbranch_scc1 %s" % (sleep, sBud, sBud, sBud, BUDGET, l))
    A(d + ":")
sPk = 92
def peek_ready(A, vt):
    A("s_lshr_b32 s3, s%d, 5\n" % sRole + tick(3, 3) + "\nv_mov_b32 v%d, s3\nv_writelane_b32 v%d, %d, 0\nglobal_load_dword v%d, v%d, s[%d:%d] sc1" % (vt, vt, DBG_READY, vt, vt, pDbg, pDbg + 1))
def peek_take(A, vt):
    A("v_readlane_b32 s%d, v%d, 0\nv_readlane_b32 s%d, v%d, 1" % (sPk, vt, sPk + 1, vt))
def wait_ready(A, vt, opt, group=False):
    if opt.get('lstamp'): A("s_memrealtime s[28:29]\ns_waitcnt lgkmcnt(0)")
    n = opt.get('nready', NFILL + 5); slow, fast = A.lab('rslow'), A.lab('rfast')
    A("s_mov_b32 s%d, s%d\ns_cmp_lt_u32 s%d, %d\ns_cbranch_scc1 %s\ns_and_b32 s3, s%d, 0xffff\ns_cmp_ge_u32 s3, 32\ns_cbranch_scc1 %s" % (sMix, sPk + 1, sPk, n, slow, sMix, fast))
    A(slow + ":\nv_mov_b32 v%d, %d" % (vt, DBG_READY))
    wait_word(A, vt, n)
    A("s_lshr_b32 s%d, s%d, 5\n" % (sMix, sRole) + tick(3, sMix) + "\nv_mov_b32 v%d, s3" % vt)
    wait_word(A, vt, 32)
    A(fast + ":\ns_lshr_b32 s%d, s%d, 16" % (sMix, sMix))

def anyempty(A, rl, t):
    rl = list(rl)
    if len(rl) == 1:
        A("v_cmp_eq_u32 vcc, -1, v%d" % rl[0]); return
    if len(rl) == 2: A("v_max_u32 v%d, v%d, v%d" % (t, rl[0], rl[1])); rl = []
    else: A("v_max3_u32 v%d, v%d, v%d, v%d" % (t, rl[0], rl[1], rl[2])); rl = rl[3:]
    while rl:
        if len(rl) == 1: A("v_max_u32 v%d, v%d, v%d" % (t, t, rl[0])); rl = []
        else: A("v_max3_u32 v%d, v%d, v%d, v%d" % (t, t, rl[0], rl[1])); rl = rl[2:]
    A("v_cmp_eq_u32 vcc, -1, v%d" % t)

class Poll:
    def __init__(self, A, Z, name, loads, sleep=0):
        self.A, self.Z, self.loads, self.sleep = A, Z, loads, sleep
        self.top, self.ok, self.retry = A.lab(name + '_top'), A.lab(name + '_ok'), A.lab(name + '_rt')
    def issue(self):
        for l in self.loads: self.A(l)
    def start(self, n):
        self.A("s_waitcnt vmcnt(%d)" % n); self.A(self.top + ":")
    def branch(self):
        self.A("s_cbranch_vccnz %s" % self.retry); self.A(self.ok + ":")
        Z = self.Z
        Z.append(self.retry + ":")
        if self.sleep: Z.append("s_sleep %d" % self.sleep)
        Z.extend(self.loads)
        Z.append("s_add_u32 s%d, s%d, 1\ns_cmp_lt_u32 s%d, %d\ns_waitcnt vmcnt(0)\ns_cbranch_scc1 %s\ns_branch %s" % (sBud, sBud, sBud, BUDGET, self.top, self.ok))

def udiv(A, dst, src, d, tmp_s):
    A("s_mov_b32 s%d, %d\nv_mul_hi_u32 v%d, v%d, s%d" % (tmp_s, (2**32 + d - 1) // d, dst, src, tmp_s))

def interleave(main, fill, start=0, per=1):
    out = []; fill = list(fill)
    for i, m in enumerate(main):
        out.append(m)
        if i >= start:
            for _ in range(per):
                if fill: out.append(fill.pop(0))
    return out + fill

class Lgkm:
    def __init__(self): self.q = []
    def op(self, tag, text): self.q.append(tag); return text
    def wait(self, tag):
        if tag not in self.q: return ""
        last = len(self.q) - 1 - self.q[::-1].index(tag)
        n = len(self.q) - 1 - last
        self.q = self.q[last + 1:]
        assert n <= 15
        return "s_waitcnt lgkmcnt(%d)\n" % n

def ldump(A, vt, vl16, reg=11, reg2=None, off=0):
    A("s_memrealtime s[98:99]\ns_waitcnt lgkmcnt(0)\nv_lshrrev_b32 v%d, 2, v%d\ns_lshl_b32 s97, s%d, 10\ns_add_u32 s97, s97, %d" % (vt, vl16, sRole, DBGW + off))
    A("s_cmp_eq_u32 s%d, 0\ns_cselect_b32 s97, s97, 0x%x\nbuffer_store_dword v%d, v%d, %s, s97 offen" % (sW, OOBS, reg, vt, WS))
    if not off:
        for role, w0, lanes in ((0, 4, (0, 8, 40, 63)), (64, 9, (0, 8, 40, 63)), (255, 14, ())):
            l = A.lab('dd')
            A("s_cmp_lg_u32 s%d, %d\ns_cbranch_scc1 %s" % (sRole, role, l))
            for i, x in enumerate(lanes + (None,)):
                A(("v_readlane_b32 s96, v%d, %d" % (reg, x) if x is not None else "s_mov_b32 s96, s%d" % (98 if role == 255 else 28)) + "\ns_sub_u32 s96, s96, s30\nv_mov_b32 v250, s96\nv_mov_b32 v251, %d\nglobal_store_dword v251, v250, s[%d:%d]" % (4 * (w0 + i), pDbg, pDbg + 1))
            A(l + ":")
    if reg2: A("buffer_store_dword v%d, v%d, %s, s97 offen offset:512" % (reg2, vt, WS))
    A("v_mov_b32 v%d, s98\nv_writelane_b32 v%d, s31, 4" % (reg, reg))
    A("v_writelane_b32 v%d, s98, 0\nv_writelane_b32 v%d, s30, 1\nv_writelane_b32 v%d, s28, 3\nv_writelane_b32 v%d, s%d, 2\nbuffer_store_dword v%d, v%d, %s, s97 offen offset:256\ns_waitcnt vmcnt(0)" % (reg, reg, reg, reg, sBud, reg, vt, WS))

def leave(A, opt):
    if opt.get('wb'):
        l = A.lab('wb')
        A("s_cmp_lg_u32 s%d, %d\ns_cbranch_scc1 %s" % (sRole, opt['wb'], l))
        A("s_cmp_lg_u32 s%d, 0\ns_cbranch_scc1 %s\nbuffer_wbl2 sc1\ns_waitcnt vmcnt(0)\n%s:" % (sW, l, l))
    A("s_endpgm")
```

```python
from common import *
import math, struct, re
def f32(x): return struct.unpack('<I', struct.pack('<f', x))[0]

vL16, vXr, vXr2, vFl, vF, vT0, vT1, vSt, vSt2, vL8 = range(1, 11)
vFr = 171
vDm = vSt2
vOne = 0
XF = 12
ACC = 36
PK = 68
EX = 84
sI, sLc, sSc, sLn, sSn, sSrc, sFb, sRdy, sBuf, sT, sT2, sC0, sC1, sC2, sC3 = range(42, 57)
sO = [57, 58, 59, 60]
sPF, sPV = 61, 62
sMW, sSW, sTS = 63, 64, 65
sMir, sLast, sFrom, sTo = 100, 80, 81, 82
sL2, sS2, sW2 = 83, 84, 85
sBu2 = 94
sFm = 95
L_F = 147456
sE = 66

def mf(d, a, b, c=None): return "v_mfma_f32_32x32x16_bf16 %s, %s, %s, %s" % (v(d, 16), R(a, 4), R(b, 4), "0" if c is None else v(c, 16))
def mf8(d, a, b, c=None): return "v_mfma_f32_32x32x8_bf16 %s, %s, %s, %s" % (v(d, 16), v(a, 2), v(b, 2), "0" if c is None else v(c, 16))
def cvt(d, a, b): return "v_cvt_pk_bf16_f32 v%d, v%d, v%d" % (d, a, b)
def ld(n, d, va, so, off=0, srd=WS, fl='sc1'):
    return "buffer_load_dword%s %s, v%d, %s, s%d offen offset:%d %s" % ({1: '', 2: 'x2', 4: 'x4'}[n], v(d, n), va, srd, so, off, fl)
def st(n, d, va, so, off=0, srd=WS, fl='sc1'):
    return "buffer_store_dword%s %s, v%d, %s, s%d offen offset:%d %s" % ({1: '', 2: 'x2', 4: 'x4'}[n], v(d, n), va, srd, so, off, fl)
def lin(dst, base, terms, t=sT):
    L = ["s_mov_b32 s%d, %d" % (dst, base)]
    for r, k in terms:
        if k == 1: L.append("s_add_u32 s%d, s%d, s%d" % (dst, dst, r))
        else: L += ["s_mul_i32 s%d, s%d, %d" % (t, r, k), "s_add_u32 s%d, s%d, s%d" % (dst, dst, t)]
    return L
def wreg(n):
    return [256 + 4 * i if i < 64 else 256 - 4 * (n - i) for i in range(n)]

WFL = ['']
def load_w(A, ptr, nbytes, sBase, vSrc, rows_per_instr, stride, ipw, nunits, nslots, reads, rev=None, hook=None):
    ub = 4 * ipw * 1024
    temp_srd(A, ptr, nbytes)
    A("s_mul_i32 s%d, s%d, %d\ns_add_u32 s%d, s%d, s%d\ns_mul_i32 s%d, s%d, %d" % (sT, sW, ipw * rows_per_instr * stride, sBase, sBase, sT, sT2, sW, ipw * 1024))
    def run(order):
        def issue(n):
            for i in range(ipw):
                A("s_add_u32 m0, s%d, %d\ns_add_u32 s%d, s%d, %d" % (sT2, (n % nslots) * ub + 1024 * i, sT, sBase, (order[n] * 4 * ipw + i) * rows_per_instr * stride))
                A("buffer_load_dwordx4 v%d, %s, s%d offen %s lds" % (vSrc, TS, sT, WFL[0]))
        d = nslots - 1
        for n in range(min(d, nunits)): issue(n)
        for n in range(nunits):
            A("s_waitcnt vmcnt(%d) lgkmcnt(0)\ns_barrier" % (ipw * (min(n + d, nunits) - n - 1)))
            if n + d < nunits: issue(n + d)
            if n == nunits - 3: peek_ready(A, vF)
            reads(order[n], (n % nslots) * ub)
            if hook and n: hook(n == 1, order[n - 1])
        A("s_waitcnt lgkmcnt(0)")
        if hook: hook(False, order[-1])
    if rev is not None:
        l, e = A.lab('rev'), A.lab('rev')
        A("s_cmp_lg_u32 s%d, 0\ns_cbranch_scc1 %s" % (rev, l)); run(list(range(nunits))); A("s_branch %s\n%s:" % (e, l)); run(list(range(nunits))[::-1]); A(e + ":")
    else: run(list(range(nunits)))
    peek_take(A, vF)
    A("s_waitcnt lgkmcnt(0)\ns_barrier")

def tr_addr(A, dst, rowb, tab, hi_rows=8, t0=vT0, t1=vT1):
    if isinstance(tab, list):
        lo = sum(x << (8 * i) for i, x in enumerate(tab[:4])); hi = sum(x << (8 * i) for i, x in enumerate(tab[4:]))
        A("v_mov_b32 v%d, 0x%x\nv_mov_b32 v%d, 0x%x" % (t0, lo, t1, hi))
    else: A("v_mov_b32 v%d, s%d\nv_mov_b32 v%d, s%d" % (t0, tab[0], t1, tab[1]))
    A("v_and_b32 v%d, 16, v0\nv_cmp_eq_u32 vcc, 0, v%d\nv_cndmask_b32 v%d, v%d, v%d, vcc" % (dst, dst, t0, t1, t0))
    A("v_and_b32 v%d, 3, v0\nv_lshlrev_b32 v%d, 3, v%d\nv_bfe_u32 v%d, v%d, v%d, 8" % (t1, t1, t1, t0, t0, t1))
    A("v_lshrrev_b32 v%d, 5, v0\nv_mul_u32_u24 v%d, %d, v%d\nv_bfe_u32 v%d, v0, 2, 2\nv_add_u32 v%d, v%d, v%d" % (t1, t1, hi_rows, t1, dst, dst, dst, t1))
    A("v_mul_u32_u24 v%d, %d, v%d\nv_lshl_add_u32 v%d, v%d, 3, v%d" % (dst, rowb, dst, dst, t0, dst))
TAB_T = [0, 2, 1, 3, 4, 6, 5, 7]
TAB_P = [0, 2, 4, 6, 1, 3, 5, 7]
TAB_N = [0, 1, 2, 3, 4, 5, 6, 7]
def tabw(t): return sum(x << (8 * i) for i, x in enumerate(t[:4])), sum(x << (8 * i) for i, x in enumerate(t[4:]))

def ident(A, dst, x, t0=vT0, t1=vT1):
    A("v_and_b32 v%d, 1, v0\nv_lshlrev_b32 v%d, 4, v%d\nv_mov_b32 v%d, 0x3f80\nv_lshlrev_b32 v%d, v%d, v%d" % (t0, t0, t0, t1, t1, t0, t1))
    A("v_bfe_u32 v%d, v0, 4, 1\nv_cmp_eq_u32 vcc, %d, v%d\nv_cndmask_b32 v%d, 0, v%d, vcc" % (t0, x, t0, t1, t1))
    A("v_bfe_u32 v%d, v0, 2, 1\nv_lshrrev_b32 v%d, 5, v0\nv_cmp_eq_u32 vcc, v%d, v%d\nv_cndmask_b32 v%d, 0, v%d, vcc" % (t0, dst, t0, dst, t1, t1))
    A("v_bfe_u32 v%d, v0, 3, 1\nv_bfe_u32 v%d, v0, 1, 1\nv_lshl_add_u32 v%d, v%d, 1, v%d" % (t0, dst, t0, t0, dst))
    for d in range(4): A("v_cmp_eq_u32 vcc, %d, v%d\nv_cndmask_b32 v%d, 0, v%d, vcc" % (d, t0, dst + d, t1))

sTab, sCn = 86, 90
def table(lead):
    n0, last, tot = (tuple(lead) + (64,))[:3] if isinstance(lead, tuple) else (lead, 64 - lead, 64)
    T = [0] * n0; done = n0
    for i in range(64):
        T.append(1)
        want = min(tot, n0 + ((i + 1) * (tot - n0) + last - 1) // last)
        T += [0] * (want - done); done = want
    assert len(T) == 64 + tot and sum(T) == 64
    return T
def sched_init(lead):
    if lead is None: return ["s_mov_b32 s%d, 63" % sLast]
    T = table(lead); b = sum(x << i for i, x in enumerate(T))
    return ["s_mov_b32 s%d, 0x%x" % (sTab + i, (b >> (32 * i)) & 0xffffffff) for i in range(4)] + ["s_mov_b64 %s, 0" % s(sCn, 2), "s_mov_b32 s%d, %d" % (sLast, len(T) - 1)]
def sched(lead, skip=None):
    if lead is None: return ["s_add_u32 s%d, s%d, 2" % (sS2, sI)]
    sLn, sSn, sT = sL2, sS2, sT2
    L = ["s_cmp_eq_u32 s%d, 62\ns_cselect_b64 %s, %s, %s" % (sI, s(sTab, 2), s(sTab + 2, 2), s(sTab, 2)),
         "s_and_b32 s%d, s%d, 1\ns_cselect_b32 s%d, s%d, s%d" % (sLn, sTab, sSn, sCn + 1, sCn),
         "s_lshr_b64 %s, %s, 1" % (s(sTab, 2), s(sTab, 2)), "s_add_u32 s%d, s%d, s%d" % (sCn + 1, sCn + 1, sLn),
         "s_xor_b32 s%d, s%d, 1" % (sT, sLn), "s_add_u32 s%d, s%d, s%d" % (sCn, sCn, sT)]
    if skip:
        L += ["s_cmp_eq_u32 s%d, %d\ns_cselect_b32 s%d, %d, s%d" % (sCn, skip[0], sCn, skip[0] + skip[1], sCn),
              "s_lshl_b32 s%d, s%d, 8" % (sT, sLc), "s_add_u32 s%d, s%d, s%d" % (sT, sT, sPV),
              "s_cmp_eq_u32 s%d, s%d\ns_cselect_b32 s%d, s%d, s%d" % (sT, sFrom, sPV, sTo, sPV)]
    return L

def gstamp(A, opt, k, flush=False):
    if opt.get('gstamp'):
        A("%s s[98:99]\ns_waitcnt lgkmcnt(0)\nv_writelane_b32 v11, s98, %d" % ('s_memtime' if opt.get('lcyc') else 's_memrealtime', k))
        if flush: A("s_memtime s[98:99]\ns_waitcnt lgkmcnt(0)\nv_writelane_b32 v11, s98, 6")
        if flush: A("v_writelane_b32 v11, s%d, 7\nv_lshrrev_b32 v%d, 1, v%d\ns_mov_b64 exec, 0xff\nbuffer_store_dword v11, v%d, %s, s%d offen\ns_mov_b64 exec, -1\ns_add_u32 s%d, s%d, 32" % (sRdy, vT0, vL8, vT0, WS, sTS, sTS, sTS))

class Flow:
    def __init__(self, A, opt, name, ndma, n1, lead, src, flagbase, local, skip=None):
        self.A, self.opt, self.name, self.ndma, self.n1 = A, opt, name, ndma, n1
        self.skip = skip
        self.sums = 1 if flagbase in (FX, FX + 5 * FW) else 0
        if self.sums:
            A("s_lshl_b32 s%d, s%d, 6\ns_sub_u32 s%d, 80, s%d" % (sT, sW, sT, sT))
            A("v_mov_b32 v%d, 0x%x\nv_cmp_gt_i32 vcc, s%d, v0\nv_cndmask_b32 v%d, v%d, v%d, vcc" % (vDm, WS_SIZE, sT, vDm, vDm, vL16))
        self.post = "s_barrier\nv_mov_b32 v%d, s%d\n" % (vT1, sPV) + st(1, vT1, vOne, sPF) + " ; P" + ("\n" + st(1, vT1, vOne, sPF, LOC, fl='') + " ; P" if local else "")
        self.np = 2 if local else 1
        A("v_lshlrev_b32 v%d, 2, v0\nv_add_u32 v%d, %d, v%d\ns_lshl_b32 s%d, s%d, 8\ns_add_u32 s%d, s%d, %d" % (vFr, vFr, L_F, vFr, sFm, sW, sFm, sFm, L_F))
        A("v_or_b32 v0, s%d, v0\nv_lshlrev_b32 v0, 24, v0\nv_min_u32 v0, 0x1000000, v0\nv_lshlrev_b32 v0, 4, v0" % sW)
        self.fload = "s_xor_b32 s%d, s%d, 1024\ns_mov_b32 m0, s%d\nv_xor_b32 v%d, 1024, v%d\nbuffer_load_dword v%d, %s, s%d offen sc1 lds ; F" % (sFm, sFm, sFm, vFr, vFr, vFl, WS, sFb)
        self.fread = "ds_read_b32 v%d, v%d" % (vF, vFr)
        base, terms = src
        self.nxt = sched(lead, skip) + lin(sW2, base, [({'L': sL2, 'S': sS2}.get(r, r), k) for r, k in terms] + [(sMW, 1)], sT2)
        self.off = ["s_mov_b32 s%d, 0x%x" % (r, OOBS) for r in sO + [sPF]]
        self.rot = "s_mov_b32 s%d, s%d\ns_mov_b32 s%d, s%d\ns_mov_b32 s%d, s%d\ns_mov_b32 s%d, s%d\ns_mov_b32 s%d, s%d\ns_add_u32 s%d, s%d, 1" % (sLc, sLn, sSc, sSn, sSn, sS2, sLn, sL2, sSW, sW2, sI, sI)
        self.lget = ["s_memtime s[98:99]" if opt.get('lcyc') else "s_memrealtime s[98:99]"] if opt.get('lstamp') else []
        self.lput = ["s_lshr_b32 m0, s%d, %d" % (sI, 0 if lead is None else 1), "v_writelane_b32 v11, s98, m0"] if opt.get('lstamp') else []
        if self.lput and lead is not None: self.lput += ["s_add_u32 s97, s%d, 1" % sI, "s_bfe_u32 m0, s97, 0x60001", "v_writelane_b32 v170, s98, m0"]
        self.decide = [self.missing(sSn) + "\ns_cselect_b32 s%d, 0, 1" % sRdy,
                       "s_cmp_lt_u32 s%d, s%d\ns_cselect_b32 s%d, s%d, 0" % (sI, sLast, sRdy, sRdy),
                       "s_cmp_lg_u32 s%d, 0\ns_cselect_b32 s%d, s%d, 0x%x\ns_xor_b32 s%d, s%d, s%d" % (sRdy, sSrc, sSW, OOBS, sBuf, sBuf, sC3)]
        A("s_lshl_b32 s%d, s%d, 10\ns_mov_b32 s%d, s%d\ns_mov_b32 s%d, -2\ns_mov_b32 s%d, 0\ns_mov_b32 s%d, %d" % (sMW, sW, sBuf, sMW, sI, sPV, sFb, flagbase))
        A("s_cmp_eq_u32 s%d, 0\ns_cselect_b32 s%d, s%d, 0x%x" % (sW, sFb, sFb, OOBS))
        A("s_mov_b32 s%d, %d\ns_mov_b32 s%d, %d" % (sC3, 4096 * ndma, sC2, 4096 * ndma))
        if opt.get('gstamp'):
            for l in lin(sTS, DBGW + 524288 - 128 * 4096, [(sRole, 4096)]): A(l)
            A("s_cmp_eq_u32 s%d, 0\ns_cselect_b32 s%d, s%d, 0x%x" % (sW, sTS, sTS, OOBS))
        if lead is None: A("s_mov_b32 s%d, s%d" % (sL2, sLn))
        for l in sched_init(lead): A(l)
        if skip:
            a, n = skip; l = A.lab('main')
            A("s_mov_b32 s%d, %d\ns_mov_b32 s%d, %d\ns_mov_b32 s%d, 1\ns_mov_b32 s%d, 1\ns_cmp_eq_u32 s%d, 0\ns_cbranch_scc1 %s" % (sFrom, a, sTo, a + n, sLc, sLn, sMir, l))
            A("s_mov_b64 %s, 0\ns_mov_b32 s%d, %d\ns_mov_b32 s%d, %d\ns_mov_b32 s%d, %d\ns_mov_b32 s%d, 64" % (s(sTab, 2), sCn, a, sLast, n - 1, sFrom, a + n, sTo))
            A("s_add_u32 s%d, s%d, %d\ns_mov_b32 s%d, s%d\ns_mov_b32 s%d, %d\n" % (sC1, sC1, 2 * 72 * FW, sPF, sC1, sPV, a) + self.post)
            A(l + ":")
        for l in self.nxt + [self.rot] + self.nxt + self.off: A(l)
        A("s_mov_b32 s%d, s%d\ns_mov_b32 s%d, 0\ns_mov_b32 s%d, 0" % (sSrc, sSW, sRdy, sBu2))
    def missing(self, seg):
        return "v_cmp_ge_i32 vcc, s%d, v%d\ns_cmp_eq_u32 s%d, 0\ns_cselect_b32 s%d, vcc_lo, vcc_hi\ns_cmp_lg_u32 s%d, 0" % (seg, vF, sLn, sT, sT)
    def see(self, n):
        return "s_waitcnt vmcnt(%s)\ns_barrier\n%s\ns_waitcnt lgkmcnt(0)\n" % (n, self.fread)
    def dma(self):
        return ["s_add_u32 m0, s%d, %d\ns_add_u32 s%d, s%d, %d\nbuffer_load_dwordx4 v%d, %s, s%d offen sc1 lds ; %s" %
                (sBuf, 4096 * i, sT, sSrc, 4096 * i, vDm if self.sums and i == self.ndma - 1 else vL16, WS, sT, 'D' if i < self.n1 else 'E') for i in range(self.ndma)]
    def counts(self, L, i0, tail=()):
        kind = lambda l: l[-1] if ' ; ' in l else 'S' if 'store' in l else 'L'
        ops = [kind(l) for l in L[i0:] if l.startswith('buffer_')]; seen = 0
        for i in range(i0, len(L)):
            if L[i].startswith('buffer_'): seen += 1
            m = re.search(r'@(.)', L[i])
            if m: L[i] = L[i].replace(m.group(0), str(seen if m.group(1) == '@' else (ops + list(tail) + ops[:seen])[::-1].index(m.group(1))))
        return (ops + list(tail))[::-1]
    def drain(self, nstores, tag, entry):
        A = self.A; drain, spin, fin = ["L_%s_%s%s" % (self.name, x, tag) for x in ('drain', 'spin', 'fin')]
        n2 = self.ndma - self.n1
        A("s_mov_b32 s%d, s%d\ns_cmp_eq_u32 s%d, s%d\ns_cbranch_scc1 %s" % (sSrc, sSW, sI, sLast, fin))
        A(self.see(nstores) + self.missing(sSn) + "\ns_cbranch_scc1 " + drain)
        for l in self.dma(): A(l)
        A("s_waitcnt vmcnt(%d)\n" % self.ndma + self.post)
        for l in self.off: A(l)
        A("s_waitcnt vmcnt(%d)\ns_branch %s" % (n2 + self.np, entry))
        A(drain + ":")
        A("s_waitcnt vmcnt(0)\n" + self.post)
        for l in self.off: A(l)
        A(spin + ":")
        if self.opt.get('gsleep', 1): A("s_sleep %d" % self.opt.get('gsleep', 1))
        A(self.fload + "\ns_add_u32 s%d, s%d, 1\ns_cmp_lt_u32 s%d, %d\ns_cselect_b32 s%d, s%d, -2" % (sBu2, sBu2, sBu2, BUDGET, sT2, sSn))
        A(self.see(0) + self.missing(sT2) + "\ns_cbranch_scc1 " + spin)
        for l in self.dma(): A(l)
        A("s_waitcnt vmcnt(%d)\ns_branch %s" % (n2, entry))
        A(fin + ":\ns_waitcnt vmcnt(0)\n" + self.post)
        if self.skip: A("s_cmp_lg_u32 s%d, 0\ns_cbranch_scc1 L_helper_done" % sMir)
        if self.opt.get('lstamp'): ldump(A, vT0, vL16, 11, 170)
        if self.name == 'bo': A("s_endpgm")
        else: leave(A, self.opt)
FLIP = ["v_add_u32 v%d, s%d, v%d" % (vXr, sC2, vXr), "v_add_u32 v%d, s%d, v%d" % (vXr2, sC2, vXr2), "s_sub_u32 s%d, 0, s%d" % (sC2, sC2), "s_add_u32 s%d, s%d, 1" % (sPV, sSc)]
def groups(L, n): return ["\n".join(L[i:i + n]) for i in range(0, len(L), n)]
REST = "s_waitcnt vmcnt(@@)\ns_barrier"

def skeleton(A, opt, name, nk, nt, W, ndma, n1, lead, src, flagbase, outs, stores, tail, fpos, xread=None, extra=None, late=None, pre=0, local=True):
    Z = []
    fl = Flow(A, opt, name, ndma, n1, lead, src, flagbase, local)
    top, top2 = "L_%s_top" % name, "L_%s_top2" % name
    A("s_branch L_%s_spin" % name)
    A(top + ":")
    i0 = len(A.L)
    A("s_waitcnt vmcnt(@D)")
    A(top2 + ":\ns_barrier")
    gstamp(A, opt, 0)
    if xread is None: xread = lambda k, d: ["ds_read_b128 %s, v%d offset:%d" % (v(d, 4), vXr, k * 1024)]
    ring = 4 if nt == 2 else 6
    Q = Lgkm()
    for k in range(ring - 1):
        for l in xread(k, XF + 4 * k): A(Q.op(k, l))
    pE, pD, pP, pF = fpos
    for l in stores + ([fl.fload] if pE == 0 else []) + [fl.rot] + fl.lget + fl.nxt: A(l)
    nm = nk * nt; F = {}
    def put(p, L, step=1):
        for l in L:
            F.setdefault(min(p, nm - 1), []).append(l); p += step
        return p
    put(0, extra() if extra else [])
    if pE: put(pE, [fl.fload])
    w = "s_waitcnt vmcnt(@F)\n"
    if pE is None: w = "s_cmp_eq_u32 s%d, 0\ns_cbranch_scc1 L_%s_have\n%sL_%s_have:\n" % (sRdy, name, w, name)
    p = put(pD, [lambda Q: w + "s_barrier\n" + Q.op('f', fl.fread), "", "", lambda Q: Q.wait('f') + fl.decide[0]] + fl.decide[1:])
    p = put(p, fl.dma(), 2 if nm - p >= 2 * ndma else 1)
    put(pF, [fl.fload])
    put(pP, ["s_waitcnt vmcnt(@S)\n" + fl.post] + groups(outs, 4))
    kr = 4 * n1 - ring + 1
    if late: put(max(late[0], kr * nt), late[1])
    for k in range(nk):
        x = XF + 4 * (k % ring)
        for t in range(nt):
            A((Q.wait(k) if t == 0 else "") + mf(ACC + 16 * t, W[k * nt + t], x, ACC + 16 * t if k else None))
            if t == 0 and k == kr and n1 < ndma: A(REST)
            if t == 0 and k + ring - 1 < nk:
                for l in xread(k + ring - 1, XF + 4 * ((k + ring - 1) % ring)): A(Q.op(k + ring - 1, l))
            for l in F.get(k * nt + t, []): A(l(Q) if callable(l) else l)
    ops = fl.counts(A.L, i0, 'S' * pre)
    nF = min(ops.index('F'), ops.index('E' if n1 < ndma else 'D'))
    for l in FLIP + fl.lput: A(l)
    gstamp(A, opt, 1)
    tail(A, Z, fl, lambda k: ops.index(k) - pre)
    gstamp(A, opt, 2, True)
    A("s_cmp_lg_u32 s%d, 0\ns_cbranch_scc1 %s" % (sRdy, top))
    for l in stores: A(l)
    fl.drain(len(stores) + pre, '', top2)
    for z in Z: A(z)

def mf16(d, a, b, c=None): return "v_mfma_f32_16x16x32_bf16 %s, %s, %s, %s" % (v(d, 4), R(a, 4), R(b, 4), "0" if c is None else v(c, 4))
def stream(A, opt, name, nk, nt, W, orient, ndma, n1, lead, src, flagbase, outs, epi, XR_, AC, ring, dist, nbar, fpos, late=None, local=True, skip=None):
    fl = Flow(A, opt, name, ndma, n1, lead, src, flagbase, local, skip)
    A("s_branch L_%s_spin1" % name)
    nf = 2 * nk; nm = nf * nt
    assert (2 * nf) % ring == 0
    acc = lambda p, m, t: AC + 8 * nt * p + 4 * (nt * m + t)
    slot = lambda p, f: XR_ + 4 * ((f + p * nf) % ring)
    def rd(p, f):
        o = (f >> 1) * 2048 + (f & 1) * 256
        return "ds_read_b128 %s, v%d offset:%d" % (v(slot(p, f), 4), vXr if o < 65536 else vXr2, o % 65536)
    def mm(p, f, t):
        k, m = f >> 1, f & 1; w, x = W[k * nt + t], slot(p, f)
        return mf16(acc(p, m, t), w if orient == 'T' else x, x if orient == 'T' else w, acc(p, m, t) if k else None)
    A.uid += 100; S = Asm(); S.uid = A.uid + 5000; fl.A = S
    nst = sum('buffer_store' in l for l in epi(lambda m, t: acc(0, m, t), False))
    for p in range(2):
        body, entry, slow = ["L_%s_%s%d" % (name, x, p) for x in ('body', 'entry', 'slow')]
        S(entry + ":\ns_barrier")
        for f in range(dist): S(rd(p, f))
        S("s_branch " + body)
        A(body + ":")
        gstamp(A, opt, 0)
        Q = Lgkm()
        for f in range(dist): Q.op(f, '')
        FS = [[] for _ in range(nm)]; FV = [[] for _ in range(nm)]
        fixs = lambda g: 1 if g % nt == nt - 1 else 0
        fixv = lambda g: 1 if g % nt == 0 and g // nt + dist < nf else 0
        lim = (nf - nbar) * nt - 1
        FS[lim - 1] += ['', '']
        gr = (4 * n1 - dist) * nt
        if n1 < ndma: FS[gr] += REST.split('\n')
        def put(g, L, step=0):
            pv = False
            for l in L:
                if isinstance(l, int): g += l; continue
                sc = l[0] if isinstance(l, tuple) else l.startswith('s_'); l = l[1] if isinstance(l, tuple) else l
                if sc and pv and not step: g += 1
                wt = lambda x: 2 if isinstance(x, str) and x.startswith(('v_rsq', 'buffer_store')) else 1
                w = wt(l); cnt = lambda X: sum(wt(x) for x in X)
                vm = isinstance(l, str) and l.startswith('buffer_')
                while g < lim and (len(FS[g]) + fixs(g) + cnt(FV[g]) + fixv(g) + w > 3 or (not sc and cnt(FV[g]) + fixv(g) + w > 2) or (vm and FV[g])): g += 1
                assert g < lim, (name, l)
                (FS if sc else FV)[g].append(l); pv = not sc
                if pv: g += step
            return g
        flat = lambda L: "\n".join(L).split('\n')
        pE, pD, pP, pF = fpos
        rdf = (False, lambda Q: Q.op('f', fl.fread))
        gf = put(0, [rdf]) if pD == 'B' else put(gr + 1, [rdf]) if pD == 'R' else put(pD, ["s_waitcnt vmcnt(@F)", "s_barrier", rdf])
        ge = put(1, epi(lambda m, t: acc(1 - p, m, t), False))
        g = put(0, flat(fl.lget + [fl.rot]))
        dec = flat(fl.decide)
        g = put(max(g + 1, gf + 6), [(True, lambda Q: Q.wait('f')), dec[0], 2] + dec[1:])
        g = max(g, pE or 0)
        assert pP == 'R' or pP > g
        gd0 = g
        for i, d in enumerate(fl.dma()):
            d = d.split('\n'); g = put(g + 1, d[:2]); g = put(max(g, getattr(put, 'last', -9) + opt.get('dstep_' + name[0], 4 if name == 'leaf' else 6)), d[2:]); put.last = g
            if i + 1 == -pF: g = put(g + 1, flat([fl.fload])); assert i + 1 >= n1
        if pF >= 0: g = put(max(pF, g + 1), flat([fl.fload]))
        gm = g
        sp = lambda k: [(True, "%s s[98:99]\ns_waitcnt lgkmcnt(0)\nv_writelane_b32 v11, s98, %d" % ('s_memtime' if opt.get('lcyc') else 's_memrealtime', k))] if opt.get('gstamp') == 2 else []
        put(opt.get('sp3', ge + 1), sp(3))
        if pP == 'R':
            assert gr > ge and gr > gd0
            FS[gr][0] = "s_waitcnt vmcnt(@S)"; g = put(gr + 1, flat([fl.post])[1:] + outs + FLIP[3:])
        else: g = put(max(pP, ge + 1), sp(4) + ["s_waitcnt vmcnt(@S)"] + sp(5) + flat([fl.post]) + outs + FLIP[3:])
        g = put(max(g, gm) + 1, flat(fl.nxt) + fl.lput); assert g < (nf - dist - 1) * nt
        if late: put(max(late[0], ge + 1, gr + 1 if n1 < ndma else 0), late[1])
        put((nf - dist - 1) * nt + 1, FLIP[:3])
        i0 = len(A.L)
        A(Q.wait(0))
        for f in range(nf - nbar):
            for t in range(nt):
                g = f * nt + t
                if g == lim:
                    gstamp(A, opt, 1); gstamp(A, opt, 2, True)
                    A("s_cmp_eq_u32 s%d, 0\ns_cbranch_scc1 %s" % (sRdy, slow))
                A(mm(p, f, t))
                if t == nt - 1 and f + 1 < nf - nbar: A(Q.wait(f + 1))
                for l in FS[g]: A(l(Q) if callable(l) else l)
                if t == 0 and f + dist < nf: A(Q.op(f + dist, rd(p, f + dist)))
                for l in FV[g]: A(l(Q) if callable(l) else l)
        A("s_waitcnt vmcnt(@%s) lgkmcnt(0)\ns_barrier" % ('F' if pD == 'B' else 'D'))
        ops = fl.counts(A.L, i0)
        nx = list(range(dist))
        free = lambda f, done: (nf + f - ring) < done
        for f in range(nf - nbar, nf):
            for t in range(nt):
                if t == 0 and nx and free(nx[0], f): A(rd(1 - p, nx.pop(0)))
                A(mm(p, f, t))
                if nx and free(nx[0], f + (1 if t == nt - 1 else 0)): A(rd(1 - p, nx.pop(0)))
        assert not nx
        if p == 1: A("s_branch L_%s_body0" % name)
        S(slow + ":\n" + mm(p, nf - nbar - 1, nt - 1) + "\ns_waitcnt lgkmcnt(0)")
        for f in range(nf - nbar, nf):
            for t in range(nt): S(mm(p, f, t))
        nn = S.lab('nonext')
        S("s_mov_b32 s%d, s%d\ns_cmp_eq_u32 s%d, s%d\ns_cbranch_scc1 %s" % (sSrc, sSW, sI, sLast, nn))
        S(fl.see(min(ops.index('F'), ops.index('E' if n1 < ndma else 'D'))) + fl.missing(sSn) + "\ns_cbranch_scc1 " + nn)
        for l in fl.dma() + epi(lambda m, t: acc(p, m, t), True) + fl.off[:-1]: S(l)
        S("s_waitcnt vmcnt(%d)\ns_branch L_%s_entry%d" % (nst + ndma - n1, name, 1 - p))
        S(nn + ":\n" + fl.fload)
        for l in epi(lambda m, t: acc(p, m, t), True): S(l)
        fl.drain(nst, str(p), "L_%s_entry%d" % (name, 1 - p))
    A.L.extend(S.L)

def row_stats(SX, n):
    L = ["v_add_f32 v%d, v%d, v%d" % (SX + i, SX + i, SX + n * p + i) for p in range(1, 5) for i in range(n)]
    L += ["v_mul_f32 v%d, 0x%x, v%d" % (SX + i, f32(1 / 640 if i & 1 else -1 / 640), SX + i) for i in range(n)]
    for op in ("v_fma_f32 v{1}, -v{0}, v{0}, v{1}", "v_max_f32 v{1}, 0, v{1}", "v_add_f32 v{1}, 0x%x, v{1}" % f32(1e-5), "v_rsq_f32 v{1}, v{1}"):
        L += [op.format(SX + i, SX + i + 1) for i in range(0, n, 2)]
    return L

def two_streams(A, lstride):
    A("v_lshrrev_b32 v%d, 5, v0\nv_mul_u32_u24 v%d, %d, v%d\nv_add_u32 v%d, v%d, v%d" % (vT0, vT0, lstride, vT0, vFl, vFl, vT0))
def common_init(A, ndma, nflag):
    XB = 4096 * ndma
    A("v_lshlrev_b32 v%d, 3, v0\nv_mov_b32 v%d, v%d\nv_add_u32 v%d, 0x10000, v%d" % (vL8, vXr, vL16, vXr2, vL16))
    A("v_and_b32 v%d, 31, v0\nv_min_u32 v%d, %d, v%d\nv_lshlrev_b32 v%d, 8, v%d" % (vFl, vFl, nflag - 1, vFl, vFl, vFl))

def hold(A, opt):
    if opt.get('hold', 1):
        l, l2 = A.lab('hold'), A.lab('hold')
        A("s_cmp_lg_u32 s%d, 0\ns_cbranch_scc1 %s\nv_mov_b32 v%d, %d" % (sW, l, vT0, DBG_READY))
        wait_word(A, vT0, opt.get('nready', NFILL + 5), 32)
        if opt.get('hold', 1) > 1:
            A(l2 + ":\ns_sleep 16\nbuffer_load_dword v%d, off, %s, 0 offset:%d sc1\ns_add_u32 s%d, s%d, 1\ns_waitcnt vmcnt(0)\nv_readfirstlane_b32 s3, v%d" % (vT0, WS, FX, sBud, sBud, vT0))
            A("s_cmp_ge_u32 s%d, %d\ns_cbranch_scc1 %s\ns_cmp_lt_i32 s3, %d\ns_cbranch_scc1 %s" % (sBud, BUDGET, l, opt['hold'], l2))
        A(l + ":\ns_barrier")
WHERE = {}
def nearby(A, opt, producer, keys=None):
    if keys is None:
        A("s_lshr_b32 s%d, s%d, 5" % (sT, sRole)); keys = (sT, {g: g for g in range(4, 8)})
    A("s_mov_b64 vcc, 0")
    for k, g in keys[1].items():
        m = sum(1 << l for l in range(64) if producer(k, l) and WHERE[producer(k, l)] >> 5 == g)
        if m: A("s_cmp_eq_u32 s%d, %d\ns_cselect_b32 vcc_lo, 0x%x, vcc_lo\ns_cselect_b32 vcc_hi, 0x%x, vcc_hi" % (keys[0], k, m & 0xffffffff, m >> 32))
    A("s_cmp_eq_u32 s%d, 0\ns_cselect_b32 s%d, %d, 0\nv_mov_b32 v%d, s%d\nv_cndmask_b32 v%d, 0, v%d, vcc\nv_add_u32 v%d, v%d, v%d" % (sMix, sT, LOC, vT0, sT, vT0, vT0, vFl, vFl, vT0))
def leaf_index(opt, ks, ns): return 5 * ns + ks if opt.get('byns') else 5 * ks + ns
def tr16(A, dst, rowb):
    A("v_lshrrev_b32 v%d, 4, v0\nv_bfe_u32 v%d, v0, 2, 2\nv_lshl_add_u32 v%d, v%d, 3, v%d\nv_mul_u32_u24 v%d, %d, v%d\nv_and_b32 v%d, 3, v0" % (vT0, dst, dst, vT0, dst, dst, rowb, dst, vT0))
def x16(A):
    A("v_and_b32 v%d, 0xf0, v%d\nv_lshrrev_b32 v%d, 4, v0\nv_lshl_add_u32 v%d, v%d, 9, v%d\nv_mov_b32 v%d, v%d" % (vSt2, vL16, vT0, vSt, vT0, vSt2, vXr, vSt))

def qkv_role(A, opt, sIdx):
    sM, sU, sHd, sTh, sBase, sP = sE, sE + 1, sE + 2, sE + 3, sE + 4, sE + 6
    XR_, AC, PK_, CS, SX, SV = 12, 28, 92, 108, 124, 144
    L_SC = 2 * 45056
    A("L_role_qkv:")
    A("s_mul_i32 s%d, s%d, 43\ns_lshr_b32 s%d, s%d, 10\ns_mul_i32 s%d, s%d, 24\ns_sub_u32 s%d, s%d, s%d" % (sM, sIdx, sM, sM, sT, sM, sU, sIdx, sT))
    A("s_lshl_b32 s%d, s%d, 9\ns_lshl_b32 s%d, s%d, 2\ns_add_u32 s%d, s%d, s%d" % (sBase, sU, sU, sU, sU, sU, sW))
    A("s_mul_i32 s%d, s%d, 171\ns_lshr_b32 s%d, s%d, 9\ns_mul_i32 s%d, s%d, 3\ns_sub_u32 s%d, s%d, s%d" % (sHd, sU, sHd, sHd, sT, sHd, sTh, sU, sT))
    A("v_lshlrev_b32 v%d, 4, v0" % vL16)
    vS, vA, vB = 20, [21, 22, 23, 24], 25
    A("v_lshrrev_b32 v%d, 5, v0\nv_mul_u32_u24 v%d, %d, v%d\nv_add_u32 v%d, v%d, v%d" % (vS, vS, 12288 - 512, vS, vS, vS, vL16))
    tr16(A, vB, 512)
    for t in range(4):
        p, i = t >> 1, t & 1
        A("s_cmp_eq_u32 s%d, %d\ns_cselect_b32 s%d, s%d, 0\ns_cmp_eq_u32 s%d, 2\ns_cselect_b32 s%d, 3, 4\ns_cselect_b32 s%d, %d, %d" % (sTh, 2 - 2 * p, sT, sM, sT, sT, sT2, 32 * i, 8 * i))
        A("v_lshlrev_b32 v%d, s%d, v%d\nv_add3_u32 v%d, v%d, s%d, v%d" % (vA[t], sT, vT0, vA[t], vA[t], sT2, vB))
        A("s_lshl_b32 s%d, s%d, 7\ns_add_u32 s%d, s%d, %d\nv_add_u32 v%d, s%d, v%d" % (sT, sW, sT, sT, 64 * p, vA[t], sT, vA[t]))
    A("s_cmp_eq_u32 s%d, 1\ns_cselect_b32 s%d, s%d, s%d\ns_cselect_b32 s%d, s%d, s%d" % (sM, sP, pWk, pWq, sP + 1, pWk + 1, pWq + 1))
    A("s_cmp_eq_u32 s%d, 2\ns_cselect_b32 s%d, s%d, s%d\ns_cselect_b32 s%d, s%d, s%d" % (sM, sP, pWv, sP, sP + 1, pWv + 1, sP + 1))
    W = wreg(80)
    for d in range(4): A("v_mov_b32 v%d, 0x3f803f80" % (XR_ + d))
    def reads(u, b):
        for t in range(4):
            A("v_add_u32 v%d, %d, v%d" % (26 + t, b, vA[t]))
            for rd in range(2): A("ds_read_b64_tr_b16 %s, v%d offset:%d" % (R(W[4 * u + t] + 2 * rd, 2), 26 + t, 4 * rd * 512))
    load_w(A, sP, 640 * 6144 * 2, sBase, vS, 2, 12288, 4, 20, 9, reads, sMir if opt.get('helpers') and opt.get('qrev', 0) else None,
           lambda first, u: [A(mf16(CS + 4 * t, W[4 * u + t], XR_, None if first else CS + 4 * t) + '\n' + mf16(SV + 4 * t, XR_, W[4 * u + t], None if first else SV + 4 * t)) for t in range(4)])
    common_init(A, 11, 5); x16(A)
    A("v_add_u32 v%d, %d, v%d" % (vXr2, TILE, vSt2))
    for l in lin(sC0, QKV, [(sHd, QKV_HEAD), (sM, 12288), (sTh, 4096)]) + lin(sC1, FQ, [(sIdx, FW)]): A(l)
    src = (XS, [('L', 2 * 64 * XT), ('S', XT)]); two_streams(A, 2 * 5 * FW)
    outs = lin(sO[0], 0, [(sC0, 1), (sLc, LS['q']), (sSc, QKV_SEG)], sT2) + lin(sPF, 0, [(sC1, 1), (sLc, 72 * FW)], sT2)
    stats = [(False, lambda Q, p=p: Q.op('st', "ds_read_b128 %s, v%d offset:%d" % (v(SX + 4 * p, 4), vXr2, 256 * p))) for p in range(5)]
    stats += [10, (True, lambda Q: Q.wait('st'))] + row_stats(SX, 4)
    lead = opt.get('lead_q', 16); fpos = opt.get('fq', (54, 'B', 'R', -8)); n1 = opt.get('n1q', 7)
    A("s_cmp_eq_u32 s%d, 2\ns_cbranch_scc1 L_qkv_v" % sM)
    wait_ready(A, vT0, opt, True); nearby(A, opt, lambda k, l: ('s', (30 if l < 32 else 35) + min(l & 31, 4)))
    def epi_t(acc, fast):
        L = []
        for p in range(2):
            for m in range(2):
                d = PK_ + 4 * (2 * p + m)
                for i in range(2):
                    a, c = acc(m, 2 * p + i), CS + 4 * (2 * p + i)
                    if fast:
                        L += ["v_pk_fma_f32 %s, %s, %s, %s op_sel_hi:[1,0,1]" % (v(a + r, 2), v(c + r, 2), v(SX + 2 * m, 2), v(a + r, 2)) for r in (0, 2)]
                        L += ["v_pk_mul_f32 %s, %s, %s op_sel:[0,1] op_sel_hi:[1,1]" % (v(a + r, 2), v(a + r, 2), v(SX + 2 * m, 2)) for r in (0, 2)]
                    else:
                        L += ["v_fmac_f32 v%d, v%d, v%d" % (a + r, SX + 2 * m, c + r) for r in range(4)]
                        L += ["v_mul_f32 v%d, v%d, v%d" % (a + r, a + r, SX + 2 * m + 1) for r in range(4)]
                    L += [cvt(d + 2 * i, a, a + 1), cvt(d + 2 * i + 1, a + 2, a + 3)]
                L.append(st(4, d, vSt, sO[0], 2048 * p + 256 * m))
        return L
    stream(A, opt, 'qk', 20, 4, W, 'T', 11, n1, lead, src, FX, outs, epi_t, XR_, AC, 4, 3, 2, fpos, late=(60, stats), local=False, skip=opt.get('helpers'))
    A("L_qkv_v:")
    A("v_and_b32 v%d, 3, v0\nv_lshrrev_b32 v%d, 4, v0\nv_lshl_add_u32 v%d, v%d, 2, v%d\nv_lshlrev_b32 v%d, 4, v%d\nv_add_u32 v%d, %d, v%d" % (vXr2, vT0, vXr2, vT0, vXr2, vXr2, vXr2, vXr2, TILE, vXr2))
    wait_ready(A, vT0, opt, True); nearby(A, opt, lambda k, l: ('s', (30 if l < 32 else 35) + min(l & 31, 4)))
    qb = lambda b: "quad_perm:[%d,%d,%d,%d] row_mask:0xf bank_mask:0xf" % (b, b, b, b)
    def epi_n(acc, fast):
        L = []
        for t in range(4):
            for m in range(2):
                a = acc(m, t)
                L += ["v_fmac_f32_dpp v%d, v%d, v%d %s" % (a + b, SX + 2 * m, SV + 4 * t, qb(b)) for b in range(4)]
                L += ["v_mul_f32_dpp v%d, v%d, v%d %s" % (a + b, SX + 2 * m + 1, a + b, qb(b)) for b in range(4)]
                L += [cvt(PK_ + 4 * t + 2 * m, a, a + 1), cvt(PK_ + 4 * t + 2 * m + 1, a + 2, a + 3)]
            L.append(st(4, PK_ + 4 * t, vL16, sO[0], 1024 * t))
        return L
    stream(A, opt, 'v', 20, 4, W, 'N', 11, n1, lead, src, FX, outs, epi_n, XR_, AC, 4, 3, 2, fpos, late=(60, stats), local=False, skip=opt.get('helpers'))

def wo_src(A, sK0, sNs, vS, sBase):
    A("v_lshlrev_b32 v%d, 4, v0" % vL16)
    A("v_lshrrev_b32 v%d, 4, v0\nv_mul_u32_u24 v%d, %d, v%d\nv_add_u32 v%d, v%d, v%d" % (vS, vS, 1280 - 256, vS, vS, vS, vL16))
    for l in lin(sBase, 0, [(sK0, 1280), (sNs, 256)]): A(l)
def o_flags(A, sK0, K):
    A("s_mul_i32 s%d, s%d, 683\ns_lshr_b32 s%d, s%d, 17\ns_lshl_b32 s%d, s%d, 1" % (sT, sK0, sT, sT, sT, sT))
    A("s_add_u32 s%d, s%d, %d\ns_mul_i32 s%d, s%d, 683\ns_lshr_b32 s%d, s%d, 17\ns_lshl_b32 s%d, s%d, 1\ns_add_u32 s%d, s%d, 1" % (sT2, sK0, K - 64, sT2, sT2, sT2, sT2, sT2, sT2, sT2, sT2))
    A("v_and_b32 v%d, 31, v0\nv_add_u32 v%d, s%d, v%d\nv_min_u32 v%d, s%d, v%d\nv_lshlrev_b32 v%d, 8, v%d" % (vFl, vFl, sT, vFl, vFl, sT2, vFl, vFl, vFl))
def leaf_role(A, opt, sIdx):
    sNs, sKs, sK0, sBase = sE, sE + 1, sE + 2, sE + 4
    XR_, AC, PK_ = 12, 44, 76
    nk = KLEAF // 32; ndma = KLEAF // 64
    A("L_role_leaf:")
    hold(A, opt)
    A("s_mul_i32 s%d, s%d, 52\ns_lshr_b32 s%d, s%d, 8\ns_mul_i32 s%d, s%d, 5\ns_sub_u32 s%d, s%d, s%d\ns_mul_i32 s%d, s%d, %d" % (sKs, sIdx, sKs, sKs, sT, sKs, sNs, sIdx, sT, sK0, sKs, KLEAF))
    vS, vA = 20, 21
    wo_src(A, sK0, sNs, vS, sBase); tr16(A, vA, 256)
    A("v_lshl_add_u32 v%d, v%d, 4, v%d\ns_lshl_b32 s%d, s%d, 6\nv_add_u32 v%d, s%d, v%d" % (vA, vT0, vA, sT, sW, vA, sT, vA))
    W = wreg(2 * nk)
    def reads(u, b):
        A("v_add_u32 v22, %d, v%d" % (b, vA))
        for kk in range(2):
            for t in range(2):
                for rd in range(2): A("ds_read_b64_tr_b16 %s, v22 offset:%d" % (R(W[(2 * u + kk) * 2 + t] + 2 * rd, 2), (32 * kk + 4 * rd) * 256 + 8 * t))
    load_w(A, pWo, 640 * 6144 * 2, sBase, vS, 4, 1280, 4, ndma, 9, reads)
    common_init(A, ndma, 1); o_flags(A, sK0, KLEAF); x16(A)
    A("v_add_u32 v%d, 0x10000, v%d" % (vXr2, vXr))
    for l in lin(sC0, PP, [(sKs, TILE), (sNs, 8192), (sW, 2048)]) + lin(sC1, FP, [(sNs, 5 * FW), (sKs, FW)]): A(l)
    wait_ready(A, vT0, opt)
    src = (OO, [('L', LS['o']), ('S', O_SEG), (sK0, 64)]); two_streams(A, 64 * FW)
    outs = lin(sO[0], 0, [(sC0, 1), (sLc, LS['p']), (sSc, 5 * TILE)], sT2) + lin(sPF, 0, [(sC1, 1), (sLc, 25 * FW)], sT2)
    def epi(acc, fast):
        L = []
        for m in range(2):
            for i in range(2): L += [cvt(PK_ + 4 * m + 2 * i, acc(m, i), acc(m, i) + 1), cvt(PK_ + 4 * m + 2 * i + 1, acc(m, i) + 2, acc(m, i) + 3)]
            L.append(st(4, PK_ + 4 * m, vSt, sO[0], 256 * m))
        return L
    stream(A, opt, 'leaf', nk, 2, W, 'T', ndma, opt.get('n1l', 9), opt.get('lead_o', 11), src, FO, outs, epi, XR_, AC, 8, 5, 3, opt.get('fl', (None, 'B', 'R', -13)))

ID, PL, RS = EX, EX + 8, EX + 48
vSw, vSr, vS8, vFp = EX + 64, EX + 65, EX + 66, EX + 67
sRes, sPp, sPr, sFpb = sE + 8, sE + 9, sE + 10, sE + 12
L_RS = 98304
def halves(A, op, t0, t1):
    A("v_mov_b32 v%d, v%d\nv_permlane32_swap_b32 v%d, v%d\n%s v%d, v%d, v%d" % (t1, t0, t0, t1, op, t0, t0, t1))
def rn_init(A):
    ident(A, ID, 0); ident(A, ID + 4, 1)
    A("s_lshl_b32 s%d, s%d, 9\ns_add_u32 s%d, s%d, %d\nv_add_u32 v%d, s%d, v%d" % (sT, sW, sT, sT, L_RS, vSw, sT, vL8))
    A("v_bfe_u32 v%d, v0, 1, 4\nv_and_b32 v%d, 1, v0\nv_lshl_add_u32 v%d, v%d, 4, v%d\nv_lshlrev_b32 v%d, 3, v%d\nv_add_u32 v%d, %d, v%d" % (vSr, vT0, vSr, vT0, vSr, vSr, vSr, vSr, L_RS, vSr))
    A("v_mov_b32 v%d, 0x%x\ns_cmp_eq_u32 s%d, 0\ns_cselect_b32 s%d, 32, 0\nv_cmp_gt_u32 vcc, s%d, v0\nv_cndmask_b32 v%d, v%d, v%d, vcc" % (vT0, OOBS, sW, sT, sT, vS8, vT0, vL8))
def row_sums(A):
    X = RS; a, b = PK + 10, PK + 11
    A("s_mov_b32 s%d, 0x3f803f80" % sT)
    for i in range(8):
        A("v_dot2_f32_bf16 v%d, v%d, s%d, %s\nv_dot2_f32_bf16 v%d, v%d, v%d, %s" % (a, PK + i, sT, "v%d" % a if i else "0", b, PK + i, PK + i, "v%d" % b if i else "0"))
    A("s_nop 2")
    A("ds_write_b64 v%d, %s\ns_waitcnt lgkmcnt(0)\ns_barrier" % (vSw, v(a, 2)))
    for i in range(4): A("ds_read2_b64 %s, v%d offset0:%d offset1:%d" % (v(X + 4 * i, 4), vSr, 64 * i, 64 * i + 32))
    A("s_waitcnt lgkmcnt(0)")
    for i in range(1, 8): A("v_pk_add_f32 %s, %s, %s" % (v(PK + 8 if i == 7 else X, 2), v(X, 2), v(X + 2 * i, 2)))

def root_role(A, opt, sIdx):
    sNs, sK0, sCol, sBase = sE, sE + 2, sE + 3, sE + 4
    nk = KROOT // 16; ndma = KROOT // 64
    A("L_role_root:")
    hold(A, opt)
    A("s_cmp_ge_u32 s%d, 5\ns_cselect_b32 s%d, 1, 0\ns_mul_i32 s%d, s%d, 5\ns_sub_u32 s%d, s%d, s%d\ns_mov_b32 s%d, %d" % (sIdx, sLn, sT, sLn, sNs, sIdx, sT, sK0, 5 * KLEAF))
    vS, vA = EX, EX + 1
    wo_src(A, sK0, sNs, vS, sBase); tr_addr(A, vA, 256, TAB_T)
    A("s_lshl_b32 s%d, s%d, 6\nv_add_u32 v%d, s%d, v%d" % (sT, sW, vA, sT, vA))
    W = wreg(nk)
    def reads(u, b):
        A("v_add_u32 v%d, %d, v%d" % (EX + 3, b, vA))
        for kk in range(4):
            for rd in range(2): A("ds_read_b64_tr_b16 %s, v%d offset:%d" % (R(W[4 * u + kk] + 2 * rd, 2), EX + 3, (16 * kk + 4 * rd) * 256))
    load_w(A, pWo, 640 * 6144 * 2, sBase, vS, 4, 1280, 4, ndma, 9, reads)
    common_init(A, ndma, 1); o_flags(A, sK0, KROOT); rn_init(A)
    for l in lin(sCol, 0, [(sNs, 4), (sW, 1)]) + lin(sC0, XS, [(sLn, 2 * 64 * XT), (sCol, 2048)]) + lin(sC1, XS + 64 * XT + TILE, [(sLn, 2 * 64 * XT), (sNs, 256)]): A(l)
    for l in lin(sFpb, FP, [(sLn, 25 * FW), (sNs, 5 * FW)]): A(l)
    A("s_mul_i32 s%d, s%d, %d\nv_add_u32 v%d, s%d, v%d" % (sT, sLn, 64 * FW, vFl, sT, vFl))
    A("v_and_b32 v%d, 31, v0\nv_min_u32 v%d, 4, v%d\nv_lshlrev_b32 v%d, 8, v%d\ns_sub_u32 s%d, s%d, %d\nv_add_u32 v%d, s%d, v%d" % (vT0, vT0, vT0, vT0, vT0, sT, sFpb, FO, vT0, sT, vT0))
    A("v_lshrrev_b32 v%d, 5, v0\nv_cmp_eq_u32 vcc, s%d, v%d\nv_cndmask_b32 v%d, v%d, v%d, vcc\ns_not_b64 %s, vcc" % (vT1, sLn, vT1, vFl, vT0, vFl, s(sPr, 2)))
    wait_ready(A, vT0, opt, True); nearby(A, opt, lambda k, l: ('s', leaf_index(opt, min(l & 31, 4), k % 5)) if l >> 5 != k // 5 else None, (sIdx, {k: WHERE[('s', 25 + k)] >> 5 for k in range(10)}))
    src = (OO + 5 * KLEAF * 64, [('L', LS['o']), ('S', O_SEG)])
    outs = ["s_add_u32 s%d, s%d, %d" % (sO[0], sRes, 64 * XT)] + lin(sO[1], 0, [(sC1, 1), (sSc, XT)], sT2) + lin(sPF, FX + 5 * FW, [(sLc, 10 * FW), (sNs, FW)], sT2)
    pl = lambda r: [ld(4, PL + 4 * k, vL16, r, 1024 * (k & 1)) + ("\ns_add_u32 s%d, s%d, %d" % (r, r, TILE) if k & 1 else "") for k in range(10)]
    extra = lambda: ["\n".join(lin(sRes, 0, [(sC0, 1), (sSc, XT)], sT2)), ld(4, RS, vL16, sRes), ld(4, RS + 4, vL16, sRes, 1024),
                     "\n".join(lin(sPp, PP, [(sLc, LS['p']), (sSc, 5 * TILE), (sCol, 2048)], sT2))]
    def tail(A, Z, fl, n):
        again, chk, go = A.lab('fpagain'), A.lab('fpchk'), A.lab('fpgo')
        A("s_waitcnt vmcnt(%d)\n" % n('L') + mf(ACC, ID, RS, ACC) + "\n" + mf(ACC, ID + 4, RS + 4, ACC))
        assert n('F') == 0
        A(chk + ":\n" + fl.see(0) + "v_cmp_ge_i32 vcc, s%d, v%d\ns_and_b64 vcc, vcc, %s\ns_cbranch_vccnz %s\n%s:" % (sSc, vF, s(sPr, 2), again, go))
        Z.append(again + ":\n" + fl.fload + "\ns_add_u32 s%d, s%d, 1\ns_cmp_lt_u32 s%d, %d\ns_cbranch_scc1 %s\ns_branch %s" % (sBu2, sBu2, sBu2, BUDGET, chk, go))
        gstamp(A, opt, 3)
        for l in pl(sPp) + [fl.fload]: A(l)
        for k in range(10): A("s_waitcnt vmcnt(%d)\n" % (10 - k) + mf(ACC, ID + 4 * (k & 1), PL + 4 * k, ACC))
        gstamp(A, opt, 4)
        for i in range(8): A(cvt(PK + i, ACC + 2 * i, ACC + 2 * i + 1))
        for i in range(2): A(st(4, PK + 4 * i, vL16, sO[0], 1024 * i))
        row_sums(A)
    skeleton(A, opt, 'root', nk, 1, W, ndma, opt.get('n1r', 5), None, src, FO, outs, [st(2, PK + 8, vS8, sO[1])], tail, opt.get('fr', (None, 0, 24, 30)), extra=extra, pre=2)

def bo_role(A, opt, sIdx):
    sBase, sCol = sE + 4, sE + 3
    vS, vA, vB = EX, EX + 1, EX + 2
    A("L_role_bo:")
    hold(A, opt)
    A("v_lshlrev_b32 v%d, 4, v0" % vL16)
    A("v_lshrrev_b32 v%d, 4, v0\nv_mul_u32_u24 v%d, %d, v%d\nv_add_u32 v%d, v%d, v%d" % (vS, vS, 1280 - 256, vS, vS, vS, vL16))
    tr_addr(A, vA, 256, TAB_T); tr_addr(A, vB, 256, TAB_T, hi_rows=40)
    A("s_lshl_b32 s%d, s%d, 6\nv_add_u32 v%d, s%d, v%d\nv_add_u32 v%d, s%d, v%d\ns_lshl_b32 s%d, s%d, 8" % (sT, sW, vA, sT, vA, vB, sT, vB, sBase, sIdx))
    W = wreg(40)
    def reads(u, b):
        A("v_add_u32 v%d, %d, v%d\nv_add_u32 v%d, %d, v%d" % (EX + 3, b, vA, EX + 4, b, vB))
        for rd in range(2):
            for kk in range(4): A("ds_read_b64_tr_b16 %s, v%d offset:%d" % (R(W[4 * u + kk] + 2 * rd, 2), EX + 3, (20 * kk + 4 * rd) * 256))
            A("ds_read_b64_tr_b16 %s, v%d offset:%d" % (R(W[32 + u] + 2 * rd, 2), EX + 4, (20 * rd + 16) * 256))
    load_w(A, pBo, 640 * 640 * 2, sBase, vS, 4, 1280, 5, 8, 7, reads)
    common_init(A, 10, 8); rn_init(A)
    A("v_and_b32 v%d, 31, v0\nv_mul_u32_u24 v%d, 1280, v%d\nv_lshrrev_b32 v%d, 5, v0\nv_lshl_add_u32 v%d, v%d, 4, v%d" % (vSt2, vSt2, vSt2, vT0, vSt2, vT0, vSt2))
    A("v_and_b32 v%d, 0xf8, v%d\nv_lshrrev_b32 v%d, 5, v0\nv_lshl_add_u32 v%d, v%d, 9, v%d\nv_add_u32 v%d, 0x8000, v%d" % (vXr2, vL8, vT0, vXr2, vT0, vXr2, vXr2, vXr2))
    for l in lin(sCol, 0, [(sIdx, 4), (sW, 1)]): A(l)
    temp_srd(A, pOut, S * D * 2)
    wait_ready(A, vT0, opt, True); nearby(A, opt, lambda k, l: ('b', 8 * (l >> 5) + min(l & 31, 7)))
    def xread(k, d):
        if k < 32: return ["ds_read_b128 %s, v%d offset:%d" % (v(d, 4), vXr, k * 1024)]
        return ["ds_read_b64 %s, v%d offset:%d" % (v(d + 2 * h, 2), vXr2, (k - 32) * 1024 + 256 * h) for h in range(2)]
    src = (OB, [('L', 64 * TILE), ('S', TILE)]); two_streams(A, 8 * FW)
    outs = ["s_add_u32 s%d, s%d, %d" % (sO[0], sRes, 64 * XT)] + lin(sO[1], XS + 2 * 64 * XT + TILE, [(sIdx, 256), (sSc, XT)], sT2)
    outs += lin(sO[2], 0, [(sCol, 64), (sSc, TILE)], sT2) + lin(sPF, FX + 10 * FW, [(sIdx, FW)], sT2)
    outs += ["s_cmp_eq_u32 s%d, 0\n" % sLc + "\n".join("s_cselect_b32 s%d, s%d, 0x%x" % (r, r, OOBS) for r in (sO[1], sPF))]
    extra = lambda: ["\n".join(lin(sRes, XS + 64 * XT, [(sLc, 2 * 64 * XT), (sSc, XT), (sCol, 2048)], sT2)), ld(4, RS, vL16, sRes), ld(4, RS + 4, vL16, sRes, 1024)]
    def tail(A, Z, fl, n):
        A("s_waitcnt vmcnt(%d)\n" % n('L') + mf(ACC, ID, RS, ACC) + "\n" + mf(ACC, ID + 4, RS + 4, ACC))
        for i in range(8): A(cvt(PK + i, ACC + 2 * i, ACC + 2 * i + 1))
        l1, l2 = A.lab('bofin'), A.lab('bojoin')
        A("s_cmp_lg_u32 s%d, 0\ns_cbranch_scc1 %s" % (sLc, l1))
        for i in range(2): A(st(4, PK + 4 * i, vL16, sO[0], 1024 * i))
        row_sums(A)
        A(l2 + ":")
        Z.append(l1 + ":\n" + "\n".join(st(4, PK + 4 * i, vSt2, sO[2], 32 * i, TS, '') for i in range(2)) + "\ns_branch " + l2)
    skeleton(A, opt, 'bo', 40, 1, W, 10, opt.get('n1o', 5), opt.get('lead_b', 11), src, FB, outs, [st(2, PK + 8, vS8, sO[1])], tail, opt.get('fo', (None, 0, 26, 27)), xread=xread, extra=extra, pre=2)

def bq_role(A, opt, sIdx):
    sG, sBase, sHd, sCs = sE, sE + 4, sE + 1, sE + 2
    A("L_role_bq:")
    hold(A, opt)
    A("s_lshr_b32 s%d, s%d, 3\ns_and_b32 s%d, s%d, 7\ns_mul_i32 s%d, s%d, 160\ns_lshl_b32 s%d, s%d, 2\ns_add_u32 s%d, s%d, s%d" % (sLn, sIdx, sG, sIdx, sBase, sG, sHd, sG, sHd, sHd, sW))
    A("v_lshlrev_b32 v%d, 4, v0" % vL16)
    vS, vA = EX, [EX + 1, EX + 2]
    A("v_and_b32 v%d, 31, v0\nv_mul_u32_u24 v%d, 26, v%d\nv_lshrrev_b32 v%d, 8, v%d\nv_mul_u32_u24 v%d, %d, v%d\nv_lshl_add_u32 v%d, v%d, 4, v%d" % (vT0, vT1, vT0, vT1, vT1, vS, 1280 - 160, vT1, vS, vT0, vS))
    A("v_lshrrev_b32 v%d, 5, v0\nv_mul_u32_u24 v%d, 3840, v%d\nv_add_u32 v%d, v%d, v%d" % (vT1, vT1, vT1, vS, vS, vT1))
    A("v_mov_b32 v%d, 0x%x\nv_cmp_gt_u32 vcc, 30, v%d\nv_cndmask_b32 v%d, v%d, v%d, vcc" % (vT1, OOBS, vT0, vS, vT1, vS))
    tabs = [[0, 1, 2, 3, 20, 21, 22, 23], [40, 42, 41, 43, 4, 44, 24, 60]]
    for t in range(2):
        tr_addr(A, vA[t], 512, tabs[t])
        A("s_mul_i32 s%d, s%d, 40\nv_mov_b32 v%d, s%d" % (sT, sW, vT0, sT))
        if t == 1: A("v_and_b32 v%d, 19, v0\nv_cmp_ne_u32 vcc, 19, v%d\nv_cndmask_b32 v%d, 0, v%d, vcc" % (vT1, vT1, vT0, vT0))
        A("v_add_u32 v%d, v%d, v%d" % (vA[t], vA[t], vT0))
    W = wreg(80)
    def reads(u, b):
        for t in range(2):
            A("v_add_u32 v%d, %d, v%d" % (EX + 3 + t, b, vA[t]))
            for kk in range(2):
                for rd in range(2): A("ds_read_b64_tr_b16 %s, v%d offset:%d" % (R(W[(2 * u + kk) * 2 + t] + 2 * rd, 2), EX + 3 + t, (16 * kk + 4 * rd) * 512))
    load_w(A, pBq, 640 * 1920 * 2, sBase, vS, 2, 3840, 4, 20, 9, reads)
    common_init(A, 11, 5)
    MR, KP, VP, MC, I1, I2, vSel, G, CS, VT, PE = 28, 74, 80, 84, 108, 112, 114, 116, 132, 172, 20
    VQ, SX = XF, VT
    PE = [20, 24, 164]
    for d in range(4): A("v_mov_b32 v%d, 0x3f803f80" % (XF + d))
    for k in range(40):
        for t in range(2): A(mf(CS + 16 * t, W[2 * k + t], XF, CS + 16 * t if k else None))
    A("v_and_b32 v%d, 0xf0, v%d\nv_bfe_u32 v%d, v0, 4, 1\nv_lshl_add_u32 v%d, v%d, 3, v%d\nv_add_u32 v%d, %d, v%d" % (vXr2, vL16, vT0, vXr2, vT0, vXr2, vXr2, TILE, vXr2))
    ident(A, I1, 0)
    A("v_and_b32 v%d, 1, v0\nv_lshlrev_b32 v%d, 4, v%d\nv_mov_b32 v%d, 0x3f80\nv_lshlrev_b32 v%d, v%d, v%d\nv_lshrrev_b32 v%d, 1, v0" % (vT0, vT0, vT0, vT1, vT1, vT0, vT1, vT0))
    for d in range(2): A("v_cmp_eq_u32 vcc, %d, v%d\nv_cndmask_b32 v%d, 0, v%d, vcc" % (24 + d, vT0, I2 + d, vT1))
    A("v_and_b32 v%d, 31, v0\nv_lshrrev_b32 v%d, 5, v0\nv_lshlrev_b32 v%d, 2, v%d\nv_sub_u32 v%d, v%d, v%d\nv_mov_b32 v%d, 0xff800000" % (vT0, vT1, vT1, vT1, vT0, vT0, vT1, G))
    for r in range(24):
        key = 8 * (r >> 2) + (r & 3) if r < 16 else 8 * ((r - 8) >> 2) + (r & 3) - 32
        A("v_subrev_u32 v%d, %d, v%d\nv_and_b32 v%d, 0xfffffff1, v%d\nv_cmp_ne_u32 vcc, 0, v%d\nv_cndmask_b32 v%d, 0, v%d, vcc" % (vT1, key, vT0, vT1, vT1, vT1, MC + r if r < 16 else MR + r - 16, G))
    for r in range(8): A("v_mov_b32 v%d, 0xff800000" % (MC + 16 + r))
    for r in range(10): A("v_mov_b32 v%d, 0" % (KP + r))
    A("v_and_b32 v%d, 1, v0\nv_cmp_eq_u32 vcc, 0, v%d" % (vT0, vT0))
    for d, (ev, od) in enumerate(((0x0c0c0100, 0x01000c0c), (0x0c0c0302, 0x03020c0c))):
        A("v_mov_b32 v%d, 0x%x\nv_mov_b32 v%d, 0x%x\nv_cndmask_b32 v%d, v%d, v%d, vcc" % (vT0, ev, vT1, od, vSel + d, vT1, vT0))
    A("v_mov_b32 v%d, 0x%x\nv_cmp_gt_u32 vcc, 32, v0\nv_cndmask_b32 v%d, v%d, v%d, vcc" % (vT0, OOBS, vSt, vT0, vL8))
    A("s_mov_b32 s%d, 0x%x" % (sCs, f32(20 ** -0.5 * math.log2(math.e))))
    A("s_mul_i32 s%d, s%d, %d\nv_add_u32 v%d, s%d, v%d" % (sT, sLn, 2 * 5 * FW, vFl, sT, vFl))
    wait_ready(A, vT0, opt, True); nearby(A, opt, lambda k, l: ('s', 25 + 5 * (k >> 3) + min(l & 31, 4)), (sIdx, {k: WHERE[('b', k)] >> 5 for k in range(16)}))
    src = (XS + 64 * XT, [('L', 2 * 64 * XT), ('S', XT)])
    outs = lin(sO[0], OB, [(sLc, 64 * TILE), (sSc, TILE)], sT2) + lin(sO[1], 32768, [(sO[0], 1), (sHd, 256)], sT2)
    outs += ["s_lshl_b32 s%d, s%d, 10\ns_add_u32 s%d, s%d, s%d" % (sT2, sHd, sO[0], sO[0], sT2)] + lin(sPF, FB, [(sLc, 8 * FW), (sG, FW)], sT2)
    stats = [(lambda Q, p=p: Q.op('st', "ds_read_b64 %s, v%d offset:%d" % (v(SX + 2 * p, 2), vXr2, 256 * p))) for p in range(5)]
    stats += ["s_nop 0"] * 3 + [lambda Q: Q.wait('st') or "s_nop 0"] + row_stats(SX, 2)
    def tail(A, Z, fl, n):
        Q1, K1, V1, Q2, K2 = G, G + 4, G + 8, G + 12, G + 14
        Sc, Sp = ACC, ACC + 16
        for i in range(16):
            a = ACC + 2 * i
            A("v_pk_fma_f32 %s, %s, %s, %s op_sel_hi:[1,0,1]" % (v(a, 2), v(CS + 2 * i, 2), v(SX, 2), v(a, 2)))
            A("v_pk_mul_f32 %s, %s, %s op_sel:[0,1] op_sel_hi:[1,1]\n" % (v(a, 2), v(a, 2), v(SX, 2)) + cvt(G + i, a, a + 1))
        A(mf(Sc, K1, Q1, MC) + "\n" + mf(Sp, KP, Q1, MC + 8) + "\n" + mf(VT, V1, I1))
        A(mf8(Sc, K2, Q2, Sc) + "\n" + mf8(Sp, KP + 4, Q2, Sp))
        for i in range(4): A("v_mov_b32 v%d, v%d" % (KP + i, K1 + i))
        A(mf8(VT, Q2, I2, VT))
        for i in range(2): A("v_mov_b32 v%d, v%d" % (KP + 4 + i, K2 + i))
        E = G
        for i in range(8): A("v_max_f32 v%d, v%d, v%d" % (E + i, Sc + 2 * i, Sc + 2 * i + 1))
        for i in range(4): A("v_max_f32 v%d, v%d, v%d" % (E + 8 + i, Sp + 8 + 2 * i, Sp + 9 + 2 * i))
        A("v_max3_f32 v%d, v%d, v%d, v%d" % (vT0, E, E + 1, E + 2))
        for i in range(3, 11, 2): A("v_max3_f32 v%d, v%d, v%d, v%d" % (vT0, vT0, E + i, E + i + 1))
        A("v_max_f32 v%d, v%d, v%d" % (vT0, vT0, E + 11))
        halves(A, "v_max_f32", vT0, vT1)
        A("v_mul_f32 v%d, s%d, v%d" % (vT0, sCs, vT0))
        for i in range(12): A("v_fma_f32 v%d, v%d, s%d, -v%d" % (E + i, E + i, sCs, vT0))
        for i in range(12): A("v_exp_f32 v%d, v%d" % (E + i, E + i))
        for i in range(8): A(cvt(VQ + i, VT + 2 * i, VT + 2 * i + 1))
        for i in range(6):
            A(cvt(vT0, E + 2 * i, E + 2 * i + 1) + "\nv_perm_b32 v%d, v%d, v%d, v%d\nv_perm_b32 v%d, v%d, v%d, v%d" % (PE[i >> 1] + 2 * (i & 1), vT0, vT0, vSel, PE[i >> 1] + 2 * (i & 1) + 1, vT0, vT0, vSel + 1))
        O = ACC
        sm = ["v_add_f32 v%d, v%d, v%d" % (vT0, E, E + 1)] + ["v_add_f32 v%d, v%d, v%d" % (vT0, vT0, E + i) for i in range(2, 12)]
        for l in interleave([mf(O, VQ, PE[0]), mf(O, VQ + 4, PE[1], O), mf(O, VP, PE[2], O)], sm, per=5): A(l)
        halves(A, "v_add_f32", vT0, vT1)
        A("v_rcp_f32 v%d, v%d" % (vT0, vT0))
        for i in range(4): A("v_mov_b32 v%d, v%d" % (VP + i, VQ + 4 + i))
        for r in range(8): A("v_mov_b32 v%d, v%d" % (MC + 16 + r, MR + r))
        for i in range(6):
            A("v_mul_f32 v%d, v%d, v%d\nv_mul_f32 v%d, v%d, v%d\n" % (O + 2 * i, O + 2 * i, vT0, O + 2 * i + 1, O + 2 * i + 1, vT0) + cvt(PK + i, O + 2 * i, O + 2 * i + 1))
    skeleton(A, opt, 'bq', 40, 2, W, 11, opt.get('n1b', 4), None, src, FX + 5 * FW, outs, [st(4, PK, vL16, sO[0]), st(2, PK + 4, vSt, sO[1])], tail, opt.get('fb', (26, 52, 28, 79)), late=(34, stats))

def ln0_role(A, opt, sIdx):
    sS, sA, sB, sF = sE, sE + 1, sE + 2, sE + 3
    vA, vB, vP, vK, D0, X, P = 12, 13, 14, 15, [16, 56], 96, 100
    A("L_role_ln0:")
    A("v_and_b32 v%d, 7, v0\nv_lshrrev_b32 v%d, 3, v0\nv_mul_u32_u24 v%d, 1280, v%d\nv_lshl_add_u32 v%d, v%d, 4, v%d" % (vT0, vT1, vA, vT0, vA, vT1, vA))
    A("v_lshlrev_b32 v%d, 4, v%d\nv_lshl_add_u32 v%d, v%d, 9, v%d" % (vB, vT0, vB, vT1, vB))
    A("v_and_b32 v%d, 15, v0\nv_lshlrev_b32 v%d, 4, v%d\nv_bfe_u32 v%d, v0, 4, 1\nv_lshl_add_u32 v%d, v%d, 3, v%d" % (vP, vP, vP, vT0, vP, vT0, vP))
    A("s_lshl_b32 s%d, s%d, 8\nv_mov_b32 v%d, s%d\nv_mov_b32 v%d, 1024\nv_cmp_gt_u32 vcc, 32, v0\nv_cndmask_b32 v%d, v%d, v%d, vcc\nv_add_u32 v%d, v%d, v%d" % (sT, sW, vT0, sT, vK, vT0, vK, vT0, vP, vP, vT0))
    A("v_cmp_eq_u32 s[96:97], s%d, v%d" % (sW, vT1))
    A("s_sub_u32 s%d, s%d, 5" % (sS, sIdx))
    for l in lin(sF, FX, [(sS, FW)]): A(l)
    A("s_cmp_eq_u32 s%d, 0\ns_cselect_b32 s%d, s%d, 0x%x" % (sW, sF, sF, OOBS))
    temp_srd(A, pX, S * D * 2)
    loads = lambda d: lin(sA, 0, [(sS, TILE), (sW, 8 * 1280)]) + [ld(4, d + 4 * i, vA, sA, 128 * i, TS, '') for i in range(10)]
    A("s_mov_b64 exec, 1\nv_mov_b32 v%d, -1\nbuffer_store_dword v%d, off, %s, s%d sc1\nbuffer_store_dword v%d, off, %s, s%d offset:%d sc1\ns_mov_b64 exec, -1" % (vT1, vT1, WS, sF, vT1, WS, sF, LOC))
    for l in loads(D0[0]): A(l)
    signal_ready(A, vT0)
    A("L_ln0_top:")
    for h in range(2):
        d = D0[h]
        for l in lin(sB, XS, [(sS, XT), (sW, 128)]): A(l)
        for i in range(10): A(st(4, d + 4 * i, vB, sB) + "\ns_add_u32 s%d, s%d, 4096" % (sB, sB))
        A("s_add_u32 s%d, s%d, 5" % (sS, sS))
        for l in loads(D0[1 - h]): A(l)
        for i in range(40):
            A("v_lshlrev_b32 v%d, 16, v%d\nv_and_b32 v%d, 0xffff0000, v%d" % (X, d + i, X + 1, d + i))
            if i == 0: A("v_pk_mul_f32 %s, %s, %s\nv_mov_b32 v%d, v%d\nv_mov_b32 v%d, v%d" % (v(P + 2, 2), v(X, 2), v(X, 2), P, X, P + 1, X + 1))
            else: A("v_pk_add_f32 %s, %s, %s\nv_pk_fma_f32 %s, %s, %s, %s" % (v(P, 2), v(P, 2), v(X, 2), v(P + 2, 2), v(X, 2), v(X, 2), v(P + 2, 2)))
        A("v_add_f32 v%d, v%d, v%d\nv_add_f32 v%d, v%d, v%d" % (P, P, P + 1, P + 1, P + 2, P + 3))
        for t in (P, P + 1):
            A("v_add_f32_dpp v%d, v%d, v%d row_ror:8 row_mask:0xf bank_mask:0xf" % (t, t, t))
            A("v_mov_b32 v%d, v%d\nv_permlane16_swap_b32 v%d, v%d\nv_add_f32 v%d, v%d, v%d" % (vT1, t, t, vT1, t, t, vT1))
            halves(A, "v_add_f32", t, vT1)
            A("v_cndmask_b32 v%d, 0, v%d, s[96:97]" % (t, t))
        A("s_lshl_b32 s%d, s%d, 7\ns_sub_u32 s%d, s%d, s%d\n" % (sT, sW, sB, sB, sT) + st(2, P, vP, sB))
        A("s_waitcnt vmcnt(0)\ns_barrier\ns_mov_b64 exec, 1\nv_mov_b32 v%d, s%d\nbuffer_store_dword v%d, off, %s, s%d sc1\nbuffer_store_dword v%d, off, %s, s%d offset:%d\ns_mov_b64 exec, -1" % (vT1, sS, vT1, WS, sF, vT1, WS, sF, LOC))
        if opt.get('lstamp'): A("s_memrealtime s[98:99]\ns_sub_u32 m0, s%d, 5\ns_waitcnt lgkmcnt(0)\nv_writelane_b32 v11, s98, m0" % sS)
        A("s_cmp_ge_u32 s%d, 64\ns_cbranch_scc1 L_ln0_done" % sS)
    A("s_branch L_ln0_top\nL_ln0_done:")
    if opt.get('lstamp'):
        A("v_lshlrev_b32 v%d, 4, v0" % vL16); ldump(A, vT0, vL16, 11, None, 262144)
    A("s_branch L_role_root")
```

```python
S, D, H, E, SEG, NSEG, M = 2048, 640, 32, 192, 32, 64, 8
TILE = 40960
HA_W = 2560
LOC = 128
FW = 256
FX = 0
SYNC0 = 5 * FW
FQ = FX + 4 * 5 * FW
FO = FQ + 3 * 72 * FW
FP = FO + 2 * 64 * FW
FB = FP + 2 * 25 * FW
HA = -(-(FB + 2 * 8 * FW) // 4096) * 4096
HA_LAYER = 64 * 4 * HA_W
HB = HA + 2 * HA_LAYER
HB_X = 40 * 4096
HL = HB + 2 * 2 * HB_X
HC = HL + 4 * 10240
HC_L = 2 * 10240
HC_STEP = 2 * HC_L
HC_FILL = 4
SYNC_END = HC + HC_FILL * HC_STEP
HC_COPY = 0
NFILL = 35
SYNC_PER_WG = -(-SYNC_END // (NFILL * 4096)) * 4096
SYNC_SIZE = -(-(HC + 76 * HC_STEP) // 4096) * 4096
assert SYNC_SIZE >= SYNC_PER_WG * NFILL + 4096
XT = 45056
XS = SYNC_SIZE
QKV = XS + 4 * 64 * XT
QKV_HEAD = 3 * 12288
QKV_SEG = 32 * QKV_HEAD
OO = QKV + 2 * 64 * QKV_SEG
O_SEG = 768 * 512
PP = OO + 2 * 64 * O_SEG
OB = PP + 2 * 64 * 5 * TILE
DBGW = OB + 2 * 64 * TILE
WS_END = DBGW + (1 << 20)
WS_SIZE = 268435456
assert WS_END <= WS_SIZE, WS_END
PB = [0, 64, 96, 160]
SB = [32, 48, 128, 144]
KLEAF, KROOT = 1088, 704
if __name__ == '__main__':
    print(SYNC_END, SYNC_PER_WG, SYNC_SIZE, WS_END)
```

```python
from common import *

L_M, L_O, L_SPM, L_SPT, L_WV = 0, 5120, 11264, 12544, 40960
SPM_W = SPT_W = 5632
L_OT = 15104
L_P = 33792
SLOT = 24576
vIdx, vL16, vL8 = 1, 2, 3
vSelS, vSelR, vOne, vSelT = 4, 8, 12, 18
vZ, vZ1, vHC, vMw, vMw3, vHBq, vHBs, vHCs, vQ32, vQ16, vOw4, vOw2, vSt16, vSm4, vSt8, vL4, vWv, vT0, vT1, vT2 = range(22, 42)
vSm16 = vSt16
vFlag0 = 127
vFlag = vHCs
KX, VX, QX = 42, 54, 66
MF, AQ, AV, WSG = 72, 92, 116, 128
WO_V0 = 152
SEQ = [(m, i, t) for i in range(3) for m in 'qk' for t in range(5)] + [('v', i, t) for i in range(3) for t in range(5)]
WREG = {}; WLDS = {}
def place(LPOS):
    WREG.clear(); WLDS.clear()
    for k, o in enumerate([o for p, o in enumerate(SEQ) if p not in LPOS] + [('o', i, t) for i in range(5) for t in range(3)]):
        WREG[o] = 256 + 8 * k if k < 32 else WO_V0 + 8 * (k - 32)
    for k, p in enumerate(LPOS): WLDS[SEQ[p]] = k
sL, sX, sJ, sH, sStep = 42, 43, 44, 45, 46
sHAo, sHAp, sTag, sHBq, sHBs, sHBr, sJo = 47, 48, 49, 50, 51, 52, 53
sLw, sHCl, sHCx = 54, 56, 57
sK32, sK16, sQ32, sQ16, sVp, sVs, sFQ, sO32, sO16, sFO, sRed = 58, 59, 60, 61, 62, 63, 64, 65, 66, 67, 68
sC, sNeg, sT, sT2, sPBc, sSBc, sOb, sTS = 69, 70, 71, 72, 73, 74, 76, 78
sMask = 80
sLive, sHLr0, sHLr2 = 75, 79, 77
sEv = 98
sQm = 100

def smf(d, a, b): return "v_smfmac_f32_16x16x64_bf16 %s, %s, %s, v%d" % (v(d, 4), v(a, 4), R(b, 8), vIdx)
def mf32(d, a, b, c=None): return "v_mfma_f32_16x16x32_bf16 %s, %s, %s, %s" % (v(d, 4), v(a, 4), v(b, 4), "0" if c is None else v(c, 4))
def mf16(d, a, b, c=None): return "v_mfma_f32_16x16x16_bf16 %s, %s, %s, %s" % (v(d, 4), v(a, 2), v(b, 2), "0" if c is None else v(c, 4))
def cvt(d, a, b): return "v_cvt_pk_bf16_f32 v%d, v%d, v%d" % (d, a, b)
def ld(n, d, va, so, off=0, fl='sc1'):
    return "buffer_load_dword%s %s, v%d, %s, s%d offen offset:%d %s" % ({1: '', 2: 'x2', 4: 'x4'}[n], v(d, n), va, WS, so, off, fl)
def st(n, d, va, so, off=0, fl=''):
    return "buffer_store_dword%s %s, v%d, %s, s%d offen offset:%d %s" % ({1: '', 2: 'x2', 4: 'x4'}[n], v(d, n), va, WS, so, off, fl)

def load_weights(A, opt):
    load_setup(A, opt)
    if opt.get('rev'):
        A("s_cmp_eq_u32 s%d, 1\ns_cbranch_scc1 L_rec_ldrev" % sL)
        load_units(A, opt, 0); A("s_branch L_rec_ldone\nL_rec_ldrev:"); load_units(A, opt, 1); A("L_rec_ldone:")
    else: load_units(A, opt, 0)
vA = [140, 141, 142]; vB = [143, 144, 145, 146, 147]; vTP, vTS, vTO, va, vb = 148, 149, 150, 151, 139
sA, sB, sM6, sM5 = 80, 81, 82, 83
def load_setup(A, opt):
    for i in range(3):
        A("v_add_u32 v%d, %d, v%d" % (va, 1024 * i, vL16)); udiv(A, vb, va, 384, sT)
        A("v_mul_u32_u24 v%d, %d, v%d\nv_add_u32 v%d, v%d, v%d" % (vA[i], 12288 - 384, vb, vA[i], vA[i], va))
    for i in range(5):
        A("v_add_u32 v%d, %d, v%d" % (va, 1024 * i, vL16)); udiv(A, vb, va, 640, sT)
        A("v_mul_u32_u24 v%d, %d, v%d\nv_add_u32 v%d, v%d, v%d" % (vB[i], 640, vb, vB[i], vB[i], va))
    A("v_lshrrev_b32 v%d, 5, v0\nv_lshlrev_b32 v%d, 4, v%d" % (va, va, va))
    A("v_bfe_u32 v%d, v0, 4, 1\nv_lshl_add_u32 v%d, v%d, 2, v%d" % (vb, va, vb, va))
    A("v_bfe_u32 v%d, v0, 2, 1\nv_add_u32 v%d, v%d, v%d" % (vb, va, va, vb))
    A("v_bfe_u32 v%d, v0, 3, 1\nv_lshl_add_u32 v%d, v%d, 3, v%d" % (vb, va, vb, va))
    A("v_and_b32 v%d, 3, v0" % vb)
    A("v_mul_u32_u24 v%d, 384, v%d\nv_mul_u32_u24 v%d, 640, v%d" % (vTP, va, vTO, va))
    A("v_lshl_add_u32 v%d, v%d, 3, v%d\nv_lshl_add_u32 v%d, v%d, 4, v%d\nv_lshl_add_u32 v%d, v%d, 3, v%d" % (vTS, vb, vTP, vTP, vb, vTP, vTO, vb, vTO))
    A("s_lshl_b32 s%d, s%d, 4\nv_add_u32 v%d, s%d, v%d" % (sT, sPBc, vTP, sT, vTP))
    A("s_lshl_b32 s%d, s%d, 4\nv_add_u32 v%d, s%d, v%d" % (sT, sSBc, vTS, sT, vTS))
    A("s_mul_i32 s%d, s%d, 160\nv_add_u32 v%d, s%d, v%d" % (sT, sW, vTO, sT, vTO))
    A("s_mul_i32 s%d, s%d, %d\ns_mul_i32 s%d, s%d, 384\ns_add_u32 s%d, s%d, s%d" % (sA, sJ, 320 * 12288, sT, sH, sA, sA, sT))
    A("s_mul_i32 s%d, s%d, %d\ns_add_u32 s%d, s%d, s%d" % (sT, sW, 16 * 12288, sA, sA, sT))
    A("s_mul_i32 s%d, s%d, %d\ns_mul_i32 s%d, s%d, 640\ns_add_u32 s%d, s%d, s%d" % (sB, sH, 192 * 1280, sT, sJo, sB, sB, sT))
    A("s_mul_i32 s%d, s%d, %d\ns_add_u32 s%d, s%d, s%d" % (sT, sW, 8 * 1280, sB, sB, sT))
    A("s_mul_i32 s%d, s%d, 6144\ns_mul_i32 s%d, s%d, 5120" % (sM6, sW, sM5, sW))
def load_units(A, opt, rev):
    units = [('q', t) for t in range(5)] + [('k', t) for t in range(5)] + [('o', t) for t in range(6)] + [('v', t) for t in range(5)]
    if opt.get('uorder'): units = [units[i] for i in opt['uorder']]
    if rev: units = units[::-1]
    ptr = {'q': pWq, 'k': pWk, 'v': pWv, 'o': pWo}
    VT = 8
    cur = [None]
    def issue(u):
        m, t = units[u]; slot = u % 6
        if cur[0] != m: temp_srd(A, ptr[m], 640 * 6144 * 2); cur[0] = m
        n = 5 if m == 'o' else 6
        for i in range(n):
            if m == 'o': so, vo = 32 * t * 1280, vB[i]
            else: so, vo = (64 * t + 8 * (i // 3)) * 12288, vA[i % 3]
            A("s_add_u32 m0, s%d, %d\ns_add_u32 s%d, s%d, %d" % (sM5 if m == 'o' else sM6, slot * SLOT + 1024 * i, sT, sB if m == 'o' else sA, so))
            A("buffer_load_dwordx4 v%d, %s, s%d offen %s lds" % (vo, TS, sT, opt.get('wfl', '')))
        return n
    cnt = [issue(u) for u in range(5)]
    for u, (m, t) in enumerate(units):
        A("s_waitcnt vmcnt(%d) lgkmcnt(0)\ns_barrier" % sum(cnt[u + 1:]))
        if u + 5 < len(units): cnt.append(issue(u + 5))
        if u == len(units) - 2: peek_ready(A, 128)
        if u == len(units) - 1: peek_take(A, 128)
        base = (u % 6) * SLOT
        if m == 'o':
            A("v_add_u32 v%d, %d, v%d" % (va, base, vTO))
            for i in range(5):
                for rd in range(2):
                    A("ds_read_b64_tr_b16 %s, v%d offset:%d" % (R(WREG[('o', i, t // 2)] + 4 * (t & 1) + 2 * rd, 2), va, 2 * rd * 640 + 32 * i))
        else:
            A("v_add_u32 v%d, %d, v%d\nv_add_u32 v%d, %d, v%d" % (va, base, vTP, vb, base, vTS))
            for i in range(3):
                d = VT + WLDS[(m, i, t)] * 8 if (m, i, t) in WLDS else WREG[(m, i, t)]
                for hf in range(2):
                    for rd in range(2):
                        A("ds_read_b64_tr_b16 %s, v%d offset:%d" % (R(d + 4 * hf + 2 * rd, 2), vb if i == 2 else va, (32 * hf + 2 * rd) * 384 + (8 if i == 1 else 0)))
    A("s_waitcnt lgkmcnt(0)\ns_barrier")
    A("s_mul_i32 s%d, s%d, 30720\ns_add_u32 s%d, s%d, %d\nv_add_u32 v%d, s%d, v%d" % (sT, sW, sT, sT, L_WV, va, sT, vL16))
    for k in range(30): A("ds_write_b128 v%d, %s offset:%d" % (va, v(VT + 4 * k, 4), k * 1024))
    A("s_waitcnt lgkmcnt(0)")

def consts(A, opt):
    n, g, t, u, g0, g1, n16, n7, nh, rw = range(128, 138)
    def fld(d, src, lo, w): A("v_bfe_u32 v%d, v%d, %d, %d" % (d, src, lo, w))
    def mad(d, a, sh, b): A("v_lshl_add_u32 v%d, v%d, %d, v%d" % (d, a, sh, b))
    def sadd(d, expr_s): A("v_add_u32 v%d, s%d, v%d" % (d, expr_s, d))
    fld(n, 0, 0, 4); fld(g, 0, 4, 2); fld(g0, 0, 4, 1); fld(g1, 0, 5, 1); fld(nh, 0, 3, 1)
    A("v_lshlrev_b32 v%d, 4, v%d\nv_and_b32 v%d, 0x70, v%d" % (n16, n, n7, n16))
    fld(t, 0, 1, 1)
    A("v_mov_b32 v%d, 0x4444\nv_mov_b32 v%d, 0xeeee\nv_cmp_eq_u32 vcc, 0, v%d\nv_cndmask_b32 v%d, v%d, v%d, vcc" % (vT0, vT1, t, vIdx, vT1, vT0))
    A("v_and_b32 v%d, 1, v%d\nv_lshlrev_b32 v%d, 4, v%d\nv_mov_b32 v%d, 0x3f80\nv_lshlrev_b32 v%d, v%d, v%d" % (t, n, t, t, u, u, t, u))
    fld(t, n, 1, 2)
    for d in range(4): A("v_cmp_eq_u32 vcc, %d, v%d\nv_cndmask_b32 v%d, 0, v%d, vcc" % (d, t, vSelR + d, u))
    A("v_cmp_eq_u32 vcc, v%d, v%d" % (nh, g0))
    for d in range(4): A("v_cndmask_b32 v%d, 0, v%d, vcc" % (vSelS + d, vSelR + d))
    fld(vT0, n, 2, 2); fld(vT1, n, 1, 1)
    A("v_cmp_eq_u32 vcc, v%d, v%d\nv_cndmask_b32 v%d, 0, v%d, vcc" % (vT0, g, u, u))
    for d in range(2): A("v_cmp_eq_u32 vcc, %d, v%d\nv_cndmask_b32 v%d, 0, v%d, vcc" % (1 - d, vT1, vSelT + d, u))
    A("v_mov_b32 v%d, v%d\nv_mov_b32 v%d, v%d" % (vSelT + 2, vSelT, vSelT + 3, vSelT + 1))
    A("s_mov_b32 s%d, 0xcccccccc\ns_mov_b32 s%d, 0xcccccccc" % (sQm, sQm + 1))
    for d in range(5): A("v_mov_b32 v%d, 0x3f803f80" % (vOne + d))
    A("v_mov_b32 v%d, 0\nv_mov_b32 v%d, 0\nv_mov_b32 v%d, 0" % (vOne + 5, vZ, vZ1))
    mad(vHCs, g0, 3, n16); mad(vHBq, g, 12, n16)
    A("v_and_b32 v%d, 0x30, v%d\nv_and_b32 v%d, 12, v%d\nv_add_u32 v%d, v%d, v%d" % (vHBs, n16, vT2, n, vHBs, vHBs, vT2)); mad(vHBs, g, 6, vHBs)
    mad(vQ32, g, 9, n16); mad(vQ16, g1, 9, vHCs)
    mad(vHC, g0, 8, n16)
    A("v_lshlrev_b32 v%d, 3, v%d" % (u, g0)); mad(u, g1, 5, u)
    A("v_and_b32 v%d, 16, v%d\nv_lshlrev_b32 v%d, 3, v%d" % (t, n16, vHCs, t)); fld(rw, n, 1, 3); mad(vHCs, rw, 4, vHCs); mad(vHCs, g, 8, vHCs)
    mad(t, g0, 3, t); fld(rw, n, 2, 1); mad(t, rw, 5, t); fld(rw, n, 1, 1); mad(rw, g1, 1, rw)
    mad(vMw, rw, 8, t); mad(vMw, nh, 6, vMw)
    A("s_lshr_b32 s%d, s%d, 1\ns_mul_i32 s%d, s%d, 1280\ns_and_b32 s%d, s%d, 1\ns_lshl_b32 s%d, s%d, 7\ns_add_u32 s%d, s%d, s%d" % (sT, sW, sT, sT, sT2, sW, sT2, sT2, sT, sT, sT2)); sadd(vMw, sT)
    A("v_mul_u32_u24 v%d, 1280, v%d\nv_and_b32 v%d, 16, v%d\nv_add_u32 v%d, v%d, v%d" % (vMw3, nh, t, n16, vMw3, vMw3, t))
    fld(t, n, 2, 1); mad(vMw3, t, 7, vMw3); mad(vMw3, g0, 6, vMw3); mad(vMw3, g1, 5, vMw3); fld(t, n, 1, 1); mad(vMw3, t, 3, vMw3)
    A("s_mul_i32 s%d, s%d, 20\ns_add_u32 s%d, s%d, 1024" % (sT, sT2, sT, sT)); sadd(vMw3, sT)
    A("v_xor_b32 v%d, 1, v%d\nv_mul_u32_u24 v%d, 3072, v%d\nv_and_b32 v%d, 0xd0, v%d\nv_add_u32 v%d, v%d, v%d" % (t, vT1, t, t, rw, n16, t, t, rw))
    A("v_add_u32 v%d, v%d, v%d\ns_lshl_b32 s%d, s%d, 7\ns_add_u32 s%d, s%d, %d" % (vOw2, t, u, sT, sSBc, sT, sT, L_O)); sadd(vOw2, sT)
    mad(vOw4, g0, 5, t); mad(vOw4, g1, 8, vOw4)
    A("s_lshl_b32 s%d, s%d, 7\ns_add_u32 s%d, s%d, %d" % (sT, sPBc, sT, sT, L_O)); sadd(vOw4, sT)
    A("v_lshlrev_b32 v%d, 2, v0" % vL4)
    A("s_mul_i32 s%d, s%d, %d\nv_add_u32 v%d, s%d, v%d\nv_add_u32 v%d, s%d, v%d" % (sT, sW, SPM_W, vSm16, sT, vL16, vSm4, sT, vL4))
    A("s_mul_i32 s%d, s%d, %d\nv_add_u32 v%d, s%d, v%d\nv_add_u32 v%d, s%d, v%d" % (sT, sW, SPT_W, vSt16, sT, vL16, vSt8, sT, vL8))
    A("s_mul_i32 s%d, s%d, 30720\ns_add_u32 s%d, s%d, %d\nv_add_u32 v%d, s%d, v%d" % (sT, sW, sT, sT, L_WV, vWv, sT, vL16))
    A("v_min_u32 v%d, 8, v%d\nv_mul_u32_u24 v%d, 86, v%d\nv_lshrrev_b32 v%d, 8, v%d\nv_mul_u32_u24 v%d, 93, v%d\ns_mul_i32 s%d, s%d, 3" % (vFlag0, n, t, vFlag0, t, t, t, t, sT, sH))
    A("v_add3_u32 v%d, v%d, v%d, s%d\nv_lshrrev_b32 v%d, 2, v%d\nv_lshlrev_b32 v%d, 8, v%d" % (vFlag0, vFlag0, t, sT, vFlag0, vFlag0, vFlag0, vFlag0))
    if opt.get('split', 0):
        l = A.lab('nosel')
        A("s_and_b32 s%d, s%d, 1\ns_lshl_b32 s%d, s%d, 3\nv_and_b32 v%d, 7, v%d\nv_add_u32 v%d, s%d, v%d" % (sT, sW, sT, sT, n, n, n, sT, n))
        A("s_cmp_lt_u32 s%d, 2\ns_cbranch_scc1 %s" % (sW, l))
        mad(t, g, 4, n)
        A("v_lshlrev_b32 v%d, 4, v%d" % (vSelR, t)); mad(vSelR + 2, nh, 3, vSelR); mad(vSelR, nh, 10, vSelR)
        A("v_lshrrev_b32 v%d, 1, v%d\nv_lshrrev_b32 v%d, 2, v%d" % (vSelR + 1, vSelR + 2, vSelR + 3, vSelR + 2))
        A(l + ":")
        A("v_lshlrev_b32 v%d, 2, v%d" % (t, g)); mad(t, nh, 4, t)
    else: A("v_lshlrev_b32 v%d, 2, v%d" % (t, g))
    A("s_lshl_b32 s%d, s%d, 4\nv_add_u32 v%d, s%d, v%d\nv_sub_u32 v%d, v%d, v%d" % (sT, sJ, n, sT, n, n, n, t))
    for T in range(2):
        for b in range(4): A("v_cmp_le_i32 %s, %d, v%d" % (s(sMask + 2 * (4 * T + b), 2), 16 * T + b, n))
    import math, struct
    c = struct.unpack('<I', struct.pack('<f', 192 ** -0.5 * math.log2(math.e)))[0]
    A("s_mov_b32 s%d, 0x%x\ns_mov_b32 s%d, 0xff800000" % (sC, c, sNeg))

def pkadd(d, a, b): return "v_pk_add_f32 %s, %s, %s" % (v(d, 2), v(a, 2), v(b, 2))
def tagit(d): return "v_bfi_b32 v%d, 1, s%d, v%d" % (d, sTag, d)
def tagcheck(rl, t, fixed0=False, one='1'):
    rl = list(rl); L = []
    if fixed0:
        L.append("v_or3_b32 v%d, v%d, v%d, v%d" % (t, rl[0], rl[1], rl[2])); rl = rl[3:]
        while len(rl) > 1: L.append("v_or3_b32 v%d, v%d, v%d, v%d" % (t, t, rl[0], rl[1])); rl = rl[2:]
        if rl: L.append("v_or_b32 v%d, v%d, v%d" % (t, t, rl[0]))
    elif len(rl) == 1: L.append("v_xor_b32 v%d, s%d, v%d" % (t, sTag, rl[0]))
    else:
        L.append("v_bitop3_b32 v%d, v%d, v%d, s%d bitop3:0x7e" % (t, rl[0], rl[1], sTag))
        for r in rl[2:]: L.append("v_bitop3_b32 v%d, v%d, v%d, s%d bitop3:0xf6" % (t, t, r, sTag))
    return L + ["v_and_b32 v%d, %s, v%d" % (t, one, t), "v_cmp_ne_u32 vcc, 0, v%d" % t]
def xgroup(A, op, t0, t1):
    A("v_permlane32_swap_b32 v%d, v%d\n%s v%d, v%d, v%d\nv_mov_b32 v%d, v%d" % (t0, t1, op, t0, t0, t1, t1, t0))
    A("v_permlane16_swap_b32 v%d, v%d\n%s v%d, v%d, v%d" % (t0, t1, op, t0, t0, t1))

def stamp(A, opt, k, flush=False):
    if opt.get('stamp') and (opt['stamp'] == 1 or k in opt['stamp'] or flush):
        A("%s s[96:97]\ns_waitcnt lgkmcnt(0)\nv_writelane_b32 v0, s96, %d" % ('s_memrealtime' if opt.get('rt') else 's_memtime', k))
        if flush:
            if opt['stamp'] != 1: A("v_writelane_b32 v0, s55, 14")
            A("v_writelane_b32 v0, s%d, 15\ns_mov_b64 exec, 0xffff" % sBud)
            A("buffer_store_dword v0, v%d, %s, s%d offen\ns_mov_b64 exec, -1" % (vL4, WS, sTS))

def add(d, a, b): return "v_add_f32 v%d, v%d, v%d" % (d, a, b)
def zero16(d): return "v_mfma_f32_32x32x8_bf16 %s, %s, %s, 0" % (v(d, 16), v(vZ, 2), v(vZ, 2))
def step_loop(A, opt, fl, tag):
    Z = []
    top, done = "L_rec_top" + tag, "L_rec_done" + tag
    XO = [AQ + 8 * i for i in range(3)]
    Z32, Z16, P, PM, LD = AQ + 4, AQ + 12, AQ, AQ + 14, AV + 8
    Sp = OD = [AQ + 8, AQ + 16, AQ + 20]
    VM = [AV, AV + 4, AV + 2]
    OT = WSG + 16
    vTg = vT2
    kq_loads = [ld(4, KX, vQ32, sK32), ld(4, KX + 4, vQ32, sK32, 256), ld(2, KX + 8, vQ16, sK16), ld(2, KX + 10, vQ16, sK16, 256),
                ld(4, QX, vQ32, sQ32), ld(2, QX + 4, vQ16, sQ16)]
    q_loads = kq_loads[4:]
    if opt.get('qlate', 1): kq_loads = kq_loads[:4] + ['', '']
    v_loads = [ld(4, VX, vL16, sVp), ld(4, VX + 4, vL16, sVp, 1024), ld(4, VX + 8, vL16, sVs)]
    o_stores = ["v_permlane16_swap_b32 v%d, v%d\nv_permlane16_swap_b32 v%d, v%d" % (OT + 4, OT + 6, OT + 5, OT + 7), st(4, OT, vQ32, sO32, 0, opt.get('ofl', 'sc1')),
                "s_mov_b32 exec_lo, 0xffff\ns_mov_b32 exec_hi, 0xffff\n" + st(4, OT + 4, vQ16, sO16, 0, opt.get('ofl', 'sc1')) + "\ns_mov_b64 exec, -1"]
    oflag = "s_mov_b64 exec, 1\nv_mov_b32 v%d, s%d\nbuffer_store_dword v%d, off, %s, s%d sc1\ns_mov_b64 exec, -1" % (vT1, sStep, vT1, WS, sFO)
    lane0 = not (opt.get('stamp') or opt.get('lstamp'))
    if lane0: oflag = "v_mov_b32 v%d, s%d\n" % (vT1, sStep) + st(1, vT1, 0, sFO, 0, 'sc1')
    adv = lambda rs, k: ["s_add_u32 s%d, s%d, %d" % (r, r, k) for r in rs]
    zero = [zero16(AQ), zero16(AQ + 16), mf16(AQ + 32, vZ, vZ)]
    tokmm = [mf32(Sp[0], KX, QX), mf32(Sp[1], KX + 4, QX), mf32(Sp[2], Z32, QX), mf16(Sp[0], KX + 8, QX + 4, Sp[0]), mf16(Sp[1], KX + 10, QX + 4, Sp[1]), mf16(Sp[2], Z16, QX + 4, Sp[2])]
    tokwr = ["ds_write_b128 v%d, %s offset:%d" % (vSt16, v(Sp[i], 4), L_SPT + 1024 * i) for i in range(2)] + ["ds_write_b64 v%d, %s offset:%d" % (vSt8, v(Sp[2], 2), L_SPT + 2048)]
    def wrd(k):
        d = WSG + 8 * (k % 3)
        return [(k, "ds_read_b128 %s, v%d offset:%d" % (v(d + 4 * h, 4), vWv, k * 2048 + 1024 * h)) for h in range(2)]
    npre = opt.get('npre', 3)
    pf = Poll(A, Z, 'fq' + tag, [ld(1, vT2, vFlag, sFQ)], sleep=4)
    pf0 = Poll(A, Z, 'fq0' + tag, [ld(1, vT0, vFlag0, sFQ)], sleep=4)
    temp_srd(A, pMem, 8 * 640 * 2)
    A("v_bfe_u32 v%d, v0, 2, 2\nv_and_b32 v%d, 1, v0\nv_lshl_add_u32 v%d, v%d, 1, v%d\nv_mul_u32_u24 v%d, 1280, v%d" % (vT0, vT1, vT0, vT0, vT1, vT0, vT0))
    A("v_bfe_u32 v%d, v0, 1, 1\nv_lshl_add_u32 v%d, v%d, 4, v%d\nv_lshrrev_b32 v%d, 4, v0\nv_lshl_add_u32 v%d, v%d, 5, v%d" % (vT1, vT0, vT1, vT0, vT1, vT0, vT1, vT0))
    A("s_mul_i32 s%d, s%d, 640" % (sT, sJ))
    for t in range(5): A("buffer_load_dwordx4 %s, v%d, %s, s%d offen offset:%d" % (v(MF + 4 * t, 4), vT0, TS, sT, 128 * t))
    pf0.issue(); pf0.start(0); A("v_cmp_ge_i32 vcc, 0, v%d" % vT0); pf0.branch()
    for l in kq_loads + v_loads + adv((sK32, sK16, sVp, sVs) + (() if opt.get('qlate', 1) else (sQ32, sQ16)), QKV_SEG): A(l)
    A("s_cmp_eq_u32 s%d, 2\ns_cselect_b32 s%d, s%d, 0x%x\ns_cselect_b64 vcc, -1, 0\nv_cndmask_b32 v%d, v%d, v%d, vcc" % (sW, sFQ, sFQ, OOBS, vFlag, vFlag, vFlag0))
    for l in zero: A(l)
    for k in range(npre):
        for _, l in wrd(k): A(l)
    if lane0: A("v_lshlrev_b32 v0, 24, v0\nv_min_u32 v0, 0x1000000, v0\nv_lshlrev_b32 v0, 4, v0")
    A("s_waitcnt lgkmcnt(0)\ns_nop 15")
    A(top + ":")
    stamp(A, opt, 0)
    if opt.get('lstamp'): A("s_memtime s[96:97]" if opt.get('lcyc') else "s_memrealtime s[96:97]")
    Q = Lgkm()
    for t in range(5): Q.op(('m', t), '')
    pend = []
    for k in range(npre, 3): pend += wrd(k)
    def epi(b, d): return [add(b, b, b + 2), add(b + 1, b + 1, b + 3), cvt(d, b, b + 1)]
    hl = lambda D: [ld(2, D[i], vL8, sHAp, 512 * i) for i in range(3)]
    fill = {}
    def put(p, L):
        for l in L:
            while p in fill: p += 1
            fill[p] = l
    for j in range(5): put(5 * j + 6, epi(AQ + 4 * j, XO[j >> 1] + (j & 1)) + [st(2, XO[j >> 1], vL8, sHAo, 512 * (j >> 1), fl) if j & 1 else tagit(XO[j >> 1])])
    put(36, epi(AV, AV) + ["v_mov_b32 v%d, s%d" % (AV + 3, sTag)])
    put(41, epi(AV + 4, AV + 1))
    def need(p):
        m, i, t = SEQ[p]; w = Q.wait(('m', t))
        if (m, i, t) in WLDS:
            k = WLDS[(m, i, t)]; assert all(x[0] != k for x in pend), p
            w += Q.wait(k)
        return w
    A(need(0))
    for p, (m, i, t) in enumerate(SEQ):
        acc = AV + 4 * i if m == 'v' else AQ + 8 * i + (4 if m == 'k' else 0)
        if (m, i, t) in WLDS:
            k = WLDS[(m, i, t)]; b = WSG + 8 * (k % 3)
            if k + 3 < 15: pend += wrd(k + 3)
        else: b = WREG[(m, i, t)]
        A(smf(acc, MF + 4 * t, b))
        if p + 1 < len(SEQ): A(need(p + 1))
        if p == 31:
            for l in epi(AQ + 20, XO[2] + 1) + [st(2, XO[2], vL8, sHAo, 1024, fl)]: A(l)
            stamp(A, opt, 1)
        for _ in range(1 if p < 31 else 2):
            if pend and (p not in fill or p >= 31 or p in opt.get('dbl', (9, 21, 29))):
                k, l = pend.pop(0); A(Q.op(k, l))
        if p in fill: A(fill[p])
        if p in (34, 35, opt.get('ha_at', 40)): A(hl([x + 2 for x in XO])[min(p - 34, 2)])
    X2, X3 = [QX + 2 * i for i in range(3)], [WSG + 16 + 2 * i for i in range(3)]
    ve = epi(AV + 8, AV + 2) + [st(4, AV, vL16, sHAo, 1536, fl)]
    for l in (hl(X2) + ve if opt.get('x2first', 0) else ve + hl(X2)): A(l)
    stamp(A, opt, 2)
    ZD = WSG
    budget = "s_add_u32 s%d, s%d, 1\ns_cmp_lt_u32 s%d, %d\ns_cselect_b32 s%d, 1, 0" % (sBud, sBud, sBud, BUDGET, sLive)
    live = "s%d" % sLive
    zcv = [cvt(Z32 + r, ZD + 2 * r, ZD + 2 * r + 1) for r in range(4)] + [cvt(Z16 + r, ZD + 8 + 2 * r, ZD + 9 + 2 * r) for r in range(2)]
    chk = tagcheck([x + 2 for x in XO], vT0)
    A("s_waitcnt vmcnt(5)\n" + mf32(ZD, XO[0], vSelT) + "\n" + chk[0] + "\n" + mf32(ZD + 4, XO[1], vSelT) + "\ns_waitcnt vmcnt(4)\n" + chk[1] + "\n" + chk[2])
    A(mf32(ZD + 8, XO[2], vSelT) + "\n" + chk[3])
    for l in zcv: A(l)
    miss, got = A.lab('hamiss'), A.lab('hagot')
    A("s_cbranch_vccnz %s\n%s:" % (miss, got))
    B = Asm(); B(miss + ":")
    def tsum(D, one):
        for i in range(3): B(mf16(ZD + 4 * i, XO[i], vSelT))
        B("s_waitcnt vmcnt(3)")
        for l in interleave([mf16(ZD + 4 * i, D[i], vSelT, ZD + 4 * i) for i in range(3)], tagcheck(D, vT0, one=one), per=2) + zcv: B(l)
    for l in hl(X3): B(l)
    B(budget); tsum(X2, live); B("s_cbranch_vccz " + got)
    for l in hl(X2): B(l)
    tsum(X3, '1'); B("s_cbranch_vccnz %s\ns_branch %s" % (miss, got))
    Z.extend(B.L)
    stamp(A, opt, 3)
    pv = Poll(A, Z, 'hv' + tag, [ld(4, AV + 4, vL16, sHAp, 1536)])
    short = opt.get('short', 1); last, tok = A.lab('last'), A.lab('tok')
    if short:
        B = Asm(); B.uid = A.uid + 2000
        pw = Poll(B, Z, 'hw' + tag, pv.loads)
        B(last + ":")
        for l in q_loads + pw.loads: B(l)
        B("s_barrier\n" + oflag + "\ns_mov_b32 s%d, 0" % sRed)
        pw.start(1)
        for l in tagcheck([AV + 7], vT0): B(l)
        pw.branch()
        B("v_swap_b32 v%d, v%d\nv_mov_b32 v%d, v%d\nv_mov_b32 v%d, 64\ns_branch %s" % (AV + 1, AV + 4, AV + 3, AV + 6, vT2, tok))
        Z.extend(B.L)
    A(mf32(Sp[0], KX, Z32) + ("\ns_cmp_eq_u32 s%d, 63\ns_cbranch_scc1 %s\n" % (sStep, last) if short else "\n") + mf32(Sp[1], KX + 4, Z32) + "\ns_mov_b64 vcc, %s\n" % s(sQm, 2) + mf32(Sp[2], Z32, Z32))
    if opt.get('park', 1): A("v_add_u32 v%d, %d, v%d\nds_read_b128 %s, v%d offset:%d" % (vT1, L_OT + 1024, vSt8, v(LD, 4), vSt16, L_OT))
    A(mf16(Sp[0], KX + 8, Z16, Sp[0]))
    if opt.get('park', 1): A("ds_read2_b64 %s, v%d offset0:0 offset1:16" % (v(WSG + 12, 4), vT1))
    A(mf16(Sp[1], KX + 10, Z16, Sp[1]) + "\n" + mf16(Sp[2], Z16, Z16, Sp[2]))
    A(mf16(MF + 16, vZ, vZ))
    stamp(A, opt, 10)
    q23 = "quad_perm:[2,3,2,3] row_mask:0xf bank_mask:0xf"
    for b in range(4): A("v_cndmask_b32_dpp v%d, v%d, v%d, vcc %s" % (Sp[0] + b, Sp[1] + b, Sp[0] + b, q23))
    A("ds_write_b128 v%d, %s offset:%d" % (vSm16, v(Sp[0], 4), L_SPM))
    A("v_cndmask_b32_dpp v%d, v%d, v%d, vcc %s" % (Sp[2], Sp[2] + 1, Sp[2], q23))
    A("ds_write_b32 v%d, v%d offset:%d" % (vSm4, Sp[2], L_SPM + 1024))
    A(zero16(MF))
    pv.issue()
    A("s_waitcnt vmcnt(1) lgkmcnt(0)"); stamp(A, opt, 11); A("s_barrier"); stamp(A, opt, 12)
    T = WSG
    for w in range(2): A("ds_read_b128 %s, v%d offset:%d" % (v(T + 4 * w, 4), vL16, L_SPM + SPM_W * w))
    A("ds_read_b128 %s, v%d offset:%d\nds_read_b128 %s, v%d offset:%d" % (v(T + 8, 4), vL16, L_SPM + SPM_W * 2, v(T + 16, 4), vL16, L_SPM + SPM_W * 3))
    o0 = (L_SPM + 1024) // 256
    A("ds_read2st64_b32 %s, v%d offset0:%d offset1:%d\nds_read2st64_b32 %s, v%d offset0:%d offset1:%d" % (v(T + 20, 2), vL4, o0, o0 + 22, v(T + 22, 2), vL4, o0 + 44, o0 + 66))
    qlate = opt.get('qlate', 1); park = opt.get('park', 1)
    slow = [oflag] + pf.loads + (q_loads if qlate else [])
    if park:
        slow = [st(4, LD, vQ32, sO32, 0, 'sc1'), "s_mov_b64 exec, %s\n" % s(sEv, 2) + st(4, WSG + 12, vQ16, sO16, 0, 'sc1') + "\ns_mov_b64 exec, -1"] + q_loads + pf.loads
        slow = [slow[i] for i in opt.get('sord', (0, 4, 2, 1, 3))]
    nslow = [0]
    plan = list(opt.get('splan', (3, 1, 1, 0, 0, 0, 0)))
    def slow1():
        for _ in range(plan.pop(0)):
            if slow: A(slow.pop(0)); nslow[0] += 1
    slow1()
    x = 0
    A("s_waitcnt lgkmcnt(%d)\n" % (4 + x) + pkadd(T, T, T + 4) + "\n" + pkadd(T + 2, T + 2, T + 6))
    A("s_waitcnt lgkmcnt(%d)\n" % (2 + x) + pkadd(T + 8, T + 8, T + 16) + "\n" + pkadd(T + 10, T + 10, T + 18))
    A(pkadd(T, T, T + 8) + "\n" + pkadd(T + 2, T + 2, T + 10))
    A("s_waitcnt lgkmcnt(%d)\n" % x + pkadd(T + 20, T + 20, T + 22) + "\nv_max3_f32 v%d, v%d, v%d, v%d\n" % (vT0, T, T + 1, T + 2) + add(T + 4, T + 20, T + 21))
    stamp(A, opt, 4)
    qx = "quad_perm:[2,3,0,1] row_mask:0xf bank_mask:0xf"; q01 = "quad_perm:[0,1,0,1] row_mask:0xf bank_mask:0xf"
    A("v_max3_f32 v%d, v%d, v%d, v%d" % (vT0, vT0, T + 3, T + 4))
    slow1()
    A("v_max_f32_dpp v%d, v%d, v%d %s\nv_max_f32_dpp v%d, v%d, v%d %s" % (vT1, vT0, vT0, qx, vT0, vT0, vT0, qx))
    A("v_permlane32_swap_b32 v%d, v%d\nv_max_f32 v%d, v%d, v%d\nv_max_f32 v%d, v%d, v%d" % (vT0, vT1, T + 5, vT0, vT1, vT0, vT0, vT1))
    slow1()
    A("v_permlane16_swap_b32 v%d, v%d\nv_max_f32 v%d, v%d, v%d" % (vT0, T + 5, vT0, vT0, T + 5))
    A("v_mul_f32 v%d, s%d, v%d" % (vT0, sC, vT0))
    for i in range(5): A("v_fma_f32 v%d, v%d, s%d, -v%d" % (T + i, T + i, sC, vT0))
    for i in range(5): A("v_exp_f32 v%d, v%d" % (T + i, T + i))
    A(cvt(P, T, T + 1) + "\n" + cvt(P + 1, T + 2, T + 3))
    A("v_mov_b32_dpp v%d, v%d %s\nv_mov_b32_dpp v%d, v%d %s\nv_mov_b32_dpp v%d, v%d %s" % (T + 5, T + 4, q01, P + 2, P, q01, P + 3, P + 1, q01))
    A(cvt(PM, T + 4, T + 5) + "\n" + cvt(PM + 1, T + 4, T + 5))
    stamp(A, opt, 13)
    def pvmm(mem):
        mm = [mf32(LD, vOne, P)] + [mf32(OD[i], VX + 4 * i, P) for i in range(3)]
        if mem:
            pv.start(nslow[0])
            for l in interleave(mm, tagcheck([AV + 7], vT0), per=2): A(l)
            pv.branch(); A("v_swap_b32 v%d, v%d" % (AV + 1, AV + 4))
        else:
            for l in mm: A(l)
        A(mf16(LD, vOne + 4, PM, LD))
        if mem: A("v_mov_b32 v%d, v%d" % (AV + 3, AV + 6)); slow1()
        A(mf16(OD[0], VM[0], PM, OD[0]))
        if mem: slow1()
        A(mf16(OD[1], VM[1], PM, OD[1]))
        A("v_rcp_f32 v%d, v%d" % (LD, LD))
        A(mf16(OD[2], VM[2], PM, OD[2]))
    def pvnorm(mem, dst):
        for i in range(3):
            if i == 0:
                for r in range(4): A("v_mul_f32 v%d, v%d, v%d" % (OD[0] + r, OD[0] + r, LD))
            else:
                for r in (0, 2): A("v_pk_mul_f32 %s, %s, %s op_sel_hi:[1,0]" % (v(OD[i] + r, 2), v(OD[i] + r, 2), v(LD, 2)))
            for r in (0, 1): A(cvt(dst[i] + r, OD[i] + 2 * r, OD[i] + 2 * r + 1))
            if mem and i == 1: stamp(A, opt, 14)
            if mem and i == 1: A("ds_write_b128 v%d, %s" % (vOw4, v(dst[0], 4)))
            if mem and i == 2: A("ds_write_b64 v%d, %s" % (vOw2, v(dst[2], 2)))
    pvmm(True); pvnorm(True, [OD[0], OD[0] + 2, OD[2]])
    slow1(); slow1(); assert not slow
    A("s_waitcnt lgkmcnt(0)\ns_barrier")
    stamp(A, opt, 5)
    WA, AW, HQ = WSG, MF, WSG + 12
    for t in range(3): A("ds_read_b128 %s, v%d offset:%d" % (v(WA + 4 * t, 4), vL16, L_O + 1024 * t))
    mo = [(4, 0), (0, 0), (4, 1), (0, 1), (4, 2), (0, 2)] + [(i, t) for i in (1, 2, 3) for t in range(3)]
    mm = [("s_waitcnt lgkmcnt(%d)\n" % (2 - t) if i == 4 else "") + smf(AW + 4 * i, WA + 4 * t, WREG[('o', i, t)]) for i, t in mo]
    F = epi(AW + 16, HQ + 4) + [tagit(HQ + 4), st(1, HQ + 4, vHBs, sHBs, 0, fl)] + epi(AW, HQ) + [tagit(HQ)]
    for l in interleave(mm, F, start=6): A(l)
    for l in epi(AW + 4, HQ + 1) + epi(AW + 8, HQ + 2) + epi(AW + 12, HQ + 3) + [st(4, HQ, vHBq, sHBq, 0, fl)]: A(l)
    stamp(A, opt, 6)
    budget = "s_add_u32 s%d, s%d, 1\ns_cmp_lt_u32 s%d, %d\ns_cselect_b32 s%d, 1, 0" % (sBud, sBud, sBud, BUDGET, sLive)
    live = "s%d" % sLive
    RD, DR = WSG, WSG + 16
    nored, join, soft, join2 = A.lab('nored'), A.lab('join'), A.lab('soft'), A.lab('join2')
    if qlate: A("s_waitcnt vmcnt(2)")
    A(tok + ":")
    for l in tokmm: A(l)
    A("s_cmp_lg_u32 s%d, 1\ns_cbranch_scc1 %s" % (sRed, nored))
    rl = lambda d: [ld(4, d + 4 * t, vHCs, sHBr, 1024 * t) for t in range(4)]
    pub, red2 = A.lab('pub'), A.lab('red2')
    split = opt.get('split', 0)
    share = ["s_waitcnt lgkmcnt(0)\ns_barrier"] if split else []
    def redloop(B, per):
        def check(d):
            chk = tagcheck(range(d, d + 16, 4 // per), vT0, one=live)
            B("s_waitcnt vmcnt(6)\n" + mf32(DR, vSelR, d) + "\n" + mf32(DR, vSelR, d + 4, DR))
            for x in chk[:2 * per - 1]: B(x)
            B("s_waitcnt vmcnt(5)\n" + mf32(DR, vSelR, d + 8, DR))
            for x in chk[2 * per - 1:3 * per - 1]: B(x)
            B("s_waitcnt vmcnt(4)\n" + mf32(DR, vSelR, d + 12, DR))
            for x in chk[3 * per - 1:]: B(x)
        l = B.lab('hb')
        l2 = B.lab('hb')
        for x in rl(RD) + tokwr + rl(MF) + share: B(x)
        B(l2 + ":\n" + budget)
        check(RD)
        B("s_cbranch_vccz " + pub + "\ns_mov_b64 exec, vcc")
        for x in rl(RD): B(x)
        B("s_mov_b64 exec, -1")
        check(MF)
        B("s_cbranch_vccnz " + l)
        Z.extend([l + ":\ns_mov_b64 exec, vcc"] + rl(MF) + ["s_mov_b64 exec, -1\ns_branch " + l2])
    redloop(A, 1)
    A(pub + ":")
    A("s_mov_b32 exec_hi, 0")
    A(cvt(DR, DR, DR + 1) + "\n" + cvt(DR + 1, DR + 2, DR + 3) + "\nv_and_b32 v%d, -2, v%d" % (DR, DR))
    A(st(2, DR, vL8, sHCx, 0, 'sc1'))
    A("v_or_b32 v%d, s%d, v%d\nv_mov_b32 v%d, v%d" % (DR + 2, sTag, DR, DR + 3, DR + 1))
    A(st(2, DR + 2, vL8, sHCl, 0, fl))
    if True:
        A("s_add_u32 s%d, s%d, %d\nv_mov_b32 v%d, -1\nv_mov_b32 v%d, -1\n" % (sT, sHCx, HC_FILL * HC_STEP, DR + 4, DR + 5) + st(2, DR + 4, vL8, sT, 0, 'sc1'))
    order = opt.get('order', 'pAbmvnoz')
    for k, c in enumerate('BC'):
        if c in order: A("s_add_u32 s%d, s%d, %d\n" % (sT, sHCx, (k + 1) * HC_COPY) + st(2, DR, vL8, sT, 0, 'sc1'))
    A("s_mov_b32 exec_hi, -1")
    stamp(A, opt, 7)
    A(join + ":\ns_waitcnt lgkmcnt(0)\ns_barrier")
    if park: A(oflag)
    B = Asm(); B.uid = A.uid + 1000
    B(red2 + ":"); redloop(B, 4); B("s_branch " + pub)
    B(nored + ":\ns_cmp_eq_u32 s%d, 2\ns_cbranch_scc1 %s\n" % (sRed, red2) + "\n".join(tokwr))
    if split:
        T_ = MF
        B(share[0] + "\ns_cmp_lt_u32 s%d, 2\ns_cbranch_scc1 %s" % (sW, join))
        for w in range(4): B("ds_read_b128 %s, v%d offset:%d" % (v(T_ + 4 * w, 4), vSelR, L_SPT + SPT_W * w))
        o1 = (L_SPT + 2048) // 256
        B("ds_read2st64_b32 %s, v%d offset0:%d offset1:%d\nds_read2st64_b32 %s, v%d offset0:%d offset1:%d" % (v(T_ + 16, 2), vSelR + 1, o1, o1 + 22, v(T_ + 18, 2), vSelR + 1, o1 + 44, o1 + 66))
        B("v_mov_b32 v%d, s%d" % (vT1, sNeg))
        B("s_waitcnt lgkmcnt(4)\n" + pkadd(T_, T_, T_ + 4) + "\n" + pkadd(T_ + 2, T_ + 2, T_ + 6))
        B("s_waitcnt lgkmcnt(2)\n" + pkadd(T_ + 8, T_ + 8, T_ + 12) + "\n" + pkadd(T_ + 10, T_ + 10, T_ + 14))
        B(pkadd(T_, T_, T_ + 8) + "\n" + pkadd(T_ + 2, T_ + 2, T_ + 10))
        B("s_waitcnt lgkmcnt(0)\n" + pkadd(T_ + 16, T_ + 16, T_ + 18))
        for r in range(4): B("v_cndmask_b32 v%d, v%d, v%d, %s" % (T_ + r, vT1, T_ + r, s(sMask + 2 * r, 2)))
        r8 = "row_ror:8 row_mask:0xf bank_mask:0xf"
        B(add(T_ + 4, T_ + 16, T_ + 17) + "\nv_max3_f32 v%d, v%d, v%d, v%d\nv_max3_f32 v%d, v%d, v%d, v%d" % (vT0, T_, T_ + 1, T_ + 2, vT0, vT0, T_ + 3, T_ + 4))
        B("v_max_f32_dpp v%d, v%d, v%d %s\nv_max_f32_dpp v%d, v%d, v%d %s" % (vT1, vT0, vT0, r8, vT0, vT0, vT0, r8))
        xgroup(B, "v_max_f32", vT0, vT1)
        B("v_mul_f32 v%d, s%d, v%d" % (vT0, sC, vT0))
        for i in range(5): B("v_fma_f32 v%d, v%d, s%d, -v%d" % (T_ + i, T_ + i, sC, vT0))
        for i in range(5): B("v_exp_f32 v%d, v%d" % (T_ + i, T_ + i))
        B(cvt(T_, T_, T_ + 1) + "\n" + cvt(T_ + 1, T_ + 2, T_ + 3) + "\n" + cvt(T_ + 2, T_ + 4, T_ + 4))
        B("ds_write_b64 v%d, %s offset:%d\nds_write_b16 v%d, v%d offset:%d" % (vSelR + 2, v(T_, 2), L_P, vSelR + 3, T_ + 2, L_P + 1024))
        stamp(B, opt, 7)
    B("s_cmp_lg_u32 s%d, 2\ns_cbranch_scc1 %s" % (sW, join))
    B("s_add_u32 s%d, s%d, 1\ns_min_u32 s%d, s%d, 63" % (sT, sStep, sT, sT))
    pf.A = B; pf.start(2); B("v_cmp_ge_i32 vcc, s%d, v%d" % (sT, vT2)); pf.branch(); B("s_branch " + join)
    A0, B0 = A, B
    if split: A, B = Asm(), Asm()
    A("s_cmp_eq_u32 s%d, 3\ns_cbranch_scc1 %s" % (sW, soft))
    tgt = "s_mov_b32 exec_lo, 0\nv_mov_b32 v%d, 0\nv_add_u32 v%d, %d, v%d\ns_mov_b32 exec_lo, -1\ns_mov_b32 exec_hi, 0\nv_mov_b32 v%d, s%d\ns_mov_b32 exec_hi, -1" % (vTg, vHC, HC_STEP, vHC, vTg, sTag)
    CA, CB, CD = WSG, MF, WSG + 12
    cl = lambda d: [ld(4, d, vHC, sHLr0), ld(4, d + 4, vHC, sHLr0, 2048), ld(4, d + 8, vHC, sHLr2)]
    cut = opt.get('cut', 0)
    nkq = opt.get('nkq', 6)
    def release(B, k):
        if k == cut:
            B("s_barrier")
            for l in cl(CA): B(l)
            stamp(B, opt, 8, True)
            for l in kq_loads[nkq:]: B(l)
    for l in kq_loads[:nkq if cut else 6] + [tgt]: A(l)
    if cut: release(A, cut)
    A(join2 + ":")
    B(soft + ":")
    U = [MF, MF + 10, AQ + 12, WSG]; St = U[0]
    for w in range(4):
        for i in range(2): B("ds_read_b128 %s, v%d offset:%d" % (v(U[w] + 4 * i, 4), vL16, L_SPT + SPT_W * w + 1024 * i))
        B("ds_read_b64 %s, v%d offset:%d" % (v(U[w] + 8, 2), vL8, L_SPT + SPT_W * w + 2048))
    B(tgt + "\nv_mov_b32 v%d, s%d" % (vT0, sNeg))
    kq = list(kq_loads)
    if cut:
        for l in kq[:nkq]: B(l)
        kq = [""] * 6
    for w in range(1, 4):
        B("s_waitcnt lgkmcnt(%d)" % (9 - 3 * w))
        for r in range(0, 10, 2): B(pkadd(St + r, St + r, U[w] + r))
    release(B, 1)
    for r in range(8): B("v_cndmask_b32 v%d, v%d, v%d, %s" % (St + r, vT0, St + r, s(sMask + 2 * r, 2)))
    B("v_max3_f32 v%d, v%d, v%d, v%d\nv_max3_f32 v%d, v%d, v%d, v%d" % (vT0, St, St + 1, St + 2, vT1, St + 3, St + 4, St + 5))
    B("v_max3_f32 v%d, v%d, v%d, v%d\nv_max3_f32 v%d, v%d, v%d, v%d" % (vT0, vT0, St + 6, St + 7, vT1, vT1, St + 8, St + 9))
    B("v_max_f32 v%d, v%d, v%d\nv_mov_b32 v%d, v%d\n" % (vT0, vT0, vT1, vT1, vT0) + kq[0] + "\n" + kq[1])
    B("v_permlane32_swap_b32 v%d, v%d\nv_max_f32 v%d, v%d, v%d\nv_mov_b32 v%d, v%d\n" % (vT0, vT1, vT0, vT0, vT1, vT1, vT0) + kq[2] + "\n" + kq[3])
    B("v_permlane16_swap_b32 v%d, v%d\nv_max_f32 v%d, v%d, v%d" % (vT0, vT1, vT0, vT0, vT1))
    release(B, 2)
    B("v_mul_f32 v%d, s%d, v%d" % (vT0, sC, vT0))
    for i in range(10): B("v_fma_f32 v%d, v%d, s%d, -v%d" % (St + i, St + i, sC, vT0))
    B(kq[4] + "\n" + kq[5]); release(B, 3)
    for i in range(10): B("v_exp_f32 v%d, v%d" % (St + i, St + i))
    release(B, 4)
    for i in range(5): B(cvt(P + i if i < 4 else PM, St + 2 * i, St + 2 * i + 1))
    B("ds_write_b128 v%d, %s offset:%d\nds_write_b32 v%d, v%d offset:%d" % (vL16, v(P, 4), L_P, vL4, PM, L_P + 1024))
    stamp(B, opt, 7)
    B("s_branch " + join2)
    A("s_waitcnt lgkmcnt(0)\ns_barrier")
    A, B = A0, B0
    rdp = "ds_read_b128 %s, v%d offset:%d\nds_read2st64_b32 %s, v%d offset0:%d offset1:%d" % (v(P, 4), vL16, L_P, v(PM, 2), vL4, L_P // 256 + 4, L_P // 256 + 4)
    A("s_cmp_eq_u32 s%d, %d\ns_cbranch_scc1 %s" % (sStep, opt.get('nsteps', 64) - 1, done))
    book = ["s_mov_b32 m0, s%d\nv_writelane_b32 v0, s96, m0" % sStep] if opt.get('lstamp') else []
    book += ["s_add_u32 s%d, s%d, 1\ns_and_b32 s%d, s%d, 1\ns_add_u32 s%d, s%d, %d" % (sStep, sStep, sTag, sStep, sHCx, sHCx, HC_STEP)] + ["s_add_u32 s%d, s%d, s%d\ns_add_u32 s%d, s%d, s%d\ns_mov_b32 s%d, %d" % (sO32, sO32, sOb, sO16, sO16, sOb, sOb, O_SEG)]
    book += ["s_mov_b32 s%d, %d\ns_cmp_eq_u32 s%d, 63\ns_cselect_b32 s%d, 0x%x, s%d" % (sT, QKV_SEG, sStep, sT, OOBS, sT)]
    book += ["s_add_u32 s%d, s%d, s%d" % (r, r, sT) for r in (sK32, sK16) + (() if qlate else (sQ32, sQ16))] + (adv((sQ32, sQ16), QKV_SEG) if qlate else [])
    def late(k):
        L = ["v_mov_b32 v%d, v%d\ns_mov_b32 exec_lo, 0\nv_add_u32 v%d, %d, v%d\ns_mov_b32 exec_lo, -1" % (vT1, vHC, vT1, HC_COPY, vT1)]
        for u in range(3):
            L.append("s_add_u32 m0, s%d, %d\nbuffer_load_dwordx4 v%d, %s, s%d offen offset:%d sc1 lds" %
                     (sLw, L_SPM + 1024 * u - (2048 if u == 1 else 0), vT1, WS, sHLr2 if u == 2 else sHLr0, 2048 if u == 1 else 0))
        return L
    parts = {'m': lambda: (A("s_waitcnt lgkmcnt(0)"), pvmm(False)), 'n': lambda: pvnorm(False, [OT, OT + 2, OT + 4])}
    mem = {'o': ((["ds_write_b128 v%d, %s offset:%d\nds_write_b64 v%d, %s offset:%d" % (vSt16, v(OT, 4), L_OT, vSt8, v(OT + 4, 2), L_OT + 1024)], 0) if park else (o_stores, 2)), 'v': (v_loads + adv((sVp, sVs), QKV_SEG), 3), 'p': ([rdp], 0), 'b': (book, 0), 'k': (kq_loads[:4] + [tgt], 4),
           'z': (zero, 0), '.': (["s_nop 15"], 0), 'A': (cl(CA), 3), 'B': (late(0), 3), 'C': (late(1), 3)}
    after = {}
    if cut:
        after['A'] = 6 - nkq + (1 if opt.get('stamp') else 0)
        if opt.get('stamp'): A("s_add_u32 s%d, s%d, 64" % (sTS, sTS))
    for c in order:
        n = 0
        if c in parts: parts[c]()
        else:
            for l in mem[c][0]: A(l)
            n = mem[c][1]
        if c == 'o' and park and short:
            d, e = A.lab('direct'), A.lab('direct')
            A("s_cmp_eq_u32 s%d, 63\ns_cbranch_scc1 %s\n%s:" % (sStep, d, e))
            Z.extend([d + ":"] + o_stores + ["s_branch " + e])
        if c == 'A' and opt.get('stamp'):
            stamp(A, opt, 8, True); A("s_add_u32 s%d, s%d, 64" % (sTS, sTS)); n += 1; after[c] = 1 - n
        for k in after: after[k] += n
        if c in 'ABC': after.setdefault(c, 0)
    def arrive(B, d):
        chk = [l.replace("s%d bitop3" % sTag, "v%d bitop3" % vTg) for l in tagcheck(range(d, d + 12, 2), vT0)]
        for l in interleave([mf32(CD + 4 * u, d + 4 * u, vSelS) for u in range(3)], chk[:4], per=2): B(l)
        for u in range(3):
            B(cvt(CD + 4 * u, CD + 4 * u, CD + 4 * u + 1) + "\n" + cvt(CD + 4 * u + 1, CD + 4 * u + 2, CD + 4 * u + 3))
            B("ds_write_b64 v%d, %s offset:%d" % (vMw3 if u == 2 else vMw, v(CD + 4 * u, 2), L_M + (2560 if u == 1 else 0)))
            B(chk[4 + u])
    second, again, ok = A.lab('hc2'), A.lab('hc3'), A.lab('hcok')
    A("s_waitcnt vmcnt(%d)" % after['A'])
    arrive(A, CA)
    A("s_cbranch_vccnz " + second)
    A(ok + ":")
    B(second + ":")
    for k, c in enumerate('BC'):
        if c in after:
            if opt.get('stamp'): B("s_add_u32 s55, s55, 256")
            B("s_waitcnt vmcnt(%d)\ns_mov_b64 exec, vcc" % after[c])
            for u in range(3): B("ds_read_b128 %s, v%d offset:%d" % (v(CA + 4 * u, 4), vSt16, L_SPM + 1024 * u))
            B("s_mov_b64 exec, -1\ns_waitcnt lgkmcnt(0)"); arrive(B, CA); B("s_cbranch_vccz " + ok)
    B(again + ":")
    if opt.get('stamp'): B("s_add_u32 s55, s55, 1")
    for l in cl(CA): B(l)
    B("s_add_u32 s%d, s%d, 1\ns_cmp_ge_u32 s%d, %d\ns_waitcnt vmcnt(0)\ns_cbranch_scc1 %s" % (sBud, sBud, sBud, BUDGET, ok))
    arrive(B, CA); B("s_cbranch_vccnz " + again + "\ns_branch " + ok)
    stamp(A, opt, 9)
    pre = [l for k in range(npre) for _, l in wrd(k)]
    for l in pre: A(l)
    A("s_waitcnt lgkmcnt(%d)\ns_barrier" % len(pre))
    for t in range(5): A("ds_read_b128 %s, v%d offset:%d" % (v(MF + 4 * t, 4), vL16, L_M + 1024 * t))
    if 'v' not in order:
        for l in mem['v'][0]: A(l)
    A("s_branch " + top)
    A(done + ":")
    for l in [rdp] + ["s_add_u32 s%d, s%d, s%d\ns_add_u32 s%d, s%d, s%d\ns_mov_b32 s%d, %d" % (sO32, sO32, sOb, sO16, sO16, sOb, sOb, O_SEG)] + ["s_waitcnt lgkmcnt(0)"]: A(l)
    pvmm(False); pvnorm(False, [OT, OT + 2, OT + 4])
    for l in o_stores: A(l)
    A("s_waitcnt vmcnt(0)\ns_barrier\ns_mov_b64 exec, 1\nv_mov_b32 v%d, 64\nbuffer_store_dword v%d, off, %s, s%d sc1\ns_mov_b64 exec, -1" % (vT1, vT1, WS, sFO))
    if opt.get('lstamp'):
        A("s_mov_b32 m0, s%d\nv_writelane_b32 v0, s96, m0" % sStep); ldump(A, vT0, vL16, 0)
    leave(A, opt)
    for z in Z + B.L: A(z)

def rec_role(A, opt):
    place(opt.get('lpos', [0, 2, 4, 9, 15, 21, 28, 29, 32, 36, 37, 38, 42, 43, 44]))
    A("L_role_rec:")
    A("s_lshr_b32 s%d, s%d, 6\ns_bfe_u32 s%d, s%d, 0x10005\ns_and_b32 s%d, s%d, 1\ns_bfe_u32 s%d, s%d, 0x50001" % (sL, sRole, sX, sRole, sJ, sRole, sH, sRole))
    A("s_xor_b32 s%d, s%d, 1" % (sJo, sJ))
    A("s_lshl_b32 s%d, s%d, 3\ns_lshr_b32 s%d, 0x140c0800, s%d\ns_and_b32 s%d, s%d, 255\ns_lshr_b32 s%d, 0x12100604, s%d\ns_and_b32 s%d, s%d, 255" % (sT, sW, sPBc, sT, sPBc, sPBc, sSBc, sT, sSBc, sSBc))
    A("v_lshlrev_b32 v%d, 4, v0\nv_lshlrev_b32 v%d, 3, v0" % (vL16, vL8))
    load_weights(A, opt)
    wait_ready(A, vT0, opt, True)
    consts(A, opt)
    if opt.get('helpers'):
        A("s_cmp_eq_u32 s%d, 0\ns_cselect_b32 s%d, %d, 0\nv_bfe_u32 v%d, v0, 4, 1\nv_mul_lo_u32 v%d, v%d, s%d\nv_add_u32 v%d, v%d, v%d" % (sL, sT, 2 * 72 * FW, vT0, vT0, vT0, sT, vFlag0, vFlag0, vT0))
    def lin(dst, base, terms):
        A("s_mov_b32 s%d, %d" % (dst, base))
        for r, k in terms: A("s_mul_i32 s%d, s%d, %d\ns_add_u32 s%d, s%d, s%d" % (sT, r, k, dst, dst, sT))
    cu, r32, pcu, tau = 96, 97, 98, 99
    A("s_and_b32 s%d, s%d, 63\ns_and_b32 s%d, s%d, 31\ns_xor_b32 s%d, s%d, 1" % (cu, sRole, r32, sRole, pcu, cu))
    lin(sHAo, HA, [(sL, HA_LAYER), (cu, 4 * HA_W), (sW, HA_W)])
    lin(sHAp, HA, [(sL, HA_LAYER), (pcu, 4 * HA_W), (sW, HA_W)])
    A("s_lshr_b32 s%d, s%d, 1" % (pcu, r32))
    lin(sHBq, HB, [(sL, 2 * HB_X), (sX, HB_X), (sJo, 16 * 4096), (sW, 4 * 4096), (pcu, 256)])
    lin(sHBs, HB + 32 * 4096, [(sL, 2 * HB_X), (sX, HB_X), (sJo, 4 * 4096), (sW, 4096), (pcu, 256)])
    A("s_lshl_b32 s%d, s%d, 5\ns_add_u32 s%d, s%d, s%d\ns_add_u32 s%d, s%d, 1\ns_cmp_lt_u32 s%d, 40\ns_cselect_b32 s%d, s%d, 0" % (tau, sW, tau, tau, r32, sRed, sW, tau, sRed, sRed))
    lin(sHBr, HB, [(sL, 2 * HB_X), (sX, HB_X), (tau, 4096)])
    lin(sHCl, HL, [(sL, 20480), (sX, 10240), (tau, 256)])
    lin(sHCx, HC, [(sL, HC_L), (sX, 10240), (tau, 256)])
    lin(sT2, HC + 10240 - HL - HC_STEP, [(sL, HC_L - 20480), (sX, -20480)])
    A("s_mov_b32 exec_lo, 0\nv_add_u32 v%d, s%d, v%d\ns_mov_b32 exec_lo, -1" % (vHC, sT2, vHC))
    lin(sHLr0, HL, [(sL, 20480), (sX, 10240), (sJ, 16 * 256), (sW, 512)])
    A("s_and_b32 s%d, s%d, 1" % (tau, sW))
    lin(sHLr2, HL + 32 * 256, [(sL, 20480), (sX, 10240), (sJ, 4 * 256), (tau, 512)])
    lin(sT2, QKV, [(sL, LS['q']), (sH, QKV_HEAD)])
    lin(sQ32, 0, [(sPBc, 512), (sJ, 256)]); lin(sQ16, 0, [(sSBc, 512), (sJ, 256)])
    lin(sK32, 12288, [(sPBc, 512)]); lin(sK16, 12288, [(sSBc, 512)])
    lin(sVp, 24576, [(sPBc, 512)]); lin(sVs, 24576, [(sSBc, 512)])
    for r in (sQ32, sQ16, sK32, sK16, sVp, sVs): A("s_add_u32 s%d, s%d, s%d" % (r, r, sT2))
    lin(sFQ, FQ, [(sL, 72 * FW)]); lin(sLw, 0, [(sW, SPM_W)])
    lin(sO32, OO + OOBS, [(sL, LS['o']), (sH, 24 * 512), (sJ, 256), (sPBc, 512)])
    lin(sO16, OO + OOBS, [(sL, LS['o']), (sH, 24 * 512), (sJ, 256), (sSBc, 512)])
    lin(sFO, FO, [(sL, 64 * FW), (cu, FW)])
    A("s_cmp_eq_u32 s%d, 3\ns_cselect_b32 s%d, s%d, 0x%x" % (sW, sFO, sFO, OOBS))
    for r in ({0: (), 1: (sO32, sO16), 2: (sO32,), 3: (sO16,)}[opt.get('noo', 0)]) + sum(({'q': (sQ32, sQ16), 'k': (sK32, sK16), 'v': (sVp, sVs)}[c] for c in opt.get('nobulk', '')), ()): A("s_mov_b32 s%d, 0x%x" % (r, OOBS))
    A("s_mov_b32 s%d, 0\ns_mov_b32 s%d, 0\ns_mov_b32 s%d, %d\ns_mov_b32 s%d, 0xffff\ns_mov_b32 s%d, 0xffff" % (sStep, sTag, sOb, -OOBS, sEv, sEv + 1))
    if opt.get('stamp'):
        A("s_mov_b32 s55, 0")
        lin(sTS, DBGW, [(cu, 4 * 4096), (sW, 4096)])
        A("s_cmp_eq_u32 s%d, 0\ns_cselect_b32 s%d, s%d, 0x%x" % (sL, sTS, sTS, OOBS))
    A("s_cmp_lg_u32 s%d, 0\ns_cbranch_scc1 L_rec_mixed" % sMix)
    step_loop(A, opt, '', 'a')
    A("L_rec_mixed:")
    step_loop(A, opt, 'sc1', 'b')
```

```python
import sys
from common import *
import rec, gemm

import os
HEADER = open(os.path.join(os.path.dirname(os.path.abspath(__file__)), '..', NAME + '.s.ref')).read().split('; Override launch')[0]
PLACES = {
    0: [[('q', 0, 18), ('b', 0, 4), ('s', 0, 10)], [('q', 18, 18), ('b', 4, 4), ('s', 10, 10)], [('q', 36, 18), ('b', 8, 4), ('s', 20, 10)], [('q', 54, 18), ('b', 12, 4), ('s', 30, 10)]],
    1: [[('q', 0, 12), ('b', 0, 10), ('s', 0, 10)], [('q', 12, 20), ('b', 10, 2), ('s', 20, 10)],
        [('q', 32, 20), ('b', 12, 2), ('s', 10, 5), ('s', 30, 5)], [('q', 52, 20), ('b', 14, 2), ('s', 15, 5), ('s', 35, 5)]],
    2: [[('q', 0, 13), ('b', 0, 9), ('s', 0, 10)], [('q', 13, 20), ('b', 9, 2), ('s', 20, 10)],
        [('q', 33, 20), ('b', 11, 2), ('s', 10, 5), ('s', 30, 5)], [('q', 53, 19), ('b', 13, 3), ('s', 15, 5), ('s', 35, 5)]],
}
def build(opt):
    A = Asm()
    for k, d in (('hold', 10), ('uorder', list(range(10)) + list(range(16, 21)) + list(range(10, 16))), ('helpers', (8, 9)), ('lead_q', (20, 53)), ('lead_o', 12), ('lead_b', 13)): opt.setdefault(k, d)
    if opt['helpers'] and len(opt['lead_q']) == 2: opt['lead_q'] += (64 - opt['helpers'][1],)
    for k in opt.get('reuse', 'q'): LS[k] = 0
    opt.setdefault('place', PLACES[opt.get('pl', 1)])
    prologue(A, opt)
    gemm.WFL[0] = opt.get('wfl', '')
    roles = opt.setdefault('roles', ['rec', 'qkv', 'leaf', 'root', 'bq', 'bo', 'ln0'])
    sIdx = 101
    A("s_mov_b32 s%d, 0" % gemm.sMir)
    if 'rec' in roles:
        A("s_cmp_lt_u32 s%d, 64\ns_cbranch_scc1 L_role_rec\ns_cmp_lt_u32 s%d, 128\ns_cbranch_scc1 L_second" % (sRole, sRole))
    A("s_cmp_lt_u32 s%d, 128\ns_cbranch_scc1 L_idle" % sRole)
    pos = 128; gemm.WHERE.clear()
    for g, ranges in enumerate(opt['place']):
        assert sum(r[2] for r in ranges) == 32
        for kind, first, n in ranges:
            for i in range(n): gemm.WHERE[(kind, first + i)] = pos + i
            A("s_sub_u32 s%d, s%d, %d\ns_cmp_lt_u32 s%d, %d\ns_cbranch_scc1 %s" % (sIdx, sRole, pos - first, sRole, pos + n, {'q': 'L_role_qkv', 'b': 'L_to_bq', 's': 'L_sets'}[kind]))
            pos += n
    assert len(gemm.WHERE) == 128
    A("L_sets:")
    A("s_sub_u32 s42, s%d, 30\ns_cmp_lt_u32 s42, 5\ns_cbranch_scc1 L_nofill\ns_sub_u32 s42, s%d, 5\ns_cmp_lt_u32 s%d, 30\ns_cselect_b32 s42, s%d, s42" % (sIdx, sIdx, sIdx, sIdx))
    fill(A, 42, opt)
    A("L_nofill:")
    lo = 0
    for nm, n, keep in (('leaf', 25, 0), ('root', 5, 1), ('ln0', 5, 0), ('bo', 5, 0)):
        A("s_cmp_lt_u32 s%d, %d\ns_cbranch_scc1 %s" % (sIdx, lo + n, 'L_role_' + nm if nm in roles else 'L_idle'))
        if keep: lo = n
        else: A("s_sub_u32 s%d, s%d, %d" % (sIdx, sIdx, lo + n)); lo = 0
    A("L_idle:")
    A("L_end:\ns_endpgm")
    A("L_second:\ns_and_b32 s%d, s%d, 63" % (sIdx, sRole))
    A("s_mov_b32 s%d, 1\ns_branch %s" % (gemm.sMir, 'L_role_qkv' if opt['helpers'] else 'L_role_rec'))
    A("L_to_bq:\ns_cmp_lt_u32 s%d, %d\ns_cbranch_scc1 L_role_bq" % (sIdx, 8 if opt['helpers'] else 99))
    A("s_add_u32 s%d, s%d, 56\ns_mov_b32 s%d, 2\ns_branch L_role_qkv" % (sIdx, sIdx, gemm.sMir))
    A("L_helper_done:")
    if opt.get('lstamp'): ldump(A, gemm.vT0, gemm.vL16, 11, 170, 262144)
    A("v_mbcnt_lo_u32_b32 v0, -1, 0\nv_mbcnt_hi_u32_b32 v0, -1, v0\ns_sub_u32 s%d, s%d, 56" % (sIdx, sIdx))
    A("s_cmp_eq_u32 s%d, 1\ns_cbranch_scc1 L_role_rec\ns_branch L_role_bq" % gemm.sMir)
    for nm in ('ln0', 'root', 'qkv', 'leaf', 'bq', 'bo'):
        if nm in roles: getattr(gemm, nm + '_role')(A, opt, sIdx)
    if 'rec' in roles: rec.rec_role(A, opt)
    if opt.get('hack'):
        import re
        on = False
        for i, l in enumerate(A.L):
            if re.match(r'L_(qk|v)_body0:', l): on = True
            if re.match(r'L_(qk|v)_entry0:', l): on = False
            if on:
                for pat, rep in opt['hack']: A.L[i] = re.sub(pat, rep, A.L[i])
    k = NAME + '_kernel'
    t = HEADER + "; @launch grid=(256,1,1) block=(256,1,1) lds=163840\n; leads %r\n; place %r\n" % ([opt['lead_q'], opt['lead_o'], opt['lead_b']], opt['place'])
    t += '.amdgcn_target "amdgcn-amd-amdhsa--gfx950"\n.text\n.globl %s\n.p2align 8\n.type %s,@function\n%s:\n' % (k, k, k)
    t += A.finish()
    t += '.section .rodata,"a"\n.p2align 6\n.amdhsa_kernel %s\n' % k
    t += "  .amdhsa_next_free_vgpr 512\n  .amdhsa_next_free_sgpr 102\n  .amdhsa_accum_offset 256\n  .amdhsa_group_segment_fixed_size 0\n"
    t += "  .amdhsa_kernarg_size 104\n  .amdhsa_user_sgpr_count 2\n  .amdhsa_user_sgpr_kernarg_segment_ptr 1\n  .amdhsa_system_sgpr_workgroup_id_x 1\n"
    t += "  .amdhsa_float_denorm_mode_32 3\n.end_amdhsa_kernel\n"
    return t
if __name__ == '__main__':
    opt = eval(sys.argv[2]) if len(sys.argv) > 2 else {}
    open(sys.argv[1], 'w').write(build(opt))
```

```python
from asmlib import *
from layout import *
NAME = 'interleave_layers__memory_aug_recurrent_mem_tr__sliding_local_dilated__prompt'
WS = 's[4:7]'; TS = 's[8:11]'
sW, sRole, sBud, sMix = 12, 13, 14, 15
pX, pMem, pWq, pWk, pWv, pWo = 16, 18, 20, 22, 24, 26
pBq, pBo, pOut, pDbg, pWs = 32, 34, 36, 38, 40
OOBS = 0x20000000
BUDGET = 100000
LDS_MISC = 40000
DBG_READY = 8

LS = {'q': 64 * QKV_SEG, 'o': 64 * O_SEG, 'p': 64 * 5 * TILE}
def temp_srd(A, p, nbytes):
    A("s_mov_b32 s8, s%d\ns_mov_b32 s9, s%d\ns_mov_b32 s10, %d\ns_mov_b32 s11, 0x20000" % (p, p + 1, nbytes))

def tick(d, g): return "s_mul_i32 s%d, s%d, 65\ns_and_b32 s%d, s%d, 0xc4" % (d, g, d, d)
def prologue(A, opt):
    A("s_cmp_ge_u32 s2, 256\ns_cbranch_scc1 L_end")
    A("s_load_dwordx8 s[16:23], s[0:1], 0\ns_load_dwordx4 s[24:27], s[0:1], 32\ns_load_dwordx8 s[32:39], s[0:1], 64\ns_load_dwordx2 s[40:41], s[0:1], 96")
    A("s_getreg_b32 s42, hwreg(HW_REG_XCC_ID)\ns_and_b32 s42, s42, 7")
    opt.setdefault('xmap', [0, 6, 1, 7, 2, 4, 3, 5])
    if opt.get('xmap'): A("s_lshl_b32 s42, s42, 2\ns_lshr_b32 s42, 0x%x, s42\ns_and_b32 s42, s42, 7" % sum(g << (4 * x) for x, g in enumerate(opt['xmap'])))
    if opt.get('lstamp'): A("s_memrealtime s[30:31]")
    A("v_lshrrev_b32 v1, 6, v0\nv_readfirstlane_b32 s%d, v1" % sW)
    A("s_mov_b32 s%d, 0\ns_mov_b32 s%d, 0" % (sBud, sMix))
    A("s_waitcnt lgkmcnt(0)")
    A("s_mov_b32 s4, s40\ns_mov_b32 s5, s41\ns_mov_b32 s6, %d\ns_mov_b32 s7, 0x20000" % WS_SIZE)
    temp_srd(A, pDbg, 256)
    A("v_mov_b32 v3, %d" % LDS_MISC)
    A("s_cmp_lg_u32 s%d, 0\ns_cbranch_scc1 L_tick_done" % sW)
    A("s_mov_b64 exec, 1\nv_mov_b32 v8, 1\ns_mov_b32 s44, 0")
    if opt.get('forcemix'): A("s_branch L_tick_next")
    A(tick(43, 42) + "\nbuffer_atomic_add v8, off, %s, s43 sc0\ns_waitcnt vmcnt(0)\nv_readfirstlane_b32 s45, v8" % TS)
    A("s_and_b32 s45, s45, 0xffff\ns_cmp_lt_u32 s45, 32\ns_cbranch_scc1 L_tick_got")
    A("L_tick_next:")
    A("s_mov_b32 s42, s44\ns_add_u32 s44, s44, 1\nv_mov_b32 v8, 0x10001\n" + tick(43, 42))
    A("buffer_atomic_add v8, off, %s, s43 sc0\ns_waitcnt vmcnt(0)\nv_readfirstlane_b32 s45, v8" % TS)
    A("s_and_b32 s45, s45, 0xffff\ns_cmp_lt_u32 s45, 32\ns_cbranch_scc1 L_tick_got")
    A("s_cmp_lt_u32 s44, 8\ns_cbranch_scc1 L_tick_next")
    A("s_mov_b32 s42, 8\ns_mov_b32 s45, 0")
    A("L_tick_got:\ns_lshl_b32 s42, s42, 5\ns_add_u32 s42, s42, s45\nv_mov_b32 v8, s42\nds_write_b32 v3, v8\ns_waitcnt lgkmcnt(0)\ns_mov_b64 exec, -1")
    A("L_tick_done:")
    A("s_barrier\nds_read_b32 v8, v3\ns_waitcnt lgkmcnt(0)\nv_readfirstlane_b32 s%d, v8" % sRole)
    A("s_barrier")
    A("v_and_b32 v0, 63, v0")
    A("s_cmp_ge_u32 s%d, 256\ns_cbranch_scc1 L_end" % sRole)
    if opt.get('lstamp'): A("s_memrealtime s[28:29]\ns_waitcnt lgkmcnt(0)\ns_mov_b32 s31, s28")

def fill(A, sSlice, opt):
    if opt.get('nofill'): return
    A("v_mov_b32 v4, -1\nv_mov_b32 v5, -1\nv_mov_b32 v6, -1\nv_mov_b32 v7, -1\nv_lshlrev_b32 v8, 4, v0")
    A("s_mul_i32 s96, s%d, %d\ns_lshl_b32 s97, s%d, 10\ns_add_u32 s96, s96, s97" % (sSlice, SYNC_PER_WG, sW))
    A("s_mov_b32 s97, %d\ns_cmp_lt_u32 s%d, %d\ns_cselect_b32 s97, %d, s97\ns_add_u32 s96, s96, s97" % (HC - SYNC_PER_WG * (NFILL - NFILL2), sSlice, NFILL - NFILL2, SYNC0))
    l = A.lab('fill')
    A("s_add_u32 s97, s96, %d\n%s:\nbuffer_store_dwordx4 v[4:7], v8, %s, s96 offen sc1\ns_add_u32 s96, s96, 4096\ns_cmp_lt_u32 s96, s97\ns_cbranch_scc1 %s" % (SYNC_PER_WG, l, WS, l))
    signal_ready(A, 8)

NPROBE = 8
NREADY = NFILL + 5 + NPROBE
DBG_NEAR = 12
def probe(A, opt, sIdx):
    l, e = A.lab('probe'), A.lab('probe'); n = opt.get('nprobe', 1)
    A("s_cmp_lg_u32 s%d, 0\ns_cbranch_scc1 %s" % (sW, e))
    A("v_and_b32 v4, 7, v0\nv_lshlrev_b32 v4, 4, v4\nv_lshrrev_b32 v5, 3, v0\nv_lshl_add_u32 v8, v5, 12, v4\ns_lshl_b32 s42, s%d, 8\ns_add_u32 s42, s42, %d" % (sIdx, HC + 3 * HC_STEP))
    for i in range(n): A("s_add_u32 s43, s42, %d\nbuffer_store_dwordx4 v[4:7], v8, %s, s43 offen sc1" % (32768 * i, WS))
    A("s_mov_b64 exec, 1\ns_mov_b32 s43, -1\ns_mov_b32 s44, 0\ns_waitcnt vmcnt(0)")
    A(l + ":")
    A("s_xor_b32 s47, s44, s%d\ns_bfe_u32 s45, s47, 0x20001\ns_lshl_b32 s46, s47, 12\ns_add_u32 s46, s46, s42" % sIdx)
    A("s_memtime s[48:49]\ns_waitcnt lgkmcnt(0)\nbuffer_load_dword v5, off, %s, s46 sc1\ns_waitcnt vmcnt(0)\ns_memtime s[50:51]\ns_waitcnt lgkmcnt(0)" % WS)
    A("s_sub_u32 s50, s50, s48")
    if opt.get('lstamp'): A("s_mov_b32 m0, s47\nv_writelane_b32 v9, s50, m0")
    A("s_lshl_b32 s50, s50, 2\ns_or_b32 s50, s50, s45\ns_min_u32 s43, s43, s50\ns_add_u32 s44, s44, 1\ns_cmp_lt_u32 s44, %d\ns_cbranch_scc1 %s" % (8 * n, l))
    A("s_getreg_b32 s44, hwreg(HW_REG_XCC_ID)\ns_bfe_u32 s45, s44, 0x10002\ns_and_b32 s44, s44, 1\ns_lshl_b32 s44, s44, 1\ns_xor_b32 s43, s43, s44\ns_xor_b32 s43, s43, s45\ns_xor_b32 s43, s43, -4")
    if 'pair' in opt: A("s_mov_b32 s43, %d" % opt['pair'])
    A("v_mov_b32 v4, %d\nv_mov_b32 v5, s43\nglobal_atomic_umax v4, v5, s[%d:%d]\ns_mov_b64 exec, -1" % (DBG_NEAR, pDbg, pDbg + 1))
    if opt.get('lstamp'):
        A("s_memrealtime s[48:49]\ns_waitcnt lgkmcnt(0)\ns_sub_u32 s48, s48, s30\nv_writelane_b32 v9, s48, 63")
        A("v_lshlrev_b32 v4, 2, v0\ns_lshl_b32 s47, s%d, 8\ns_add_u32 s47, s47, %d\nbuffer_store_dword v9, v4, %s, s47 offen" % (sIdx, DBGW + 786432, WS))
    A(e + ":")
    signal_ready(A, 8)

def signal_ready(A, vt):
    l = A.lab('sig')
    A("s_waitcnt vmcnt(0)\ns_barrier\ns_cmp_lg_u32 s%d, 0\ns_cbranch_scc1 %s" % (sW, l))
    A("s_mov_b64 exec, 1\nv_mov_b32 v%d, %d\nv_mov_b32 v%d, 1" % (vt, DBG_READY, vt + 1))
    A("global_atomic_add v%d, v%d, s[%d:%d]\ns_mov_b64 exec, -1" % (vt, vt + 1, pDbg, pDbg + 1))
    A(l + ":")

def wait_word(A, vt, n, sleep=8):
    l = A.lab('rdy'); d = A.lab('rdyd')
    A(l + ":")
    A("global_load_dword v%d, v%d, s[%d:%d] sc1\ns_waitcnt vmcnt(0)\nv_readfirstlane_b32 s%d, v%d" % (vt + 1, vt, pDbg, pDbg + 1, sMix, vt + 1))
    A("s_and_b32 s3, s%d, 0xffff\ns_cmp_ge_u32 s3, %d\ns_cbranch_scc1 %s" % (sMix, n, d))
    A("s_sleep %d\ns_add_u32 s%d, s%d, 1\ns_cmp_lt_u32 s%d, %d\ns_cbranch_scc1 %s" % (sleep, sBud, sBud, sBud, BUDGET, l))
    A(d + ":")
sNear = 2
sPk = 92
def peek_ready(A, vt):
    A("s_lshr_b32 s3, s%d, 5\n" % sRole + tick(3, 3) + "\nv_mov_b32 v%d, s3\nv_writelane_b32 v%d, %d, 0\nv_writelane_b32 v%d, %d, 2\nglobal_load_dword v%d, v%d, s[%d:%d] sc1" % (vt, vt, DBG_READY, vt, DBG_NEAR, vt, vt, pDbg, pDbg + 1))
def peek_take(A, vt):
    A("v_readlane_b32 s%d, v%d, 0\nv_readlane_b32 s%d, v%d, 1\nv_readlane_b32 s%d, v%d, 2" % (sPk, vt, sPk + 1, vt, sNear, vt))
def wait_ready(A, vt, opt, group=False):
    if opt.get('lstamp'): A("s_memrealtime s[28:29]\ns_waitcnt lgkmcnt(0)")
    n = opt.get('nready', NREADY); slow, fast = A.lab('rslow'), A.lab('rfast')
    A("s_mov_b32 s%d, s%d\ns_and_b32 s3, s%d, 0xffff\ns_cmp_lt_u32 s3, %d\ns_cbranch_scc1 %s\ns_and_b32 s3, s%d, 0xffff\ns_cmp_ge_u32 s3, 32\ns_cbranch_scc1 %s" % (sMix, sPk + 1, sPk, n, slow, sMix, fast))
    A(slow + ":\nv_mov_b32 v%d, %d" % (vt, DBG_READY))
    wait_word(A, vt, n)
    A("v_mov_b32 v%d, %d\nglobal_load_dword v%d, v%d, s[%d:%d] sc1\ns_waitcnt vmcnt(0)\nv_readfirstlane_b32 s%d, v%d" % (vt, DBG_NEAR, vt, vt, pDbg, pDbg + 1, sNear, vt))
    A("s_lshr_b32 s%d, s%d, 5\n" % (sMix, sRole) + tick(3, sMix) + "\nv_mov_b32 v%d, s3" % vt)
    wait_word(A, vt, 32)
    A(fast + ":\ns_lshr_b32 s%d, s%d, 16" % (sMix, sMix))

def anyempty(A, rl, t):
    rl = list(rl)
    if len(rl) == 1:
        A("v_cmp_eq_u32 vcc, -1, v%d" % rl[0]); return
    if len(rl) == 2: A("v_max_u32 v%d, v%d, v%d" % (t, rl[0], rl[1])); rl = []
    else: A("v_max3_u32 v%d, v%d, v%d, v%d" % (t, rl[0], rl[1], rl[2])); rl = rl[3:]
    while rl:
        if len(rl) == 1: A("v_max_u32 v%d, v%d, v%d" % (t, t, rl[0])); rl = []
        else: A("v_max3_u32 v%d, v%d, v%d, v%d" % (t, t, rl[0], rl[1])); rl = rl[2:]
    A("v_cmp_eq_u32 vcc, -1, v%d" % t)

class Poll:
    def __init__(self, A, Z, name, loads, sleep=0):
        self.A, self.Z, self.loads, self.sleep = A, Z, loads, sleep
        self.top, self.ok, self.retry = A.lab(name + '_top'), A.lab(name + '_ok'), A.lab(name + '_rt')
    def issue(self):
        for l in self.loads: self.A(l)
    def start(self, n):
        self.A("s_waitcnt vmcnt(%d)" % n); self.A(self.top + ":")
    def branch(self):
        self.A("s_cbranch_vccnz %s" % self.retry); self.A(self.ok + ":")
        Z = self.Z
        Z.append(self.retry + ":")
        if self.sleep: Z.append("s_sleep %d" % self.sleep)
        Z.extend(self.loads)
        Z.append("s_add_u32 s%d, s%d, 1\ns_cmp_lt_u32 s%d, %d\ns_waitcnt vmcnt(0)\ns_cbranch_scc1 %s\ns_branch %s" % (sBud, sBud, sBud, BUDGET, self.top, self.ok))

def udiv(A, dst, src, d, tmp_s):
    A("s_mov_b32 s%d, %d\nv_mul_hi_u32 v%d, v%d, s%d" % (tmp_s, (2**32 + d - 1) // d, dst, src, tmp_s))

def interleave(main, fill, start=0, per=1):
    out = []; fill = list(fill)
    for i, m in enumerate(main):
        out.append(m)
        if i >= start:
            for _ in range(per):
                if fill: out.append(fill.pop(0))
    return out + fill

class Lgkm:
    def __init__(self): self.q = []
    def op(self, tag, text): self.q.append(tag); return text
    def wait(self, tag):
        if tag not in self.q: return ""
        last = len(self.q) - 1 - self.q[::-1].index(tag)
        n = len(self.q) - 1 - last
        self.q = self.q[last + 1:]
        assert n <= 15
        return "s_waitcnt lgkmcnt(%d)\n" % n

def ldump(A, vt, vl16, reg=11, reg2=None, off=0):
    A("s_memrealtime s[98:99]\ns_waitcnt lgkmcnt(0)\nv_lshrrev_b32 v%d, 2, v%d\ns_lshl_b32 s97, s%d, 10\ns_add_u32 s97, s97, %d" % (vt, vl16, sRole, DBGW + off))
    A("s_cmp_eq_u32 s%d, 0\ns_cselect_b32 s97, s97, 0x%x\nbuffer_store_dword v%d, v%d, %s, s97 offen" % (sW, OOBS, reg, vt, WS))
    if not off:
        for role, w0, lanes in ((0, 4, (0, 8, 40, 63)), (64, 9, (0, 8, 40, 63)), (255, 14, ())):
            l = A.lab('dd')
            A("s_cmp_lg_u32 s%d, %d\ns_cbranch_scc1 %s" % (sRole, role, l))
            for i, x in enumerate(lanes + (None,)):
                A(("v_readlane_b32 s96, v%d, %d" % (reg, x) if x is not None else "s_mov_b32 s96, s%d" % (98 if role == 255 else 28)) + "\ns_sub_u32 s96, s96, s30\nv_mov_b32 v250, s96\nv_mov_b32 v251, %d\nglobal_store_dword v251, v250, s[%d:%d]" % (4 * (w0 + i), pDbg, pDbg + 1))
            A(l + ":")
    if reg2: A("buffer_store_dword v%d, v%d, %s, s97 offen offset:512" % (reg2, vt, WS))
    A("v_mov_b32 v%d, s98\nv_writelane_b32 v%d, s31, 4" % (reg, reg))
    A("v_writelane_b32 v%d, s98, 0\nv_writelane_b32 v%d, s30, 1\nv_writelane_b32 v%d, s28, 3\nv_writelane_b32 v%d, s%d, 2\nbuffer_store_dword v%d, v%d, %s, s97 offen offset:256\ns_waitcnt vmcnt(0)" % (reg, reg, reg, reg, sBud, reg, vt, WS))

def leave(A, opt):
    if opt.get('wb'):
        l = A.lab('wb')
        A("s_cmp_lg_u32 s%d, %d\ns_cbranch_scc1 %s" % (sRole, opt['wb'], l))
        A("s_cmp_lg_u32 s%d, 0\ns_cbranch_scc1 %s\nbuffer_wbl2 sc1\ns_waitcnt vmcnt(0)\n%s:" % (sW, l, l))
    A("s_endpgm")
```

```python
from common import *
import math, struct, re
def f32(x): return struct.unpack('<I', struct.pack('<f', x))[0]

vL16, vXr, vXr2, vFl, vF, vT0, vT1, vSt, vSt2, vL8 = range(1, 11)
vFr = 171
vDm = vSt2
vOne = 0
XF = 12
ACC = 36
PK = 68
EX = 84
sI, sLc, sSc, sLn, sSn, sSrc, sFb, sRdy, sBuf, sT, sT2, sC0, sC1, sC2, sC3 = range(42, 57)
sO = [57, 58, 59, 60]
sPF, sPV = 61, 62
sMW, sSW, sTS = 63, 64, 65
sMir, sLast, sFrom, sTo = 100, 80, 81, 82
sL2, sS2, sW2 = 83, 84, 85
sBu2 = 94
sFm = 95
L_F = 147456
sE = 66

def mf(d, a, b, c=None): return "v_mfma_f32_32x32x16_bf16 %s, %s, %s, %s" % (v(d, 16), R(a, 4), R(b, 4), "0" if c is None else v(c, 16))
def mf8(d, a, b, c=None): return "v_mfma_f32_32x32x8_bf16 %s, %s, %s, %s" % (v(d, 16), v(a, 2), v(b, 2), "0" if c is None else v(c, 16))
def cvt(d, a, b): return "v_cvt_pk_bf16_f32 v%d, v%d, v%d" % (d, a, b)
def ld(n, d, va, so, off=0, srd=WS, fl='sc1'):
    return "buffer_load_dword%s %s, v%d, %s, s%d offen offset:%d %s" % ({1: '', 2: 'x2', 4: 'x4'}[n], v(d, n), va, srd, so, off, fl)
def st(n, d, va, so, off=0, srd=WS, fl='sc1'):
    return "buffer_store_dword%s %s, v%d, %s, s%d offen offset:%d %s" % ({1: '', 2: 'x2', 4: 'x4'}[n], v(d, n), va, srd, so, off, fl)
def lin(dst, base, terms, t=sT):
    L = ["s_mov_b32 s%d, %d" % (dst, base)]
    for r, k in terms:
        if k == 1: L.append("s_add_u32 s%d, s%d, s%d" % (dst, dst, r))
        else: L += ["s_mul_i32 s%d, s%d, %d" % (t, r, k), "s_add_u32 s%d, s%d, s%d" % (dst, dst, t)]
    return L
def wreg(n):
    return [256 + 4 * i if i < 64 else 256 - 4 * (n - i) for i in range(n)]

WFL = ['']
def load_w(A, ptr, nbytes, sBase, vSrc, rows_per_instr, stride, ipw, nunits, nslots, reads, rev=None, hook=None):
    ub = 4 * ipw * 1024
    temp_srd(A, ptr, nbytes)
    A("s_mul_i32 s%d, s%d, %d\ns_add_u32 s%d, s%d, s%d\ns_mul_i32 s%d, s%d, %d" % (sT, sW, ipw * rows_per_instr * stride, sBase, sBase, sT, sT2, sW, ipw * 1024))
    def run(order):
        def issue(n):
            for i in range(ipw):
                A("s_add_u32 m0, s%d, %d\ns_add_u32 s%d, s%d, %d" % (sT2, (n % nslots) * ub + 1024 * i, sT, sBase, (order[n] * 4 * ipw + i) * rows_per_instr * stride))
                A("buffer_load_dwordx4 v%d, %s, s%d offen %s lds" % (vSrc, TS, sT, WFL[0]))
        d = nslots - 1
        for n in range(min(d, nunits)): issue(n)
        for n in range(nunits):
            A("s_waitcnt vmcnt(%d) lgkmcnt(0)\ns_barrier" % (ipw * (min(n + d, nunits) - n - 1)))
            if n + d < nunits: issue(n + d)
            if n == nunits - 3: peek_ready(A, vF)
            reads(order[n], (n % nslots) * ub)
            if hook and n: hook(n == 1, order[n - 1])
        A("s_waitcnt lgkmcnt(0)")
        if hook: hook(False, order[-1])
    if rev is not None:
        l, e = A.lab('rev'), A.lab('rev')
        A("s_cmp_lg_u32 s%d, 0\ns_cbranch_scc1 %s" % (rev, l)); run(list(range(nunits))); A("s_branch %s\n%s:" % (e, l)); run(list(range(nunits))[::-1]); A(e + ":")
    else: run(list(range(nunits)))
    peek_take(A, vF)
    A("s_waitcnt lgkmcnt(0)\ns_barrier")

def tr_addr(A, dst, rowb, tab, hi_rows=8, t0=vT0, t1=vT1):
    if isinstance(tab, list):
        lo = sum(x << (8 * i) for i, x in enumerate(tab[:4])); hi = sum(x << (8 * i) for i, x in enumerate(tab[4:]))
        A("v_mov_b32 v%d, 0x%x\nv_mov_b32 v%d, 0x%x" % (t0, lo, t1, hi))
    else: A("v_mov_b32 v%d, s%d\nv_mov_b32 v%d, s%d" % (t0, tab[0], t1, tab[1]))
    A("v_and_b32 v%d, 16, v0\nv_cmp_eq_u32 vcc, 0, v%d\nv_cndmask_b32 v%d, v%d, v%d, vcc" % (dst, dst, t0, t1, t0))
    A("v_and_b32 v%d, 3, v0\nv_lshlrev_b32 v%d, 3, v%d\nv_bfe_u32 v%d, v%d, v%d, 8" % (t1, t1, t1, t0, t0, t1))
    A("v_lshrrev_b32 v%d, 5, v0\nv_mul_u32_u24 v%d, %d, v%d\nv_bfe_u32 v%d, v0, 2, 2\nv_add_u32 v%d, v%d, v%d" % (t1, t1, hi_rows, t1, dst, dst, dst, t1))
    A("v_mul_u32_u24 v%d, %d, v%d\nv_lshl_add_u32 v%d, v%d, 3, v%d" % (dst, rowb, dst, dst, t0, dst))
TAB_T = [0, 2, 1, 3, 4, 6, 5, 7]
TAB_P = [0, 2, 4, 6, 1, 3, 5, 7]
TAB_N = [0, 1, 2, 3, 4, 5, 6, 7]
def tabw(t): return sum(x << (8 * i) for i, x in enumerate(t[:4])), sum(x << (8 * i) for i, x in enumerate(t[4:]))

def ident(A, dst, x, t0=vT0, t1=vT1):
    A("v_and_b32 v%d, 1, v0\nv_lshlrev_b32 v%d, 4, v%d\nv_mov_b32 v%d, 0x3f80\nv_lshlrev_b32 v%d, v%d, v%d" % (t0, t0, t0, t1, t1, t0, t1))
    A("v_bfe_u32 v%d, v0, 4, 1\nv_cmp_eq_u32 vcc, %d, v%d\nv_cndmask_b32 v%d, 0, v%d, vcc" % (t0, x, t0, t1, t1))
    A("v_bfe_u32 v%d, v0, 2, 1\nv_lshrrev_b32 v%d, 5, v0\nv_cmp_eq_u32 vcc, v%d, v%d\nv_cndmask_b32 v%d, 0, v%d, vcc" % (t0, dst, t0, dst, t1, t1))
    A("v_bfe_u32 v%d, v0, 3, 1\nv_bfe_u32 v%d, v0, 1, 1\nv_lshl_add_u32 v%d, v%d, 1, v%d" % (t0, dst, t0, t0, dst))
    for d in range(4): A("v_cmp_eq_u32 vcc, %d, v%d\nv_cndmask_b32 v%d, 0, v%d, vcc" % (d, t0, dst + d, t1))

sTab, sCn = 86, 90
def table(lead):
    n0, last, tot = (tuple(lead) + (64,))[:3] if isinstance(lead, tuple) else (lead, 64 - lead, 64)
    T = [0] * n0; done = n0
    for i in range(64):
        T.append(1)
        want = min(tot, n0 + ((i + 1) * (tot - n0) + last - 1) // last)
        T += [0] * (want - done); done = want
    assert len(T) == 64 + tot and sum(T) == 64
    return T
def sched_init(lead):
    if lead is None: return ["s_mov_b32 s%d, 63" % sLast]
    T = table(lead); b = sum(x << i for i, x in enumerate(T))
    return ["s_mov_b32 s%d, 0x%x" % (sTab + i, (b >> (32 * i)) & 0xffffffff) for i in range(4)] + ["s_mov_b64 %s, 0" % s(sCn, 2), "s_mov_b32 s%d, %d" % (sLast, len(T) - 1)]
def sched(lead, skip=None):
    if lead is None: return ["s_add_u32 s%d, s%d, 2" % (sS2, sI)]
    sLn, sSn, sT = sL2, sS2, sT2
    L = ["s_cmp_eq_u32 s%d, 62\ns_cselect_b64 %s, %s, %s" % (sI, s(sTab, 2), s(sTab + 2, 2), s(sTab, 2)),
         "s_and_b32 s%d, s%d, 1\ns_cselect_b32 s%d, s%d, s%d" % (sLn, sTab, sSn, sCn + 1, sCn),
         "s_lshr_b64 %s, %s, 1" % (s(sTab, 2), s(sTab, 2)), "s_add_u32 s%d, s%d, s%d" % (sCn + 1, sCn + 1, sLn),
         "s_xor_b32 s%d, s%d, 1" % (sT, sLn), "s_add_u32 s%d, s%d, s%d" % (sCn, sCn, sT)]
    if skip:
        L += ["s_cmp_eq_u32 s%d, %d\ns_cselect_b32 s%d, %d, s%d" % (sCn, skip[0], sCn, skip[0] + skip[1], sCn),
              "s_lshl_b32 s%d, s%d, 8" % (sT, sLc), "s_add_u32 s%d, s%d, s%d" % (sT, sT, sPV),
              "s_cmp_eq_u32 s%d, s%d\ns_cselect_b32 s%d, s%d, s%d" % (sT, sFrom, sPV, sTo, sPV)]
    return L

def gstamp(A, opt, k, flush=False):
    if opt.get('gstamp'):
        A("%s s[98:99]\ns_waitcnt lgkmcnt(0)\nv_writelane_b32 v11, s98, %d" % ('s_memtime' if opt.get('lcyc') else 's_memrealtime', k))
        if flush: A("s_memtime s[98:99]\ns_waitcnt lgkmcnt(0)\nv_writelane_b32 v11, s98, 6")
        if flush: A("v_writelane_b32 v11, s%d, 7\nv_lshrrev_b32 v%d, 1, v%d\ns_mov_b64 exec, 0xff\nbuffer_store_dword v11, v%d, %s, s%d offen\ns_mov_b64 exec, -1\ns_add_u32 s%d, s%d, 32" % (sRdy, vT0, vL8, vT0, WS, sTS, sTS, sTS))

class Flow:
    def __init__(self, A, opt, name, ndma, n1, lead, src, flagbase, local, skip=None):
        self.A, self.opt, self.name, self.ndma, self.n1 = A, opt, name, ndma, n1
        self.skip = skip
        self.sums = 1 if flagbase in (FX, FX + 5 * FW) else 0
        if self.sums:
            A("s_lshl_b32 s%d, s%d, 6\ns_sub_u32 s%d, 80, s%d" % (sT, sW, sT, sT))
            A("v_mov_b32 v%d, 0x%x\nv_cmp_gt_i32 vcc, s%d, v0\nv_cndmask_b32 v%d, v%d, v%d, vcc" % (vDm, WS_SIZE, sT, vDm, vDm, vL16))
        self.post = "s_barrier\nv_mov_b32 v%d, s%d\n" % (vT1, sPV) + st(1, vT1, vOne, sPF) + " ; P" + ("\n" + st(1, vT1, vOne, sPF, LOC, fl='') + " ; P" if local else "")
        self.np = 2 if local else 1
        A("v_lshlrev_b32 v%d, 2, v0\nv_add_u32 v%d, %d, v%d\ns_lshl_b32 s%d, s%d, 8\ns_add_u32 s%d, s%d, %d" % (vFr, vFr, L_F, vFr, sFm, sW, sFm, sFm, L_F))
        A("v_or_b32 v0, s%d, v0\nv_lshlrev_b32 v0, 24, v0\nv_min_u32 v0, 0x1000000, v0\nv_lshlrev_b32 v0, 4, v0" % sW)
        self.fload = "s_xor_b32 s%d, s%d, 1024\ns_mov_b32 m0, s%d\nv_xor_b32 v%d, 1024, v%d\nbuffer_load_dword v%d, %s, s%d offen sc1 lds ; F" % (sFm, sFm, sFm, vFr, vFr, vFl, WS, sFb)
        self.fread = "ds_read_b32 v%d, v%d" % (vF, vFr)
        base, terms = src
        self.nxt = sched(lead, skip) + lin(sW2, base, [({'L': sL2, 'S': sS2}.get(r, r), k) for r, k in terms] + [(sMW, 1)], sT2)
        self.off = ["s_mov_b32 s%d, 0x%x" % (r, OOBS) for r in sO + [sPF]]
        self.rot = "s_mov_b32 s%d, s%d\ns_mov_b32 s%d, s%d\ns_mov_b32 s%d, s%d\ns_mov_b32 s%d, s%d\ns_mov_b32 s%d, s%d\ns_add_u32 s%d, s%d, 1" % (sLc, sLn, sSc, sSn, sSn, sS2, sLn, sL2, sSW, sW2, sI, sI)
        self.lget = ["s_memtime s[98:99]" if opt.get('lcyc') else "s_memrealtime s[98:99]"] if opt.get('lstamp') else []
        self.lput = ["s_lshr_b32 m0, s%d, %d" % (sI, 0 if lead is None else 1), "v_writelane_b32 v11, s98, m0"] if opt.get('lstamp') else []
        if self.lput and lead is not None: self.lput += ["s_add_u32 s97, s%d, 1" % sI, "s_bfe_u32 m0, s97, 0x60001", "v_writelane_b32 v170, s98, m0"]
        self.decide = [self.missing(sSn) + "\ns_cselect_b32 s%d, 0, 1" % sRdy,
                       "s_cmp_lt_u32 s%d, s%d\ns_cselect_b32 s%d, s%d, 0" % (sI, sLast, sRdy, sRdy),
                       "s_cmp_lg_u32 s%d, 0\ns_cselect_b32 s%d, s%d, 0x%x\ns_xor_b32 s%d, s%d, s%d" % (sRdy, sSrc, sSW, OOBS, sBuf, sBuf, sC3)]
        A("s_lshl_b32 s%d, s%d, 10\ns_mov_b32 s%d, s%d\ns_mov_b32 s%d, -2\ns_mov_b32 s%d, 0\ns_mov_b32 s%d, %d" % (sMW, sW, sBuf, sMW, sI, sPV, sFb, flagbase))
        A("s_cmp_eq_u32 s%d, 0\ns_cselect_b32 s%d, s%d, 0x%x" % (sW, sFb, sFb, OOBS))
        A("s_mov_b32 s%d, %d\ns_mov_b32 s%d, %d" % (sC3, 4096 * ndma, sC2, 4096 * ndma))
        if opt.get('gstamp'):
            for l in lin(sTS, DBGW + 524288 - 128 * 4096, [(sRole, 4096)]): A(l)
            A("s_cmp_eq_u32 s%d, 0\ns_cselect_b32 s%d, s%d, 0x%x" % (sW, sTS, sTS, OOBS))
        if lead is None: A("s_mov_b32 s%d, s%d" % (sL2, sLn))
        for l in sched_init(lead): A(l)
        if skip:
            a, n = skip; l = A.lab('main')
            A("s_mov_b32 s%d, %d\ns_mov_b32 s%d, %d\ns_mov_b32 s%d, 1\ns_mov_b32 s%d, 1\ns_cmp_eq_u32 s%d, 0\ns_cbranch_scc1 %s" % (sFrom, a, sTo, a + n, sLc, sLn, sMir, l))
            A("s_mov_b64 %s, 0\ns_mov_b32 s%d, %d\ns_mov_b32 s%d, %d\ns_mov_b32 s%d, %d\ns_mov_b32 s%d, 64" % (s(sTab, 2), sCn, a, sLast, n - 1, sFrom, a + n, sTo))
            A("s_add_u32 s%d, s%d, %d\ns_mov_b32 s%d, s%d\ns_mov_b32 s%d, %d\n" % (sC1, sC1, 2 * 72 * FW, sPF, sC1, sPV, a) + self.post)
            A(l + ":")
        for l in self.nxt + [self.rot] + self.nxt + self.off: A(l)
        A("s_mov_b32 s%d, s%d\ns_mov_b32 s%d, 0\ns_mov_b32 s%d, 0" % (sSrc, sSW, sRdy, sBu2))
    def missing(self, seg):
        return "v_cmp_ge_i32 vcc, s%d, v%d\ns_cmp_eq_u32 s%d, 0\ns_cselect_b32 s%d, vcc_lo, vcc_hi\ns_cmp_lg_u32 s%d, 0" % (seg, vF, sLn, sT, sT)
    def see(self, n):
        return "s_waitcnt vmcnt(%s)\ns_barrier\n%s\ns_waitcnt lgkmcnt(0)\n" % (n, self.fread)
    def dma(self):
        return ["s_add_u32 m0, s%d, %d\ns_add_u32 s%d, s%d, %d\nbuffer_load_dwordx4 v%d, %s, s%d offen sc1 lds ; %s" %
                (sBuf, 4096 * i, sT, sSrc, 4096 * i, vDm if self.sums and i == self.ndma - 1 else vL16, WS, sT, 'D' if i < self.n1 else 'E') for i in range(self.ndma)]
    def counts(self, L, i0, tail=()):
        kind = lambda l: l[-1] if ' ; ' in l else 'S' if 'store' in l else 'L'
        ops = [kind(l) for l in L[i0:] if l.startswith('buffer_')]; seen = 0
        for i in range(i0, len(L)):
            if L[i].startswith('buffer_'): seen += 1
            m = re.search(r'@(.)', L[i])
            if m: L[i] = L[i].replace(m.group(0), str(seen if m.group(1) == '@' else (ops + list(tail) + ops[:seen])[::-1].index(m.group(1))))
        return (ops + list(tail))[::-1]
    def drain(self, nstores, tag, entry):
        A = self.A; drain, spin, fin = ["L_%s_%s%s" % (self.name, x, tag) for x in ('drain', 'spin', 'fin')]
        n2 = self.ndma - self.n1
        A("s_mov_b32 s%d, s%d\ns_cmp_eq_u32 s%d, s%d\ns_cbranch_scc1 %s" % (sSrc, sSW, sI, sLast, fin))
        A(self.see(nstores) + self.missing(sSn) + "\ns_cbranch_scc1 " + drain)
        for l in self.dma(): A(l)
        A("s_waitcnt vmcnt(%d)\n" % self.ndma + self.post)
        for l in self.off: A(l)
        A("s_waitcnt vmcnt(%d)\ns_branch %s" % (n2 + self.np, entry))
        A(drain + ":")
        A("s_waitcnt vmcnt(0)\n" + self.post)
        for l in self.off: A(l)
        A(spin + ":")
        if self.opt.get('gsleep', 1): A("s_sleep %d" % self.opt.get('gsleep', 1))
        A(self.fload + "\ns_add_u32 s%d, s%d, 1\ns_cmp_lt_u32 s%d, %d\ns_cselect_b32 s%d, s%d, -2" % (sBu2, sBu2, sBu2, BUDGET, sT2, sSn))
        A(self.see(0) + self.missing(sT2) + "\ns_cbranch_scc1 " + spin)
        for l in self.dma(): A(l)
        A("s_waitcnt vmcnt(%d)\ns_branch %s" % (n2, entry))
        A(fin + ":\ns_waitcnt vmcnt(0)\n" + self.post)
        if self.skip: A("s_cmp_lg_u32 s%d, 0\ns_cbranch_scc1 L_helper_done" % sMir)
        if self.opt.get('lstamp'): ldump(A, vT0, vL16, 11, 170)
        if self.name == 'bo': A("s_endpgm")
        else: leave(A, self.opt)
FLIP = ["v_add_u32 v%d, s%d, v%d" % (vXr, sC2, vXr), "v_add_u32 v%d, s%d, v%d" % (vXr2, sC2, vXr2), "s_sub_u32 s%d, 0, s%d" % (sC2, sC2), "s_add_u32 s%d, s%d, 1" % (sPV, sSc)]
def groups(L, n): return ["\n".join(L[i:i + n]) for i in range(0, len(L), n)]
REST = "s_waitcnt vmcnt(@@)\ns_barrier"

def skeleton(A, opt, name, nk, nt, W, ndma, n1, lead, src, flagbase, outs, stores, tail, fpos, xread=None, extra=None, late=None, pre=0, local=True, mid=None):
    Z = []
    fl = Flow(A, opt, name, ndma, n1, lead, src, flagbase, local)
    top, top2 = "L_%s_top" % name, "L_%s_top2" % name
    A("s_branch L_%s_spin" % name)
    A(top + ":")
    i0 = len(A.L)
    A("s_waitcnt vmcnt(@D)")
    A(top2 + ":\ns_barrier")
    gstamp(A, opt, 0)
    if xread is None: xread = lambda k, d: ["ds_read_b128 %s, v%d offset:%d" % (v(d, 4), vXr, k * 1024)]
    ring = 4 if nt == 2 else 6
    Q = Lgkm()
    for k in range(ring - 1):
        for l in xread(k, XF + 4 * k): A(Q.op(k, l))
    pE, pD, pP, pF = fpos
    for l in stores + ([fl.fload] if pE == 0 else []) + [fl.rot] + fl.lget + fl.nxt: A(l)
    nm = nk * nt; F = {}
    def put(p, L, step=1):
        for l in L:
            F.setdefault(min(p, nm - 1), []).append(l); p += step
        return p
    put(0, extra() if extra else [])
    if pE: put(pE, [fl.fload])
    w = "s_waitcnt vmcnt(@F)\n"
    if pE is None: w = "s_cmp_eq_u32 s%d, 0\ns_cbranch_scc1 L_%s_have\n%sL_%s_have:\n" % (sRdy, name, w, name)
    p = put(pD, [lambda Q: w + "s_barrier\n" + Q.op('f', fl.fread), "", "", lambda Q: Q.wait('f') + fl.decide[0]] + fl.decide[1:])
    if mid:
        put(pD + 1, [fl.fload])
        q = put(pP, [lambda Q: "s_waitcnt vmcnt(@F)\n" + fl.post + "\n" + Q.op('g', fl.fread), "", "", lambda Q: Q.wait('g') + mid[0]])
        n = (q - p + 1) // 2; d = fl.dma()
        put(p, d[:n], 2); p = put(put(q, mid[1], 2), d[n:], 2); assert p <= pF + 1
        put(q + 1, groups(outs, 4), 2)
    else:
        p = put(p, fl.dma(), 2 if nm - p >= 2 * ndma else 1)
        put(pP, ["s_waitcnt vmcnt(@S)\n" + fl.post] + groups(outs, 4))
    put(pF, [fl.fload])
    kr = 4 * n1 - ring + 1
    if late: put(max(late[0], kr * nt), late[1])
    for k in range(nk):
        x = XF + 4 * (k % ring)
        for t in range(nt):
            A((Q.wait(k) if t == 0 else "") + mf(ACC + 16 * t, W[k * nt + t], x, ACC + 16 * t if k else None))
            if t == 0 and k == kr and n1 < ndma: A(REST)
            if t == 0 and k + ring - 1 < nk:
                for l in xread(k + ring - 1, XF + 4 * ((k + ring - 1) % ring)): A(Q.op(k + ring - 1, l))
            for l in F.get(k * nt + t, []): A(l(Q) if callable(l) else l)
    ops = fl.counts(A.L, i0, 'S' * pre)
    nF = min(ops.index('F'), ops.index('E' if n1 < ndma else 'D'))
    for l in FLIP + fl.lput: A(l)
    gstamp(A, opt, 1)
    tail(A, Z, fl, lambda k: ops.index(k) - pre)
    gstamp(A, opt, 2, True)
    A("s_cmp_lg_u32 s%d, 0\ns_cbranch_scc1 %s" % (sRdy, top))
    for l in stores: A(l)
    fl.drain(len(stores) + pre, '', top2)
    for z in Z: A(z)

def mf16(d, a, b, c=None): return "v_mfma_f32_16x16x32_bf16 %s, %s, %s, %s" % (v(d, 4), R(a, 4), R(b, 4), "0" if c is None else v(c, 4))
def stream(A, opt, name, nk, nt, W, orient, ndma, n1, lead, src, flagbase, outs, epi, XR_, AC, ring, dist, nbar, fpos, late=None, local=True, skip=None):
    fl = Flow(A, opt, name, ndma, n1, lead, src, flagbase, local, skip)
    A("s_branch L_%s_spin1" % name)
    nf = 2 * nk; nm = nf * nt
    assert (2 * nf) % ring == 0
    acc = lambda p, m, t: AC + 8 * nt * p + 4 * (nt * m + t)
    slot = lambda p, f: XR_ + 4 * ((f + p * nf) % ring)
    def rd(p, f):
        o = (f >> 1) * 2048 + (f & 1) * 256
        return "ds_read_b128 %s, v%d offset:%d" % (v(slot(p, f), 4), vXr if o < 65536 else vXr2, o % 65536)
    def mm(p, f, t):
        k, m = f >> 1, f & 1; w, x = W[k * nt + t], slot(p, f)
        return mf16(acc(p, m, t), w if orient == 'T' else x, x if orient == 'T' else w, acc(p, m, t) if k else None)
    A.uid += 100; S = Asm(); S.uid = A.uid + 5000; fl.A = S
    nst = sum('buffer_store' in l for l in epi(lambda m, t: acc(0, m, t), False))
    for p in range(2):
        body, entry, slow = ["L_%s_%s%d" % (name, x, p) for x in ('body', 'entry', 'slow')]
        S(entry + ":\ns_barrier")
        for f in range(dist): S(rd(p, f))
        S("s_branch " + body)
        A(body + ":")
        gstamp(A, opt, 0)
        Q = Lgkm()
        for f in range(dist): Q.op(f, '')
        FS = [[] for _ in range(nm)]; FV = [[] for _ in range(nm)]
        fixs = lambda g: 1 if g % nt == nt - 1 else 0
        fixv = lambda g: 1 if g % nt == 0 and g // nt + dist < nf else 0
        lim = (nf - nbar) * nt - 1
        FS[lim - 1] += ['', '']
        gr = (4 * n1 - dist) * nt
        if n1 < ndma: FS[gr] += REST.split('\n')
        def put(g, L, step=0):
            pv = False
            for l in L:
                if isinstance(l, int): g += l; continue
                sc = l[0] if isinstance(l, tuple) else l.startswith('s_'); l = l[1] if isinstance(l, tuple) else l
                if sc and pv and not step: g += 1
                wt = lambda x: 2 if isinstance(x, str) and x.startswith(('v_rsq', 'buffer_store')) else 1
                w = wt(l); cnt = lambda X: sum(wt(x) for x in X)
                vm = isinstance(l, str) and l.startswith('buffer_')
                while g < lim and (len(FS[g]) + fixs(g) + cnt(FV[g]) + fixv(g) + w > 3 or (not sc and cnt(FV[g]) + fixv(g) + w > 2) or (vm and FV[g])): g += 1
                assert g < lim, (name, l)
                (FS if sc else FV)[g].append(l); pv = not sc
                if pv: g += step
            return g
        flat = lambda L: "\n".join(L).split('\n')
        pE, pD, pP, pF = fpos
        rdf = (False, lambda Q: Q.op('f', fl.fread))
        gf = put(0, [rdf]) if pD == 'B' else put(gr + 1, [rdf]) if pD == 'R' else put(pD, ["s_waitcnt vmcnt(@F)", "s_barrier", rdf])
        ge = put(1, epi(lambda m, t: acc(1 - p, m, t), False))
        g = put(0, flat(fl.lget + [fl.rot]))
        dec = flat(fl.decide)
        g = put(max(g + 1, gf + 6), [(True, lambda Q: Q.wait('f')), dec[0], 2] + dec[1:])
        g = max(g, pE or 0)
        assert pP == 'R' or pP > g
        gd0 = g
        for i, d in enumerate(fl.dma()):
            d = d.split('\n'); g = put(g + 1, d[:2]); g = put(max(g, getattr(put, 'last', -9) + opt.get('dstep_' + name[0], 4 if name == 'leaf' else 6)), d[2:]); put.last = g
            if i + 1 == -pF: g = put(g + 1, flat([fl.fload])); assert i + 1 >= n1
        if pF >= 0: g = put(max(pF, g + 1), flat([fl.fload]))
        gm = g
        sp = lambda k: [(True, "%s s[98:99]\ns_waitcnt lgkmcnt(0)\nv_writelane_b32 v11, s98, %d" % ('s_memtime' if opt.get('lcyc') else 's_memrealtime', k))] if opt.get('gstamp') == 2 else []
        put(opt.get('sp3', ge + 1), sp(3))
        if pP == 'R':
            assert gr > ge and gr > gd0
            FS[gr][0] = "s_waitcnt vmcnt(@S)"; g = put(gr + 1, flat([fl.post])[1:] + outs + FLIP[3:])
        else: g = put(max(pP, ge + 1), sp(4) + ["s_waitcnt vmcnt(@S)"] + sp(5) + flat([fl.post]) + outs + FLIP[3:])
        g = put(max(g, gm) + 1, flat(fl.nxt) + fl.lput); assert g < (nf - dist - 1) * nt
        if late: put(max(late[0], ge + 1, gr + 1 if n1 < ndma else 0), late[1])
        put((nf - dist - 1) * nt + 1, FLIP[:3])
        i0 = len(A.L)
        A(Q.wait(0))
        for f in range(nf - nbar):
            for t in range(nt):
                g = f * nt + t
                if g == lim:
                    gstamp(A, opt, 1); gstamp(A, opt, 2, True)
                    A("s_cmp_eq_u32 s%d, 0\ns_cbranch_scc1 %s" % (sRdy, slow))
                A(mm(p, f, t))
                if t == nt - 1 and f + 1 < nf - nbar: A(Q.wait(f + 1))
                for l in FS[g]: A(l(Q) if callable(l) else l)
                if t == 0 and f + dist < nf: A(Q.op(f + dist, rd(p, f + dist)))
                for l in FV[g]: A(l(Q) if callable(l) else l)
        A("s_waitcnt vmcnt(@%s) lgkmcnt(0)\ns_barrier" % ('F' if pD == 'B' else 'D'))
        ops = fl.counts(A.L, i0)
        nx = list(range(dist))
        free = lambda f, done: (nf + f - ring) < done
        for f in range(nf - nbar, nf):
            for t in range(nt):
                if t == 0 and nx and free(nx[0], f): A(rd(1 - p, nx.pop(0)))
                A(mm(p, f, t))
                if nx and free(nx[0], f + (1 if t == nt - 1 else 0)): A(rd(1 - p, nx.pop(0)))
        assert not nx
        if p == 1: A("s_branch L_%s_body0" % name)
        S(slow + ":\n" + mm(p, nf - nbar - 1, nt - 1) + "\ns_waitcnt lgkmcnt(0)")
        for f in range(nf - nbar, nf):
            for t in range(nt): S(mm(p, f, t))
        nn = S.lab('nonext')
        S("s_mov_b32 s%d, s%d\ns_cmp_eq_u32 s%d, s%d\ns_cbranch_scc1 %s" % (sSrc, sSW, sI, sLast, nn))
        S(fl.see(min(ops.index('F'), ops.index('E' if n1 < ndma else 'D'))) + fl.missing(sSn) + "\ns_cbranch_scc1 " + nn)
        for l in fl.dma() + epi(lambda m, t: acc(p, m, t), True) + fl.off[:-1]: S(l)
        S("s_waitcnt vmcnt(%d)\ns_branch L_%s_entry%d" % (nst + ndma - n1, name, 1 - p))
        S(nn + ":\n" + fl.fload)
        for l in epi(lambda m, t: acc(p, m, t), True): S(l)
        fl.drain(nst, str(p), "L_%s_entry%d" % (name, 1 - p))
    A.L.extend(S.L)

def row_stats(SX, n):
    L = ["v_add_f32 v%d, v%d, v%d" % (SX + i, SX + i, SX + n * p + i) for p in range(1, 5) for i in range(n)]
    L += ["v_mul_f32 v%d, 0x%x, v%d" % (SX + i, f32(1 / 640 if i & 1 else -1 / 640), SX + i) for i in range(n)]
    for op in ("v_fma_f32 v{1}, -v{0}, v{0}, v{1}", "v_max_f32 v{1}, 0, v{1}", "v_add_f32 v{1}, 0x%x, v{1}" % f32(1e-5), "v_rsq_f32 v{1}, v{1}"):
        L += [op.format(SX + i, SX + i + 1) for i in range(0, n, 2)]
    return L

def two_streams(A, lstride):
    A("v_lshrrev_b32 v%d, 5, v0\nv_mul_u32_u24 v%d, %d, v%d\nv_add_u32 v%d, v%d, v%d" % (vT0, vT0, lstride, vT0, vFl, vFl, vT0))
def common_init(A, ndma, nflag):
    XB = 4096 * ndma
    A("v_lshlrev_b32 v%d, 3, v0\nv_mov_b32 v%d, v%d\nv_add_u32 v%d, 0x10000, v%d" % (vL8, vXr, vL16, vXr2, vL16))
    A("v_and_b32 v%d, 31, v0\nv_min_u32 v%d, %d, v%d\nv_lshlrev_b32 v%d, 8, v%d" % (vFl, vFl, nflag - 1, vFl, vFl, vFl))

def hold(A, opt):
    if opt.get('hold', 1):
        l, l2 = A.lab('hold'), A.lab('hold')
        A("s_cmp_lg_u32 s%d, 0\ns_cbranch_scc1 %s\nv_mov_b32 v%d, %d" % (sW, l, vT0, DBG_READY))
        wait_word(A, vT0, opt.get('nready', NREADY), 32)
        if opt.get('hold', 1) > 1:
            A(l2 + ":\ns_sleep 16\nbuffer_load_dword v%d, off, %s, 0 offset:%d sc1\ns_add_u32 s%d, s%d, 1\ns_waitcnt vmcnt(0)\nv_readfirstlane_b32 s3, v%d" % (vT0, WS, FX, sBud, sBud, vT0))
            A("s_cmp_ge_u32 s%d, %d\ns_cbranch_scc1 %s\ns_cmp_lt_i32 s3, %d\ns_cbranch_scc1 %s" % (sBud, BUDGET, l, opt['hold'], l2))
        A(l + ":\ns_barrier")
WHERE = {}
def nearby(A, opt, producer, keys=None):
    if keys is None:
        A("s_lshr_b32 s%d, s%d, 5" % (sT, sRole)); keys = (sT, {g: g for g in range(4, 8)})
    A("s_mov_b64 vcc, 0")
    for k, g in keys[1].items():
        m = sum(1 << l for l in range(64) if producer(k, l) and WHERE[producer(k, l)] >> 5 == g)
        if m: A("s_cmp_eq_u32 s%d, %d\ns_cselect_b32 vcc_lo, 0x%x, vcc_lo\ns_cselect_b32 vcc_hi, 0x%x, vcc_hi" % (keys[0], k, m & 0xffffffff, m >> 32))
    A("s_cmp_eq_u32 s%d, 0\ns_cselect_b32 s%d, %d, 0\nv_mov_b32 v%d, s%d\nv_cndmask_b32 v%d, 0, v%d, vcc\nv_add_u32 v%d, v%d, v%d" % (sMix, sT, LOC, vT0, sT, vT0, vT0, vFl, vFl, vT0))
def leaf_index(opt, ks, ns): return 5 * ns + ks if opt.get('byns') else 5 * ks + ns
def tr16(A, dst, rowb):
    A("v_lshrrev_b32 v%d, 4, v0\nv_bfe_u32 v%d, v0, 2, 2\nv_lshl_add_u32 v%d, v%d, 3, v%d\nv_mul_u32_u24 v%d, %d, v%d\nv_and_b32 v%d, 3, v0" % (vT0, dst, dst, vT0, dst, dst, rowb, dst, vT0))
def x16(A):
    A("v_and_b32 v%d, 0xf0, v%d\nv_lshrrev_b32 v%d, 4, v0\nv_lshl_add_u32 v%d, v%d, 9, v%d\nv_mov_b32 v%d, v%d" % (vSt2, vL16, vT0, vSt, vT0, vSt2, vXr, vSt))

def qkv_role(A, opt, sIdx):
    sM, sU, sHd, sTh, sBase, sP = sE, sE + 1, sE + 2, sE + 3, sE + 4, sE + 6
    XR_, AC, PK_, CS, SX, SV = 12, 28, 92, 108, 124, 144
    L_SC = 2 * 45056
    A("L_role_qkv:")
    A("s_mul_i32 s%d, s%d, 43\ns_lshr_b32 s%d, s%d, 10\ns_mul_i32 s%d, s%d, 24\ns_sub_u32 s%d, s%d, s%d" % (sM, sIdx, sM, sM, sT, sM, sU, sIdx, sT))
    A("s_lshl_b32 s%d, s%d, 9\ns_lshl_b32 s%d, s%d, 2\ns_add_u32 s%d, s%d, s%d" % (sBase, sU, sU, sU, sU, sU, sW))
    A("s_mul_i32 s%d, s%d, 171\ns_lshr_b32 s%d, s%d, 9\ns_mul_i32 s%d, s%d, 3\ns_sub_u32 s%d, s%d, s%d" % (sHd, sU, sHd, sHd, sT, sHd, sTh, sU, sT))
    A("v_lshlrev_b32 v%d, 4, v0" % vL16)
    vS, vA, vB = 20, [21, 22, 23, 24], 25
    A("v_lshrrev_b32 v%d, 5, v0\nv_mul_u32_u24 v%d, %d, v%d\nv_add_u32 v%d, v%d, v%d" % (vS, vS, 12288 - 512, vS, vS, vS, vL16))
    tr16(A, vB, 512)
    for t in range(4):
        p, i = t >> 1, t & 1
        A("s_cmp_eq_u32 s%d, %d\ns_cselect_b32 s%d, s%d, 0\ns_cmp_eq_u32 s%d, 2\ns_cselect_b32 s%d, 3, 4\ns_cselect_b32 s%d, %d, %d" % (sTh, 2 - 2 * p, sT, sM, sT, sT, sT2, 32 * i, 8 * i))
        A("v_lshlrev_b32 v%d, s%d, v%d\nv_add3_u32 v%d, v%d, s%d, v%d" % (vA[t], sT, vT0, vA[t], vA[t], sT2, vB))
        A("s_lshl_b32 s%d, s%d, 7\ns_add_u32 s%d, s%d, %d\nv_add_u32 v%d, s%d, v%d" % (sT, sW, sT, sT, 64 * p, vA[t], sT, vA[t]))
    A("s_cmp_eq_u32 s%d, 1\ns_cselect_b32 s%d, s%d, s%d\ns_cselect_b32 s%d, s%d, s%d" % (sM, sP, pWk, pWq, sP + 1, pWk + 1, pWq + 1))
    A("s_cmp_eq_u32 s%d, 2\ns_cselect_b32 s%d, s%d, s%d\ns_cselect_b32 s%d, s%d, s%d" % (sM, sP, pWv, sP, sP + 1, pWv + 1, sP + 1))
    W = wreg(80)
    for d in range(4): A("v_mov_b32 v%d, 0x3f803f80" % (XR_ + d))
    def reads(u, b):
        for t in range(4):
            A("v_add_u32 v%d, %d, v%d" % (26 + t, b, vA[t]))
            for rd in range(2): A("ds_read_b64_tr_b16 %s, v%d offset:%d" % (R(W[4 * u + t] + 2 * rd, 2), 26 + t, 4 * rd * 512))
    load_w(A, sP, 640 * 6144 * 2, sBase, vS, 2, 12288, 4, 20, 9, reads, sMir if opt.get('helpers') and opt.get('qrev', 0) else None,
           lambda first, u: [A(mf16(CS + 4 * t, W[4 * u + t], XR_, None if first else CS + 4 * t) + '\n' + mf16(SV + 4 * t, XR_, W[4 * u + t], None if first else SV + 4 * t)) for t in range(4)])
    common_init(A, 11, 5); x16(A)
    A("v_add_u32 v%d, %d, v%d" % (vXr2, TILE, vSt2))
    for l in lin(sC0, QKV, [(sHd, QKV_HEAD), (sM, 12288), (sTh, 4096)]) + lin(sC1, FQ, [(sIdx, FW)]): A(l)
    src = (XS, [('L', 2 * 64 * XT), ('S', XT)]); two_streams(A, 2 * 5 * FW)
    outs = lin(sO[0], 0, [(sC0, 1), (sLc, LS['q']), (sSc, QKV_SEG)], sT2) + lin(sPF, 0, [(sC1, 1), (sLc, 72 * FW)], sT2)
    stats = [(False, lambda Q, p=p: Q.op('st', "ds_read_b128 %s, v%d offset:%d" % (v(SX + 4 * p, 4), vXr2, 256 * p))) for p in range(5)]
    stats += [10, (True, lambda Q: Q.wait('st'))] + row_stats(SX, 4)
    lead = opt.get('lead_q', 16); fpos = opt.get('fq', (54, 'B', 'R', -8)); n1 = opt.get('n1q', 7)
    A("s_cmp_eq_u32 s%d, 2\ns_cbranch_scc1 L_qkv_v" % sM)
    wait_ready(A, vT0, opt, True); nearby(A, opt, lambda k, l: ('s', (30 if l < 32 else 35) + min(l & 31, 4)))
    def epi_t(acc, fast):
        L = []
        for p in range(2):
            for m in range(2):
                d = PK_ + 4 * (2 * p + m)
                for i in range(2):
                    a, c = acc(m, 2 * p + i), CS + 4 * (2 * p + i)
                    if fast:
                        L += ["v_pk_fma_f32 %s, %s, %s, %s op_sel_hi:[1,0,1]" % (v(a + r, 2), v(c + r, 2), v(SX + 2 * m, 2), v(a + r, 2)) for r in (0, 2)]
                        L += ["v_pk_mul_f32 %s, %s, %s op_sel:[0,1] op_sel_hi:[1,1]" % (v(a + r, 2), v(a + r, 2), v(SX + 2 * m, 2)) for r in (0, 2)]
                    else:
                        L += ["v_fmac_f32 v%d, v%d, v%d" % (a + r, SX + 2 * m, c + r) for r in range(4)]
                        L += ["v_mul_f32 v%d, v%d, v%d" % (a + r, a + r, SX + 2 * m + 1) for r in range(4)]
                    L += [cvt(d + 2 * i, a, a + 1), cvt(d + 2 * i + 1, a + 2, a + 3)]
                L.append(st(4, d, vSt, sO[0], 2048 * p + 256 * m))
        return L
    stream(A, opt, 'qk', 20, 4, W, 'T', 11, n1, lead, src, FX, outs, epi_t, XR_, AC, 4, 3, 2, fpos, late=(60, stats), local=False, skip=opt.get('helpers'))
    A("L_qkv_v:")
    A("v_and_b32 v%d, 3, v0\nv_lshrrev_b32 v%d, 4, v0\nv_lshl_add_u32 v%d, v%d, 2, v%d\nv_lshlrev_b32 v%d, 4, v%d\nv_add_u32 v%d, %d, v%d" % (vXr2, vT0, vXr2, vT0, vXr2, vXr2, vXr2, vXr2, TILE, vXr2))
    wait_ready(A, vT0, opt, True); nearby(A, opt, lambda k, l: ('s', (30 if l < 32 else 35) + min(l & 31, 4)))
    qb = lambda b: "quad_perm:[%d,%d,%d,%d] row_mask:0xf bank_mask:0xf" % (b, b, b, b)
    def epi_n(acc, fast):
        L = []
        for t in range(4):
            for m in range(2):
                a = acc(m, t)
                L += ["v_fmac_f32_dpp v%d, v%d, v%d %s" % (a + b, SX + 2 * m, SV + 4 * t, qb(b)) for b in range(4)]
                L += ["v_mul_f32_dpp v%d, v%d, v%d %s" % (a + b, SX + 2 * m + 1, a + b, qb(b)) for b in range(4)]
                L += [cvt(PK_ + 4 * t + 2 * m, a, a + 1), cvt(PK_ + 4 * t + 2 * m + 1, a + 2, a + 3)]
            L.append(st(4, PK_ + 4 * t, vL16, sO[0], 1024 * t))
        return L
    stream(A, opt, 'v', 20, 4, W, 'N', 11, n1, lead, src, FX, outs, epi_n, XR_, AC, 4, 3, 2, fpos, late=(60, stats), local=False, skip=opt.get('helpers'))

def wo_src(A, sK0, sNs, vS, sBase):
    A("v_lshlrev_b32 v%d, 4, v0" % vL16)
    A("v_lshrrev_b32 v%d, 4, v0\nv_mul_u32_u24 v%d, %d, v%d\nv_add_u32 v%d, v%d, v%d" % (vS, vS, 1280 - 256, vS, vS, vS, vL16))
    for l in lin(sBase, 0, [(sK0, 1280), (sNs, 256)]): A(l)
def o_flags(A, sK0, K):
    A("s_mul_i32 s%d, s%d, 683\ns_lshr_b32 s%d, s%d, 17\ns_lshl_b32 s%d, s%d, 1" % (sT, sK0, sT, sT, sT, sT))
    A("s_add_u32 s%d, s%d, %d\ns_mul_i32 s%d, s%d, 683\ns_lshr_b32 s%d, s%d, 17\ns_lshl_b32 s%d, s%d, 1\ns_add_u32 s%d, s%d, 1" % (sT2, sK0, K - 64, sT2, sT2, sT2, sT2, sT2, sT2, sT2, sT2))
    A("v_and_b32 v%d, 31, v0\nv_add_u32 v%d, s%d, v%d\nv_min_u32 v%d, s%d, v%d\nv_lshlrev_b32 v%d, 8, v%d" % (vFl, vFl, sT, vFl, vFl, sT2, vFl, vFl, vFl))
def leaf_role(A, opt, sIdx):
    sNs, sKs, sK0, sBase = sE, sE + 1, sE + 2, sE + 4
    XR_, AC, PK_ = 12, 44, 76
    nk = KLEAF // 32; ndma = KLEAF // 64
    A("L_role_leaf:")
    hold(A, opt)
    A("s_mul_i32 s%d, s%d, 52\ns_lshr_b32 s%d, s%d, 8\ns_mul_i32 s%d, s%d, 5\ns_sub_u32 s%d, s%d, s%d\ns_mul_i32 s%d, s%d, %d" % (sKs, sIdx, sKs, sKs, sT, sKs, sNs, sIdx, sT, sK0, sKs, KLEAF))
    vS, vA = 20, 21
    wo_src(A, sK0, sNs, vS, sBase); tr16(A, vA, 256)
    A("v_lshl_add_u32 v%d, v%d, 4, v%d\ns_lshl_b32 s%d, s%d, 6\nv_add_u32 v%d, s%d, v%d" % (vA, vT0, vA, sT, sW, vA, sT, vA))
    W = wreg(2 * nk)
    def reads(u, b):
        A("v_add_u32 v22, %d, v%d" % (b, vA))
        for kk in range(2):
            for t in range(2):
                for rd in range(2): A("ds_read_b64_tr_b16 %s, v22 offset:%d" % (R(W[(2 * u + kk) * 2 + t] + 2 * rd, 2), (32 * kk + 4 * rd) * 256 + 8 * t))
    load_w(A, pWo, 640 * 6144 * 2, sBase, vS, 4, 1280, 4, ndma, 9, reads)
    common_init(A, ndma, 1); o_flags(A, sK0, KLEAF); x16(A)
    A("v_add_u32 v%d, 0x10000, v%d" % (vXr2, vXr))
    for l in lin(sC0, PP, [(sKs, TILE), (sNs, 8192), (sW, 2048)]) + lin(sC1, FP, [(sNs, 5 * FW), (sKs, FW)]): A(l)
    wait_ready(A, vT0, opt)
    src = (OO, [('L', LS['o']), ('S', O_SEG), (sK0, 64)]); two_streams(A, 64 * FW)
    outs = lin(sO[0], 0, [(sC0, 1), (sLc, LS['p']), (sSc, 5 * TILE)], sT2) + lin(sPF, 0, [(sC1, 1), (sLc, 25 * FW)], sT2)
    def epi(acc, fast):
        L = []
        for m in range(2):
            for i in range(2): L += [cvt(PK_ + 4 * m + 2 * i, acc(m, i), acc(m, i) + 1), cvt(PK_ + 4 * m + 2 * i + 1, acc(m, i) + 2, acc(m, i) + 3)]
            L.append(st(4, PK_ + 4 * m, vSt, sO[0], 256 * m))
        return L
    stream(A, opt, 'leaf', nk, 2, W, 'T', ndma, opt.get('n1l', 9), opt.get('lead_o', 11), src, FO, outs, epi, XR_, AC, 8, 5, 3, opt.get('fl', (None, 'B', 'R', -13)))

ID, PL, RS = EX, EX + 8, EX + 48
vSw, vSr, vS8, vFp = EX + 64, EX + 65, EX + 66, EX + 67
sRes, sPp, sPr, sFpb = sE + 8, sE + 9, sE + 10, sE + 12
L_RS = 139264
def halves(A, op, t0, t1):
    A("v_mov_b32 v%d, v%d\nv_permlane32_swap_b32 v%d, v%d\n%s v%d, v%d, v%d" % (t1, t0, t0, t1, op, t0, t0, t1))
def rn_init(A):
    ident(A, ID, 0); ident(A, ID + 4, 1)
    A("s_lshl_b32 s%d, s%d, 9\ns_add_u32 s%d, s%d, %d\nv_add_u32 v%d, s%d, v%d" % (sT, sW, sT, sT, L_RS, vSw, sT, vL8))
    A("v_bfe_u32 v%d, v0, 1, 4\nv_and_b32 v%d, 1, v0\nv_lshl_add_u32 v%d, v%d, 4, v%d\nv_lshlrev_b32 v%d, 3, v%d\nv_add_u32 v%d, %d, v%d" % (vSr, vT0, vSr, vT0, vSr, vSr, vSr, vSr, L_RS, vSr))
    A("v_mov_b32 v%d, 0x%x\ns_cmp_eq_u32 s%d, 0\ns_cselect_b32 s%d, 32, 0\nv_cmp_gt_u32 vcc, s%d, v0\nv_cndmask_b32 v%d, v%d, v%d, vcc" % (vT0, OOBS, sW, sT, sT, vS8, vT0, vL8))
def row_sums(A):
    X = RS; a, b = PK + 10, PK + 11
    A("s_mov_b32 s%d, 0x3f803f80" % sT)
    for i in range(8):
        A("v_dot2_f32_bf16 v%d, v%d, s%d, %s\nv_dot2_f32_bf16 v%d, v%d, v%d, %s" % (a, PK + i, sT, "v%d" % a if i else "0", b, PK + i, PK + i, "v%d" % b if i else "0"))
    A("s_nop 2")
    A("ds_write_b64 v%d, %s\ns_waitcnt lgkmcnt(0)\ns_barrier" % (vSw, v(a, 2)))
    for i in range(4): A("ds_read2_b64 %s, v%d offset0:%d offset1:%d" % (v(X + 4 * i, 4), vSr, 64 * i, 64 * i + 32))
    A("s_waitcnt lgkmcnt(0)")
    for i in range(1, 8): A("v_pk_add_f32 %s, %s, %s" % (v(PK + 8 if i == 7 else X, 2), v(X, 2), v(X + 2 * i, 2)))

def root_role(A, opt, sIdx):
    sNs, sK0, sCol, sBase = sE, sE + 2, sE + 3, sE + 4
    nk = KROOT // 16; ndma = KROOT // 64
    A("L_role_root:")
    hold(A, opt)
    A("s_cmp_ge_u32 s%d, 5\ns_cselect_b32 s%d, 1, 0\ns_mul_i32 s%d, s%d, 5\ns_sub_u32 s%d, s%d, s%d\ns_mov_b32 s%d, %d" % (sIdx, sLn, sT, sLn, sNs, sIdx, sT, sK0, 5 * KLEAF))
    vS, vA = EX, EX + 1
    wo_src(A, sK0, sNs, vS, sBase); tr_addr(A, vA, 256, TAB_T)
    A("s_lshl_b32 s%d, s%d, 6\nv_add_u32 v%d, s%d, v%d" % (sT, sW, vA, sT, vA))
    W = wreg(nk)
    def reads(u, b):
        A("v_add_u32 v%d, %d, v%d" % (EX + 3, b, vA))
        for kk in range(4):
            for rd in range(2): A("ds_read_b64_tr_b16 %s, v%d offset:%d" % (R(W[4 * u + kk] + 2 * rd, 2), EX + 3, (16 * kk + 4 * rd) * 256))
    load_w(A, pWo, 640 * 6144 * 2, sBase, vS, 4, 1280, 4, ndma, 9, reads)
    common_init(A, ndma, 1); o_flags(A, sK0, KROOT); rn_init(A)
    for l in lin(sCol, 0, [(sNs, 4), (sW, 1)]) + lin(sC0, XS, [(sLn, 2 * 64 * XT), (sCol, 2048)]) + lin(sC1, XS + 64 * XT + TILE, [(sLn, 2 * 64 * XT), (sNs, 256)]): A(l)
    for l in lin(sFpb, FP, [(sLn, 25 * FW), (sNs, 5 * FW)]): A(l)
    A("s_mul_i32 s%d, s%d, %d\nv_add_u32 v%d, s%d, v%d" % (sT, sLn, 64 * FW, vFl, sT, vFl))
    A("v_and_b32 v%d, 31, v0\nv_min_u32 v%d, 4, v%d\nv_lshlrev_b32 v%d, 8, v%d\ns_sub_u32 s%d, s%d, %d\nv_add_u32 v%d, s%d, v%d" % (vT0, vT0, vT0, vT0, vT0, sT, sFpb, FO, vT0, sT, vT0))
    A("v_lshrrev_b32 v%d, 5, v0\nv_cmp_eq_u32 vcc, s%d, v%d\nv_cndmask_b32 v%d, v%d, v%d, vcc\ns_not_b64 %s, vcc" % (vT1, sLn, vT1, vFl, vT0, vFl, s(sPr, 2)))
    wait_ready(A, vT0, opt, True); nearby(A, opt, lambda k, l: ('s', leaf_index(opt, min(l & 31, 4), k % 5)) if l >> 5 != k // 5 else None, (sIdx, {k: WHERE[('s', 25 + k)] >> 5 for k in range(10)}))
    src = (OO + 5 * KLEAF * 64, [('L', LS['o']), ('S', O_SEG)])
    outs = ["s_add_u32 s%d, s%d, %d" % (sO[0], sRes, 64 * XT)] + lin(sO[1], 0, [(sC1, 1), (sSc, XT)], sT2) + lin(sPF, FX + 5 * FW, [(sLc, 10 * FW), (sNs, FW)], sT2)
    pl = lambda r: [ld(4, PL + 4 * k, vL16, r, 1024 * (k & 1)) + ("\ns_add_u32 s%d, s%d, %d" % (r, r, TILE) if k & 1 else "") for k in range(10)]
    extra = lambda: ["\n".join(lin(sRes, 0, [(sC0, 1), (sSc, XT)], sT2)), ld(4, RS, vL16, sRes), ld(4, RS + 4, vL16, sRes, 1024),
                     "\n".join(lin(sPp, PP, [(sLc, LS['p']), (sSc, 5 * TILE), (sCol, 2048)], sT2))]
    sPq, sFast = sFpb, sFpb + 1
    mid = ("v_cmp_ge_i32 vcc, s%d, v%d\ns_and_b64 vcc, vcc, %s\ns_cselect_b32 s%d, 0x%x, s%d\ns_cselect_b32 s%d, 0, 1" % (sSc, vF, s(sPr, 2), sPq, OOBS, sPp, sFast),
           [l.replace(' sc1', ' sc1 ; M') for l in pl(sPq)])
    def tail(A, Z, fl, n):
        again, chk, go, slow, sums = A.lab('fpagain'), A.lab('fpchk'), A.lab('fpgo'), A.lab('fpslow'), A.lab('fpsum')
        A("s_waitcnt vmcnt(%d)\n" % n('L') + mf(ACC, ID, RS, ACC) + "\ns_cmp_eq_u32 s%d, 0\ns_cbranch_scc1 %s\n" % (sFast, slow) + mf(ACC, ID + 4, RS + 4, ACC))
        assert n('F') == 0
        gstamp(A, opt, 3)
        for k in range(10): A("s_waitcnt vmcnt(%d)\n" % (n('M') + 9 - k) + mf(ACC, ID + 4 * (k & 1), PL + 4 * k, ACC))
        A(fl.fload + "\n" + sums + ":")
        B = Asm()
        B(slow + ":\n" + mf(ACC, ID + 4, RS + 4, ACC))
        B(chk + ":\n" + fl.see(0) + "v_cmp_ge_i32 vcc, s%d, v%d\ns_and_b64 vcc, vcc, %s\ns_cbranch_vccnz %s\n%s:" % (sSc, vF, s(sPr, 2), again, go))
        gstamp(B, opt, 3)
        for l in pl(sPp) + [fl.fload]: B(l)
        for k in range(10): B("s_waitcnt vmcnt(%d)\n" % (10 - k) + mf(ACC, ID + 4 * (k & 1), PL + 4 * k, ACC))
        B("s_branch " + sums)
        B(again + ":\n" + fl.fload + "\ns_add_u32 s%d, s%d, 1\ns_cmp_lt_u32 s%d, %d\ns_cbranch_scc1 %s\ns_branch %s" % (sBu2, sBu2, sBu2, BUDGET, chk, go))
        Z.extend(B.L)
        gstamp(A, opt, 4)
        for i in range(8): A(cvt(PK + i, ACC + 2 * i, ACC + 2 * i + 1))
        for i in range(2): A(st(4, PK + 4 * i, vL16, sO[0], 1024 * i))
        row_sums(A)
    skeleton(A, opt, 'root', nk, 1, W, ndma, opt.get('n1r', 5), None, src, FO, outs, [st(2, PK + 8, vS8, sO[1])], tail, opt.get('fr', (None, 0, 24, nk - 6)), extra=extra, pre=2, mid=mid)

def bo_role(A, opt, sIdx):
    sBase, sCol = sE + 4, sE + 3
    vS, vA, vB = EX, EX + 1, EX + 2
    A("L_role_bo:")
    hold(A, opt)
    A("v_lshlrev_b32 v%d, 4, v0" % vL16)
    A("v_lshrrev_b32 v%d, 4, v0\nv_mul_u32_u24 v%d, %d, v%d\nv_add_u32 v%d, v%d, v%d" % (vS, vS, 1280 - 256, vS, vS, vS, vL16))
    tr_addr(A, vA, 256, TAB_T); tr_addr(A, vB, 256, TAB_T, hi_rows=40)
    A("s_lshl_b32 s%d, s%d, 6\nv_add_u32 v%d, s%d, v%d\nv_add_u32 v%d, s%d, v%d\ns_lshl_b32 s%d, s%d, 8" % (sT, sW, vA, sT, vA, vB, sT, vB, sBase, sIdx))
    W = wreg(40)
    def reads(u, b):
        A("v_add_u32 v%d, %d, v%d\nv_add_u32 v%d, %d, v%d" % (EX + 3, b, vA, EX + 4, b, vB))
        for rd in range(2):
            for kk in range(4): A("ds_read_b64_tr_b16 %s, v%d offset:%d" % (R(W[4 * u + kk] + 2 * rd, 2), EX + 3, (20 * kk + 4 * rd) * 256))
            A("ds_read_b64_tr_b16 %s, v%d offset:%d" % (R(W[32 + u] + 2 * rd, 2), EX + 4, (20 * rd + 16) * 256))
    load_w(A, pBo, 640 * 640 * 2, sBase, vS, 4, 1280, 5, 8, 7, reads)
    common_init(A, 10, 8); rn_init(A)
    A("v_and_b32 v%d, 31, v0\nv_mul_u32_u24 v%d, 1280, v%d\nv_lshrrev_b32 v%d, 5, v0\nv_lshl_add_u32 v%d, v%d, 4, v%d" % (vSt2, vSt2, vSt2, vT0, vSt2, vT0, vSt2))
    A("v_and_b32 v%d, 0xf8, v%d\nv_lshrrev_b32 v%d, 5, v0\nv_lshl_add_u32 v%d, v%d, 9, v%d\nv_add_u32 v%d, 0x8000, v%d" % (vXr2, vL8, vT0, vXr2, vT0, vXr2, vXr2, vXr2))
    for l in lin(sCol, 0, [(sIdx, 4), (sW, 1)]): A(l)
    temp_srd(A, pOut, S * D * 2)
    wait_ready(A, vT0, opt, True); nearby(A, opt, lambda k, l: ('b', 8 * (l >> 5) + min(l & 31, 7)))
    def xread(k, d):
        if k < 32: return ["ds_read_b128 %s, v%d offset:%d" % (v(d, 4), vXr, k * 1024)]
        return ["ds_read_b64 %s, v%d offset:%d" % (v(d + 2 * h, 2), vXr2, (k - 32) * 1024 + 256 * h) for h in range(2)]
    src = (OB, [('L', 64 * TILE), ('S', TILE)]); two_streams(A, 8 * FW)
    outs = ["s_add_u32 s%d, s%d, %d" % (sO[0], sRes, 64 * XT)] + lin(sO[1], XS + 2 * 64 * XT + TILE, [(sIdx, 256), (sSc, XT)], sT2)
    outs += lin(sO[2], 0, [(sCol, 64), (sSc, TILE)], sT2) + lin(sPF, FX + 10 * FW, [(sIdx, FW)], sT2)
    outs += ["s_cmp_eq_u32 s%d, 0\n" % sLc + "\n".join("s_cselect_b32 s%d, s%d, 0x%x" % (r, r, OOBS) for r in (sO[1], sPF))]
    extra = lambda: ["\n".join(lin(sRes, XS + 64 * XT, [(sLc, 2 * 64 * XT), (sSc, XT), (sCol, 2048)], sT2)), ld(4, RS, vL16, sRes), ld(4, RS + 4, vL16, sRes, 1024)]
    def tail(A, Z, fl, n):
        A("s_waitcnt vmcnt(%d)\n" % n('L') + mf(ACC, ID, RS, ACC) + "\n" + mf(ACC, ID + 4, RS + 4, ACC))
        for i in range(8): A(cvt(PK + i, ACC + 2 * i, ACC + 2 * i + 1))
        l1, l2 = A.lab('bofin'), A.lab('bojoin')
        A("s_cmp_lg_u32 s%d, 0\ns_cbranch_scc1 %s" % (sLc, l1))
        for i in range(2): A(st(4, PK + 4 * i, vL16, sO[0], 1024 * i))
        row_sums(A)
        A(l2 + ":")
        Z.append(l1 + ":\n" + "\n".join(st(4, PK + 4 * i, vSt2, sO[2], 32 * i, TS, '') for i in range(2)) + "\ns_branch " + l2)
    skeleton(A, opt, 'bo', 40, 1, W, 10, opt.get('n1o', 5), opt.get('lead_b', 11), src, FB, outs, [st(2, PK + 8, vS8, sO[1])], tail, opt.get('fo', (None, 0, 26, 27)), xread=xread, extra=extra, pre=2)

def bq_role(A, opt, sIdx):
    sG, sBase, sHd, sCs = sE, sE + 4, sE + 1, sE + 2
    A("L_role_bq:\ns_cmp_ge_u32 s%d, %d\ns_cbranch_scc1 L_bq_np" % (sIdx, NPROBE))
    probe(A, opt, sIdx)
    A("L_bq_np:")
    hold(A, opt)
    A("s_lshr_b32 s%d, s%d, 3\ns_and_b32 s%d, s%d, 7\ns_mul_i32 s%d, s%d, 160\ns_lshl_b32 s%d, s%d, 2\ns_add_u32 s%d, s%d, s%d" % (sLn, sIdx, sG, sIdx, sBase, sG, sHd, sG, sHd, sHd, sW))
    A("v_lshlrev_b32 v%d, 4, v0" % vL16)
    vS, vA = EX, [EX + 1, EX + 2]
    A("v_and_b32 v%d, 31, v0\nv_mul_u32_u24 v%d, 26, v%d\nv_lshrrev_b32 v%d, 8, v%d\nv_mul_u32_u24 v%d, %d, v%d\nv_lshl_add_u32 v%d, v%d, 4, v%d" % (vT0, vT1, vT0, vT1, vT1, vS, 1280 - 160, vT1, vS, vT0, vS))
    A("v_lshrrev_b32 v%d, 5, v0\nv_mul_u32_u24 v%d, 3840, v%d\nv_add_u32 v%d, v%d, v%d" % (vT1, vT1, vT1, vS, vS, vT1))
    A("v_mov_b32 v%d, 0x%x\nv_cmp_gt_u32 vcc, 30, v%d\nv_cndmask_b32 v%d, v%d, v%d, vcc" % (vT1, OOBS, vT0, vS, vT1, vS))
    tabs = [[0, 1, 2, 3, 20, 21, 22, 23], [40, 42, 41, 43, 4, 44, 24, 60]]
    for t in range(2):
        tr_addr(A, vA[t], 512, tabs[t])
        A("s_mul_i32 s%d, s%d, 40\nv_mov_b32 v%d, s%d" % (sT, sW, vT0, sT))
        if t == 1: A("v_and_b32 v%d, 19, v0\nv_cmp_ne_u32 vcc, 19, v%d\nv_cndmask_b32 v%d, 0, v%d, vcc" % (vT1, vT1, vT0, vT0))
        A("v_add_u32 v%d, v%d, v%d" % (vA[t], vA[t], vT0))
    W = wreg(80)
    def reads(u, b):
        for t in range(2):
            A("v_add_u32 v%d, %d, v%d" % (EX + 3 + t, b, vA[t]))
            for kk in range(2):
                for rd in range(2): A("ds_read_b64_tr_b16 %s, v%d offset:%d" % (R(W[(2 * u + kk) * 2 + t] + 2 * rd, 2), EX + 3 + t, (16 * kk + 4 * rd) * 512))
    load_w(A, pBq, 640 * 1920 * 2, sBase, vS, 2, 3840, 4, 20, 9, reads)
    common_init(A, 11, 5)
    MR, KP, VP, MC, I1, I2, vSel, G, CS, VT, PE = 28, 74, 80, 84, 108, 112, 114, 116, 132, 172, 20
    VQ, SX = XF, VT
    PE = [20, 24, 164]
    for d in range(4): A("v_mov_b32 v%d, 0x3f803f80" % (XF + d))
    for k in range(40):
        for t in range(2): A(mf(CS + 16 * t, W[2 * k + t], XF, CS + 16 * t if k else None))
    A("v_and_b32 v%d, 0xf0, v%d\nv_bfe_u32 v%d, v0, 4, 1\nv_lshl_add_u32 v%d, v%d, 3, v%d\nv_add_u32 v%d, %d, v%d" % (vXr2, vL16, vT0, vXr2, vT0, vXr2, vXr2, TILE, vXr2))
    ident(A, I1, 0)
    A("v_and_b32 v%d, 1, v0\nv_lshlrev_b32 v%d, 4, v%d\nv_mov_b32 v%d, 0x3f80\nv_lshlrev_b32 v%d, v%d, v%d\nv_lshrrev_b32 v%d, 1, v0" % (vT0, vT0, vT0, vT1, vT1, vT0, vT1, vT0))
    for d in range(2): A("v_cmp_eq_u32 vcc, %d, v%d\nv_cndmask_b32 v%d, 0, v%d, vcc" % (24 + d, vT0, I2 + d, vT1))
    A("v_and_b32 v%d, 31, v0\nv_lshrrev_b32 v%d, 5, v0\nv_lshlrev_b32 v%d, 2, v%d\nv_sub_u32 v%d, v%d, v%d\nv_mov_b32 v%d, 0xff800000" % (vT0, vT1, vT1, vT1, vT0, vT0, vT1, G))
    for r in range(24):
        key = 8 * (r >> 2) + (r & 3) if r < 16 else 8 * ((r - 8) >> 2) + (r & 3) - 32
        A("v_subrev_u32 v%d, %d, v%d\nv_and_b32 v%d, 0xfffffff1, v%d\nv_cmp_ne_u32 vcc, 0, v%d\nv_cndmask_b32 v%d, 0, v%d, vcc" % (vT1, key, vT0, vT1, vT1, vT1, MC + r if r < 16 else MR + r - 16, G))
    for r in range(8): A("v_mov_b32 v%d, 0xff800000" % (MC + 16 + r))
    for r in range(10): A("v_mov_b32 v%d, 0" % (KP + r))
    A("v_and_b32 v%d, 1, v0\nv_cmp_eq_u32 vcc, 0, v%d" % (vT0, vT0))
    for d, (ev, od) in enumerate(((0x0c0c0100, 0x01000c0c), (0x0c0c0302, 0x03020c0c))):
        A("v_mov_b32 v%d, 0x%x\nv_mov_b32 v%d, 0x%x\nv_cndmask_b32 v%d, v%d, v%d, vcc" % (vT0, ev, vT1, od, vSel + d, vT1, vT0))
    A("v_mov_b32 v%d, 0x%x\nv_cmp_gt_u32 vcc, 32, v0\nv_cndmask_b32 v%d, v%d, v%d, vcc" % (vT0, OOBS, vSt, vT0, vL8))
    A("s_mov_b32 s%d, 0x%x" % (sCs, f32(20 ** -0.5 * math.log2(math.e))))
    A("s_mul_i32 s%d, s%d, %d\nv_add_u32 v%d, s%d, v%d" % (sT, sLn, 2 * 5 * FW, vFl, sT, vFl))
    wait_ready(A, vT0, opt, True); nearby(A, opt, lambda k, l: ('s', 25 + 5 * (k >> 3) + min(l & 31, 4)), (sIdx, {k: WHERE[('b', k)] >> 5 for k in range(16)}))
    src = (XS + 64 * XT, [('L', 2 * 64 * XT), ('S', XT)])
    outs = lin(sO[0], OB, [(sLc, 64 * TILE), (sSc, TILE)], sT2) + lin(sO[1], 32768, [(sO[0], 1), (sHd, 256)], sT2)
    outs += ["s_lshl_b32 s%d, s%d, 10\ns_add_u32 s%d, s%d, s%d" % (sT2, sHd, sO[0], sO[0], sT2)] + lin(sPF, FB, [(sLc, 8 * FW), (sG, FW)], sT2)
    stats = [(lambda Q, p=p: Q.op('st', "ds_read_b64 %s, v%d offset:%d" % (v(SX + 2 * p, 2), vXr2, 256 * p))) for p in range(5)]
    stats += ["s_nop 0"] * 3 + [lambda Q: Q.wait('st') or "s_nop 0"] + row_stats(SX, 2)
    def tail(A, Z, fl, n):
        Q1, K1, V1, Q2, K2 = G, G + 4, G + 8, G + 12, G + 14
        Sc, Sp = ACC, ACC + 16
        for i in range(16):
            a = ACC + 2 * i
            A("v_pk_fma_f32 %s, %s, %s, %s op_sel_hi:[1,0,1]" % (v(a, 2), v(CS + 2 * i, 2), v(SX, 2), v(a, 2)))
            A("v_pk_mul_f32 %s, %s, %s op_sel:[0,1] op_sel_hi:[1,1]\n" % (v(a, 2), v(a, 2), v(SX, 2)) + cvt(G + i, a, a + 1))
        A(mf(Sc, K1, Q1, MC) + "\n" + mf(Sp, KP, Q1, MC + 8) + "\n" + mf(VT, V1, I1))
        A(mf8(Sc, K2, Q2, Sc) + "\n" + mf8(Sp, KP + 4, Q2, Sp))
        for i in range(4): A("v_mov_b32 v%d, v%d" % (KP + i, K1 + i))
        A(mf8(VT, Q2, I2, VT))
        for i in range(2): A("v_mov_b32 v%d, v%d" % (KP + 4 + i, K2 + i))
        E = G
        for i in range(8): A("v_max_f32 v%d, v%d, v%d" % (E + i, Sc + 2 * i, Sc + 2 * i + 1))
        for i in range(4): A("v_max_f32 v%d, v%d, v%d" % (E + 8 + i, Sp + 8 + 2 * i, Sp + 9 + 2 * i))
        A("v_max3_f32 v%d, v%d, v%d, v%d" % (vT0, E, E + 1, E + 2))
        for i in range(3, 11, 2): A("v_max3_f32 v%d, v%d, v%d, v%d" % (vT0, vT0, E + i, E + i + 1))
        A("v_max_f32 v%d, v%d, v%d" % (vT0, vT0, E + 11))
        halves(A, "v_max_f32", vT0, vT1)
        A("v_mul_f32 v%d, s%d, v%d" % (vT0, sCs, vT0))
        for i in range(12): A("v_fma_f32 v%d, v%d, s%d, -v%d" % (E + i, E + i, sCs, vT0))
        for i in range(12): A("v_exp_f32 v%d, v%d" % (E + i, E + i))
        for i in range(8): A(cvt(VQ + i, VT + 2 * i, VT + 2 * i + 1))
        for i in range(6):
            A(cvt(vT0, E + 2 * i, E + 2 * i + 1) + "\nv_perm_b32 v%d, v%d, v%d, v%d\nv_perm_b32 v%d, v%d, v%d, v%d" % (PE[i >> 1] + 2 * (i & 1), vT0, vT0, vSel, PE[i >> 1] + 2 * (i & 1) + 1, vT0, vT0, vSel + 1))
        O = ACC
        sm = ["v_add_f32 v%d, v%d, v%d" % (vT0, E, E + 1)] + ["v_add_f32 v%d, v%d, v%d" % (vT0, vT0, E + i) for i in range(2, 12)]
        for l in interleave([mf(O, VQ, PE[0]), mf(O, VQ + 4, PE[1], O), mf(O, VP, PE[2], O)], sm, per=5): A(l)
        halves(A, "v_add_f32", vT0, vT1)
        A("v_rcp_f32 v%d, v%d" % (vT0, vT0))
        for i in range(4): A("v_mov_b32 v%d, v%d" % (VP + i, VQ + 4 + i))
        for r in range(8): A("v_mov_b32 v%d, v%d" % (MC + 16 + r, MR + r))
        for i in range(6):
            A("v_mul_f32 v%d, v%d, v%d\nv_mul_f32 v%d, v%d, v%d\n" % (O + 2 * i, O + 2 * i, vT0, O + 2 * i + 1, O + 2 * i + 1, vT0) + cvt(PK + i, O + 2 * i, O + 2 * i + 1))
    skeleton(A, opt, 'bq', 40, 2, W, 11, opt.get('n1b', 4), None, src, FX + 5 * FW, outs, [st(4, PK, vL16, sO[0]), st(2, PK + 4, vSt, sO[1])], tail, opt.get('fb', (26, 52, 28, 79)), late=(34, stats))

def ln0_role(A, opt, sIdx):
    sS, sA, sB, sF = sE, sE + 1, sE + 2, sE + 3
    vA, vB, vP, vK, D0, X, P = 12, 13, 14, 15, [16, 56], 96, 100
    A("L_role_ln0:")
    A("v_and_b32 v%d, 7, v0\nv_lshrrev_b32 v%d, 3, v0\nv_mul_u32_u24 v%d, 1280, v%d\nv_lshl_add_u32 v%d, v%d, 4, v%d" % (vT0, vT1, vA, vT0, vA, vT1, vA))
    A("v_lshlrev_b32 v%d, 4, v%d\nv_lshl_add_u32 v%d, v%d, 9, v%d" % (vB, vT0, vB, vT1, vB))
    A("v_and_b32 v%d, 15, v0\nv_lshlrev_b32 v%d, 4, v%d\nv_bfe_u32 v%d, v0, 4, 1\nv_lshl_add_u32 v%d, v%d, 3, v%d" % (vP, vP, vP, vT0, vP, vT0, vP))
    A("s_lshl_b32 s%d, s%d, 8\nv_mov_b32 v%d, s%d\nv_mov_b32 v%d, 1024\nv_cmp_gt_u32 vcc, 32, v0\nv_cndmask_b32 v%d, v%d, v%d, vcc\nv_add_u32 v%d, v%d, v%d" % (sT, sW, vT0, sT, vK, vT0, vK, vT0, vP, vP, vT0))
    A("v_cmp_eq_u32 s[96:97], s%d, v%d" % (sW, vT1))
    A("s_sub_u32 s%d, s%d, 5" % (sS, sIdx))
    for l in lin(sF, FX, [(sS, FW)]): A(l)
    A("s_cmp_eq_u32 s%d, 0\ns_cselect_b32 s%d, s%d, 0x%x" % (sW, sF, sF, OOBS))
    temp_srd(A, pX, S * D * 2)
    loads = lambda d: lin(sA, 0, [(sS, TILE), (sW, 8 * 1280)]) + [ld(4, d + 4 * i, vA, sA, 128 * i, TS, '') for i in range(10)]
    A("s_mov_b64 exec, 1\nv_mov_b32 v%d, -1\nbuffer_store_dword v%d, off, %s, s%d sc1\nbuffer_store_dword v%d, off, %s, s%d offset:%d sc1\ns_mov_b64 exec, -1" % (vT1, vT1, WS, sF, vT1, WS, sF, LOC))
    for l in loads(D0[0]): A(l)
    signal_ready(A, vT0)
    A("L_ln0_top:")
    for h in range(2):
        d = D0[h]
        for l in lin(sB, XS, [(sS, XT), (sW, 128)]): A(l)
        for i in range(10): A(st(4, d + 4 * i, vB, sB) + "\ns_add_u32 s%d, s%d, 4096" % (sB, sB))
        A("s_add_u32 s%d, s%d, 5" % (sS, sS))
        for l in loads(D0[1 - h]): A(l)
        for i in range(40):
            A("v_lshlrev_b32 v%d, 16, v%d\nv_and_b32 v%d, 0xffff0000, v%d" % (X, d + i, X + 1, d + i))
            if i == 0: A("v_pk_mul_f32 %s, %s, %s\nv_mov_b32 v%d, v%d\nv_mov_b32 v%d, v%d" % (v(P + 2, 2), v(X, 2), v(X, 2), P, X, P + 1, X + 1))
            else: A("v_pk_add_f32 %s, %s, %s\nv_pk_fma_f32 %s, %s, %s, %s" % (v(P, 2), v(P, 2), v(X, 2), v(P + 2, 2), v(X, 2), v(X, 2), v(P + 2, 2)))
        A("v_add_f32 v%d, v%d, v%d\nv_add_f32 v%d, v%d, v%d" % (P, P, P + 1, P + 1, P + 2, P + 3))
        for t in (P, P + 1):
            A("v_add_f32_dpp v%d, v%d, v%d row_ror:8 row_mask:0xf bank_mask:0xf" % (t, t, t))
            A("v_mov_b32 v%d, v%d\nv_permlane16_swap_b32 v%d, v%d\nv_add_f32 v%d, v%d, v%d" % (vT1, t, t, vT1, t, t, vT1))
            halves(A, "v_add_f32", t, vT1)
            A("v_cndmask_b32 v%d, 0, v%d, s[96:97]" % (t, t))
        A("s_lshl_b32 s%d, s%d, 7\ns_sub_u32 s%d, s%d, s%d\n" % (sT, sW, sB, sB, sT) + st(2, P, vP, sB))
        A("s_waitcnt vmcnt(0)\ns_barrier\ns_mov_b64 exec, 1\nv_mov_b32 v%d, s%d\nbuffer_store_dword v%d, off, %s, s%d sc1\nbuffer_store_dword v%d, off, %s, s%d offset:%d\ns_mov_b64 exec, -1" % (vT1, sS, vT1, WS, sF, vT1, WS, sF, LOC))
        if opt.get('lstamp'): A("s_memrealtime s[98:99]\ns_sub_u32 m0, s%d, 5\ns_waitcnt lgkmcnt(0)\nv_writelane_b32 v11, s98, m0" % sS)
        A("s_cmp_ge_u32 s%d, 64\ns_cbranch_scc1 L_ln0_done" % sS)
    A("s_branch L_ln0_top\nL_ln0_done:")
    if opt.get('lstamp'):
        A("v_lshlrev_b32 v%d, 4, v0" % vL16); ldump(A, vT0, vL16, 11, None, 262144)
    A("s_branch L_role_root")
```

```python
S, D, H, E, SEG, NSEG, M = 2048, 640, 32, 192, 32, 64, 8
TILE = 40960
HA_W = 2560
LOC = 128
FW = 256
FX = 0
SYNC0 = 5 * FW
FQ = FX + 4 * 5 * FW
FO = FQ + 3 * 72 * FW
FP = FO + 2 * 64 * FW
FB = FP + 2 * 25 * FW
HA = -(-(FB + 2 * 8 * FW) // 4096) * 4096
HA_LAYER = 64 * 4 * HA_W
HB = HA + 2 * HA_LAYER
HB_X = 40 * 4096
HL = HB + 2 * 2 * HB_X
HC = -(-(HL + 4 * 10240) // 524288) * 524288
HC_STEP = 131072
HC_FILL = 1
NFILL = 35
SYNC_PER_WG = 65536
NFILL2 = 2
SYNC_SIZE = HC + 4 * HC_STEP
assert HC >= SYNC0 + SYNC_PER_WG * (NFILL - NFILL2) >= HL + 4 * 10240 and 3 * HC_STEP >= SYNC_PER_WG * NFILL2 >= HC_FILL * HC_STEP
XT = 45056
XS = SYNC_SIZE
QKV = XS + 4 * 64 * XT
QKV_HEAD = 3 * 12288
QKV_SEG = 32 * QKV_HEAD
OO = QKV + 2 * 64 * QKV_SEG
O_SEG = 768 * 512
PP = OO + 2 * 64 * O_SEG
OB = PP + 2 * 64 * 5 * TILE
DBGW = OB + 2 * 64 * TILE
WS_END = DBGW + (1 << 20)
WS_SIZE = 268435456
assert WS_END <= WS_SIZE, WS_END
PB = [0, 64, 96, 160]
SB = [32, 48, 128, 144]
import os
KLEAF = int(os.environ.get('KLEAF', 1024)); KROOT = 6144 - 5 * KLEAF
if __name__ == '__main__':
    print(SYNC_PER_WG, SYNC_SIZE, WS_END)
```

```python
from common import *

L_M, L_O, L_SPM, L_SPT, L_WV = 0, 5120, 11264, 12544, 40960
SPM_W = SPT_W = 5632
L_OT = 15104
L_P = 33792
SLOT = 24576
vIdx, vL16, vL8 = 1, 2, 3
vSel2, vSelR, vOne, vSelT = 4, 8, 12, 18
vZ, vZ1, vMr, vMw, vMw1, vTm, vTe, vFlag, vQ32, vQ16, vOw4, vOw2, vSt16, vSm4, vSt8, vL4, vWv, vT0, vT1, vT2 = range(22, 42)
vSm16 = vSt16
vFlag0 = 127
KX, VX, QX = 42, 54, 66
MF, AQ, AV, WSG = 72, 92, 116, 128
WO_V0 = 152
SEQ = [(m, i, t) for i in range(3) for m in 'qk' for t in range(5)] + [('v', i, t) for i in range(3) for t in range(5)]
WREG = {}; WLDS = {}
def place(LPOS):
    WREG.clear(); WLDS.clear()
    for k, o in enumerate([o for p, o in enumerate(SEQ) if p not in LPOS] + [('o', i, t) for i in range(5) for t in range(3)]):
        WREG[o] = 256 + 8 * k if k < 32 else WO_V0 + 8 * (k - 32)
    for k, p in enumerate(LPOS): WLDS[SEQ[p]] = k
sL, sX, sJ, sH, sStep = 42, 43, 44, 45, 46
sHAo, sHAp, sTag, sHBq, sClr, sHBr, sJo = 47, 48, 49, 50, 51, 52, 53
sHd, sHCl, sHCx = 54, 56, 57
sK32, sK16, sQ32, sQ16, sVp, sVs, sFQ, sO32, sO16, sFO, sRed = 58, 59, 60, 61, 62, 63, 64, 65, 66, 67, 68
sC, sNeg, sT, sT2, sPBc, sSBc, sFs, sTS = 69, 70, 71, 72, 73, 74, 76, 78
sMask = 80
sLive, sHLr, sHCr = 75, 79, 77
sEv = 98
sQm = 100

def smf(d, a, b): return "v_smfmac_f32_16x16x64_bf16 %s, %s, %s, v%d" % (v(d, 4), v(a, 4), R(b, 8), vIdx)
def mf32(d, a, b, c=None): return "v_mfma_f32_16x16x32_bf16 %s, %s, %s, %s" % (v(d, 4), v(a, 4), v(b, 4), "0" if c is None else v(c, 4))
def mf16(d, a, b, c=None): return "v_mfma_f32_16x16x16_bf16 %s, %s, %s, %s" % (v(d, 4), v(a, 2), v(b, 2), "0" if c is None else v(c, 4))
def cvt(d, a, b): return "v_cvt_pk_bf16_f32 v%d, v%d, v%d" % (d, a, b)
def ld(n, d, va, so, off=0, fl='sc1'):
    return "buffer_load_dword%s %s, v%d, %s, s%d offen offset:%d %s" % ({1: '', 2: 'x2', 4: 'x4'}[n], v(d, n), va, WS, so, off, fl)
def st(n, d, va, so, off=0, fl=''):
    return "buffer_store_dword%s %s, v%d, %s, s%d offen offset:%d %s" % ({1: '', 2: 'x2', 4: 'x4'}[n], v(d, n), va, WS, so, off, fl)

def load_weights(A, opt):
    load_setup(A, opt)
    if opt.get('rev'):
        A("s_cmp_eq_u32 s%d, 1\ns_cbranch_scc1 L_rec_ldrev" % sL)
        load_units(A, opt, 0); A("s_branch L_rec_ldone\nL_rec_ldrev:"); load_units(A, opt, 1); A("L_rec_ldone:")
    else: load_units(A, opt, 0)
vA = [140, 141, 142]; vB = [143, 144, 145, 146, 147]; vTP, vTS, vTO, va, vb = 148, 149, 150, 151, 139
sA, sB, sM6, sM5 = 80, 81, 82, 83
def load_setup(A, opt):
    for i in range(3):
        A("v_add_u32 v%d, %d, v%d" % (va, 1024 * i, vL16)); udiv(A, vb, va, 384, sT)
        A("v_mul_u32_u24 v%d, %d, v%d\nv_add_u32 v%d, v%d, v%d" % (vA[i], 12288 - 384, vb, vA[i], vA[i], va))
    for i in range(5):
        A("v_add_u32 v%d, %d, v%d" % (va, 1024 * i, vL16)); udiv(A, vb, va, 640, sT)
        A("v_mul_u32_u24 v%d, %d, v%d\nv_add_u32 v%d, v%d, v%d" % (vB[i], 640, vb, vB[i], vB[i], va))
    A("v_lshrrev_b32 v%d, 5, v0\nv_lshlrev_b32 v%d, 4, v%d" % (va, va, va))
    A("v_bfe_u32 v%d, v0, 4, 1\nv_lshl_add_u32 v%d, v%d, 2, v%d" % (vb, va, vb, va))
    A("v_bfe_u32 v%d, v0, 2, 1\nv_add_u32 v%d, v%d, v%d" % (vb, va, va, vb))
    A("v_bfe_u32 v%d, v0, 3, 1\nv_lshl_add_u32 v%d, v%d, 3, v%d" % (vb, va, vb, va))
    A("v_and_b32 v%d, 3, v0" % vb)
    A("v_mul_u32_u24 v%d, 384, v%d\nv_mul_u32_u24 v%d, 640, v%d" % (vTP, va, vTO, va))
    A("v_lshl_add_u32 v%d, v%d, 3, v%d\nv_lshl_add_u32 v%d, v%d, 4, v%d\nv_lshl_add_u32 v%d, v%d, 3, v%d" % (vTS, vb, vTP, vTP, vb, vTP, vTO, vb, vTO))
    A("s_lshl_b32 s%d, s%d, 4\nv_add_u32 v%d, s%d, v%d" % (sT, sPBc, vTP, sT, vTP))
    A("s_lshl_b32 s%d, s%d, 4\nv_add_u32 v%d, s%d, v%d" % (sT, sSBc, vTS, sT, vTS))
    A("s_mul_i32 s%d, s%d, 160\nv_add_u32 v%d, s%d, v%d" % (sT, sW, vTO, sT, vTO))
    A("s_mul_i32 s%d, s%d, %d\ns_mul_i32 s%d, s%d, 384\ns_add_u32 s%d, s%d, s%d" % (sA, sJ, 320 * 12288, sT, sH, sA, sA, sT))
    A("s_mul_i32 s%d, s%d, %d\ns_add_u32 s%d, s%d, s%d" % (sT, sW, 16 * 12288, sA, sA, sT))
    A("s_mul_i32 s%d, s%d, %d\ns_mul_i32 s%d, s%d, 640\ns_add_u32 s%d, s%d, s%d" % (sB, sH, 192 * 1280, sT, sJo, sB, sB, sT))
    A("s_mul_i32 s%d, s%d, %d\ns_add_u32 s%d, s%d, s%d" % (sT, sW, 8 * 1280, sB, sB, sT))
    A("s_mul_i32 s%d, s%d, 6144\ns_mul_i32 s%d, s%d, 5120" % (sM6, sW, sM5, sW))
def load_units(A, opt, rev):
    units = [('q', t) for t in range(5)] + [('k', t) for t in range(5)] + [('o', t) for t in range(6)] + [('v', t) for t in range(5)]
    if opt.get('uorder'): units = [units[i] for i in opt['uorder']]
    if rev: units = units[::-1]
    ptr = {'q': pWq, 'k': pWk, 'v': pWv, 'o': pWo}
    VT = 8
    cur = [None]
    def issue(u):
        m, t = units[u]; slot = u % 6
        if cur[0] != m: temp_srd(A, ptr[m], 640 * 6144 * 2); cur[0] = m
        n = 5 if m == 'o' else 6
        for i in range(n):
            if m == 'o': so, vo = 32 * t * 1280, vB[i]
            else: so, vo = (64 * t + 8 * (i // 3)) * 12288, vA[i % 3]
            A("s_add_u32 m0, s%d, %d\ns_add_u32 s%d, s%d, %d" % (sM5 if m == 'o' else sM6, slot * SLOT + 1024 * i, sT, sB if m == 'o' else sA, so))
            A("buffer_load_dwordx4 v%d, %s, s%d offen %s lds" % (vo, TS, sT, opt.get('wfl', '')))
        return n
    cnt = [issue(u) for u in range(5)]
    for u, (m, t) in enumerate(units):
        A("s_waitcnt vmcnt(%d) lgkmcnt(0)\ns_barrier" % sum(cnt[u + 1:]))
        if u + 5 < len(units): cnt.append(issue(u + 5))
        if u == len(units) - 2: peek_ready(A, 128)
        if u == len(units) - 1: peek_take(A, 128)
        base = (u % 6) * SLOT
        if m == 'o':
            A("v_add_u32 v%d, %d, v%d" % (va, base, vTO))
            for i in range(5):
                for rd in range(2):
                    A("ds_read_b64_tr_b16 %s, v%d offset:%d" % (R(WREG[('o', i, t // 2)] + 4 * (t & 1) + 2 * rd, 2), va, 2 * rd * 640 + 32 * i))
        else:
            A("v_add_u32 v%d, %d, v%d\nv_add_u32 v%d, %d, v%d" % (va, base, vTP, vb, base, vTS))
            for i in range(3):
                d = VT + WLDS[(m, i, t)] * 8 if (m, i, t) in WLDS else WREG[(m, i, t)]
                for hf in range(2):
                    for rd in range(2):
                        A("ds_read_b64_tr_b16 %s, v%d offset:%d" % (R(d + 4 * hf + 2 * rd, 2), vb if i == 2 else va, (32 * hf + 2 * rd) * 384 + (8 if i == 1 else 0)))
    A("s_waitcnt lgkmcnt(0)\ns_barrier")
    A("s_mul_i32 s%d, s%d, 30720\ns_add_u32 s%d, s%d, %d\nv_add_u32 v%d, s%d, v%d" % (sT, sW, sT, sT, L_WV, va, sT, vL16))
    for k in range(30): A("ds_write_b128 v%d, %s offset:%d" % (va, v(VT + 4 * k, 4), k * 1024))
    A("s_waitcnt lgkmcnt(0)")

def consts(A, opt):
    n, g, t, u, g0, g1, n16, n7, nh, rw = range(128, 138)
    def fld(d, src, lo, w): A("v_bfe_u32 v%d, v%d, %d, %d" % (d, src, lo, w))
    def mad(d, a, sh, b): A("v_lshl_add_u32 v%d, v%d, %d, v%d" % (d, a, sh, b))
    def sadd(d, expr_s): A("v_add_u32 v%d, s%d, v%d" % (d, expr_s, d))
    fld(n, 0, 0, 4); fld(g, 0, 4, 2); fld(g0, 0, 4, 1); fld(g1, 0, 5, 1); fld(nh, 0, 3, 1)
    A("v_lshlrev_b32 v%d, 4, v%d\nv_and_b32 v%d, 0x70, v%d" % (n16, n, n7, n16))
    fld(t, 0, 1, 1)
    A("v_mov_b32 v%d, 0x4444\nv_mov_b32 v%d, 0xeeee\nv_cmp_eq_u32 vcc, 0, v%d\nv_cndmask_b32 v%d, v%d, v%d, vcc" % (vT0, vT1, t, vIdx, vT1, vT0))
    A("v_and_b32 v%d, 1, v%d\nv_lshlrev_b32 v%d, 4, v%d\nv_mov_b32 v%d, 0x3f80\nv_lshlrev_b32 v%d, v%d, v%d" % (t, n, t, t, u, u, t, u))
    A("v_and_b32 v%d, 4, v%d\nv_lshlrev_b32 v%d, 2, v%d\nv_mov_b32 v%d, 0x3f80\nv_lshlrev_b32 v%d, v%d, v%d\nv_and_b32 v%d, 3, v%d" % (t, n, t, t, rw, rw, t, rw, t, n))
    for d in range(4): A("v_cmp_eq_u32 vcc, %d, v%d\nv_cndmask_b32 v%d, 0, v%d, vcc" % (d, t, vSelR + d, rw))
    A("v_cmp_eq_u32 vcc, 0, v%d\nv_cndmask_b32 v%d, 0, 1, vcc" % (t, vTm))
    A("v_and_b32 v%d, 1, v%d\nv_xor_b32 v%d, 1, v%d" % (vTe, n, vTe, vTe))
    fld(vT0, n, 2, 2); fld(vT1, n, 1, 1)
    A("v_cmp_eq_u32 vcc, v%d, v%d\nv_cndmask_b32 v%d, 0, v%d, vcc" % (vT0, g, u, u))
    A("v_mov_b32 v%d, v%d\nv_mov_b32 v%d, v%d" % (vSel2, u, vSel2 + 1, u))
    for d in range(2): A("v_cmp_eq_u32 vcc, %d, v%d\nv_cndmask_b32 v%d, 0, v%d, vcc" % (1 - d, vT1, vSelT + d, u))
    A("v_mov_b32 v%d, v%d\nv_mov_b32 v%d, v%d" % (vSelT + 2, vSelT, vSelT + 3, vSelT + 1))
    A("s_mov_b32 s%d, 0xcccccccc\ns_mov_b32 s%d, 0xcccccccc" % (sQm, sQm + 1))
    for d in range(5): A("v_mov_b32 v%d, 0x3f803f80" % (vOne + d))
    A("v_mov_b32 v%d, 0\nv_mov_b32 v%d, 0\nv_mov_b32 v%d, 0" % (vOne + 5, vZ, vZ1))
    mad(vQ16, g0, 3, n16); mad(vQ32, g, 9, n16); mad(vQ16, g1, 9, vQ16)
    A("v_lshlrev_b32 v%d, 3, v%d" % (u, g0)); mad(u, g1, 5, u)
    A("v_and_b32 v%d, 1, v%d\nv_lshlrev_b32 v%d, 7, v%d" % (t, n, vMr, t)); fld(rw, n, 1, 3); mad(vMr, rw, 4, vMr); mad(vMr, g, 8, vMr)
    A("s_mul_i32 s%d, s%d, 1280\nv_add_u32 v%d, s%d, v%d\nv_lshlrev_b32 v%d, 2, v0\nv_add_u32 v%d, s%d, v%d" % (sT, sW, vMw, sT, vL16, vMw1, vMw1, sT, vMw1))
    A("v_xor_b32 v%d, 1, v%d\nv_mul_u32_u24 v%d, 3072, v%d\nv_and_b32 v%d, 0xd0, v%d\nv_add_u32 v%d, v%d, v%d" % (t, vT1, t, t, rw, n16, t, t, rw))
    A("v_add_u32 v%d, v%d, v%d\ns_lshl_b32 s%d, s%d, 7\ns_add_u32 s%d, s%d, %d" % (vOw2, t, u, sT, sSBc, sT, sT, L_O)); sadd(vOw2, sT)
    mad(vOw4, g0, 5, t); mad(vOw4, g1, 8, vOw4)
    A("s_lshl_b32 s%d, s%d, 7\ns_add_u32 s%d, s%d, %d" % (sT, sPBc, sT, sT, L_O)); sadd(vOw4, sT)
    A("v_lshlrev_b32 v%d, 2, v0" % vL4)
    A("s_mul_i32 s%d, s%d, %d\nv_add_u32 v%d, s%d, v%d\nv_add_u32 v%d, s%d, v%d" % (sT, sW, SPM_W, vSm16, sT, vL16, vSm4, sT, vL4))
    A("s_mul_i32 s%d, s%d, %d\nv_add_u32 v%d, s%d, v%d\nv_add_u32 v%d, s%d, v%d" % (sT, sW, SPT_W, vSt16, sT, vL16, vSt8, sT, vL8))
    A("s_mul_i32 s%d, s%d, 30720\ns_add_u32 s%d, s%d, %d\nv_add_u32 v%d, s%d, v%d" % (sT, sW, sT, sT, L_WV, vWv, sT, vL16))
    A("v_min_u32 v%d, 8, v%d\nv_mul_u32_u24 v%d, 86, v%d\nv_lshrrev_b32 v%d, 8, v%d\nv_mul_u32_u24 v%d, 93, v%d\ns_mul_i32 s%d, s%d, 3" % (vFlag0, n, t, vFlag0, t, t, t, t, sT, sH))
    A("v_add3_u32 v%d, v%d, v%d, s%d\nv_lshrrev_b32 v%d, 2, v%d\nv_lshlrev_b32 v%d, 8, v%d" % (vFlag0, vFlag0, t, sT, vFlag0, vFlag0, vFlag0, vFlag0))
    if True:
        l = A.lab('nosel')
        A("s_and_b32 s%d, s%d, 1\ns_lshl_b32 s%d, s%d, 3\nv_and_b32 v%d, 7, v%d\nv_add_u32 v%d, s%d, v%d" % (sT, sW, sT, sT, n, n, n, sT, n))
        A("s_cmp_lt_u32 s%d, 2\ns_cbranch_scc1 %s" % (sW, l))
        mad(t, g, 4, n)
        A("v_lshlrev_b32 v%d, 4, v%d" % (vSelR, t)); mad(vSelR + 2, nh, 3, vSelR); mad(vSelR, nh, 10, vSelR)
        A("v_lshrrev_b32 v%d, 1, v%d\nv_lshrrev_b32 v%d, 2, v%d" % (vSelR + 1, vSelR + 2, vSelR + 3, vSelR + 2))
        A(l + ":")
        A("v_lshlrev_b32 v%d, 2, v%d" % (t, g)); mad(t, nh, 4, t)
    A("s_lshl_b32 s%d, s%d, 4\nv_add_u32 v%d, s%d, v%d\nv_sub_u32 v%d, v%d, v%d" % (sT, sJ, n, sT, n, n, n, t))
    for b in range(4): A("v_cmp_le_i32 %s, %d, v%d" % (s(sMask + 2 * b, 2), b, n))
    import math, struct
    c = struct.unpack('<I', struct.pack('<f', 192 ** -0.5 * math.log2(math.e)))[0]
    A("s_mov_b32 s%d, 0x%x\ns_mov_b32 s%d, 0xff800000" % (sC, c, sNeg))

def pkadd(d, a, b): return "v_pk_add_f32 %s, %s, %s" % (v(d, 2), v(a, 2), v(b, 2))
def tagit(d): return "v_bfi_b32 v%d, 1, s%d, v%d" % (d, sTag, d)
def tagcheck(rl, t, fixed0=False, one='1'):
    rl = list(rl); L = []
    if fixed0:
        L.append("v_or3_b32 v%d, v%d, v%d, v%d" % (t, rl[0], rl[1], rl[2])); rl = rl[3:]
        while len(rl) > 1: L.append("v_or3_b32 v%d, v%d, v%d, v%d" % (t, t, rl[0], rl[1])); rl = rl[2:]
        if rl: L.append("v_or_b32 v%d, v%d, v%d" % (t, t, rl[0]))
    elif len(rl) == 1: L.append("v_xor_b32 v%d, s%d, v%d" % (t, sTag, rl[0]))
    else:
        L.append("v_bitop3_b32 v%d, v%d, v%d, s%d bitop3:0x7e" % (t, rl[0], rl[1], sTag))
        for r in rl[2:]: L.append("v_bitop3_b32 v%d, v%d, v%d, s%d bitop3:0xf6" % (t, t, r, sTag))
    return L + ["v_and_b32 v%d, %s, v%d" % (t, one, t), "v_cmp_ne_u32 vcc, 0, v%d" % t]
def xgroup(A, op, t0, t1):
    A("v_permlane32_swap_b32 v%d, v%d\n%s v%d, v%d, v%d\nv_mov_b32 v%d, v%d" % (t0, t1, op, t0, t0, t1, t1, t0))
    A("v_permlane16_swap_b32 v%d, v%d\n%s v%d, v%d, v%d" % (t0, t1, op, t0, t0, t1))

def stamp(A, opt, k, flush=False):
    if opt.get('stamp') and (opt['stamp'] == 1 or k in opt['stamp'] or flush):
        A("%s s[96:97]\ns_waitcnt lgkmcnt(0)\nv_writelane_b32 v0, s96, %d" % ('s_memrealtime' if opt.get('rt') else 's_memtime', k))
        if flush:
            if opt['stamp'] != 1: A("v_writelane_b32 v0, s55, 14")
            A("v_writelane_b32 v0, s%d, 15\ns_mov_b64 exec, 0xffff" % sBud)
            A("buffer_store_dword v0, v%d, %s, s%d offen\ns_mov_b64 exec, -1" % (vL4, WS, sTS))

def add(d, a, b): return "v_add_f32 v%d, v%d, v%d" % (d, a, b)
def zero16(d): return "v_mfma_f32_32x32x8_bf16 %s, %s, %s, 0" % (v(d, 16), v(vZ, 2), v(vZ, 2))
def step_loop(A, opt, fl, tag):
    Z = []
    top, done = "L_rec_top" + tag, "L_rec_done" + tag
    XO = [AQ + 8 * i for i in range(3)]
    Z32, Z16, P, PM, LD = AQ + 4, AQ + 12, AQ, AQ + 14, AV + 8
    Sp = OD = [AQ + 8, AQ + 16, AQ + 20]
    VM = [AV, AV + 4, AV + 2]
    OT = [OD[0], OD[0] + 2, OD[2]]
    k_loads = [ld(4, KX, vQ32, sK32), ld(4, KX + 4, vQ32, sK32, 256), ld(2, KX + 8, vQ16, sK16), ld(2, KX + 10, vQ16, sK16, 256)]
    q_loads = [ld(4, QX, vQ32, sQ32), ld(2, QX + 4, vQ16, sQ16)]
    v_loads = [ld(4, VX, vL16, sVp), ld(4, VX + 4, vL16, sVp, 1024), ld(4, VX + 8, vL16, sVs)]
    o_stores = ["s_add_u32 s%d, s%d, %d\ns_add_u32 s%d, s%d, %d" % (sT, sO32, O_SEG, sT2, sO16, O_SEG),
                "v_permlane16_swap_b32 v%d, v%d\nv_permlane16_swap_b32 v%d, v%d" % (OT[2], OT[2] + 2, OT[2] + 1, OT[2] + 3), st(4, OT[0], vQ32, sT, 0, 'sc1'),
                "s_mov_b64 exec, %s\n" % s(sEv, 2) + st(4, OT[2], vQ16, sT2, 0, 'sc1') + "\ns_mov_b64 exec, -1"]
    oflag = "s_mov_b64 exec, 1\nv_mov_b32 v%d, s%d\nbuffer_store_dword v%d, off, %s, s%d sc1\ns_mov_b64 exec, -1" % (vT1, sStep, vT1, WS, sFO)
    lane0 = not (opt.get('stamp') or opt.get('lstamp'))
    if lane0: oflag = "v_mov_b32 v%d, s%d\n" % (vT1, sStep) + st(1, vT1, 0, sFO, 0, 'sc1')
    adv = lambda rs, k: ["s_add_u32 s%d, s%d, %s" % (r, r, k) for r in rs]
    zero = [zero16(AQ), zero16(AQ + 16), mf16(AQ + 32, vZ, vZ)]
    tokmm = [mf32(Sp[0], KX, QX), mf32(Sp[1], KX + 4, QX), mf32(Sp[2], Z32, QX), mf16(Sp[0], KX + 8, QX + 4, Sp[0]), mf16(Sp[1], KX + 10, QX + 4, Sp[1]), mf16(Sp[2], Z16, QX + 4, Sp[2])]
    tokwr = ["ds_write_b128 v%d, %s offset:%d" % (vSt16, v(Sp[i], 4), L_SPT + 1024 * i) for i in range(2)] + ["ds_write_b64 v%d, %s offset:%d" % (vSt8, v(Sp[2], 2), L_SPT + 2048)]
    book = ["s_add_u32 s%d, s%d, 1" % (sStep, sStep), "s_and_b32 s%d, s%d, 1" % (sTag, sStep)] + adv((sHCx, sHCr), "s%d" % sHd)
    book += ["s_mov_b32 s%d, %d" % (sHd, HC_STEP), "s_andn2_b32 s%d, 3, s%d\ns_cselect_b32 s%d, s%d, %d" % (sT, sStep, sHd, sHd, -3 * HC_STEP), "s_add_u32 s%d, s%d, s%d" % (sClr, sHCx, sHd)]
    book += ["s_mov_b32 s%d, %d" % (sT, O_SEG), "s_cmp_eq_u32 s%d, 1\ns_cselect_b32 s%d, %d, s%d" % (sStep, sT, O_SEG - OOBS, sT)] + adv((sO32, sO16), "s%d" % sT)
    book += adv((sK32, sK16, sVp, sVs, sQ32, sQ16), QKV_SEG) + adv((sFQ,), "s%d" % sFs)
    def wrd(k):
        d = WSG + 8 * (k % 3)
        return [(k, "ds_read_b128 %s, v%d offset:%d" % (v(d + 4 * h, 4), vWv, k * 2048 + 1024 * h)) for h in range(2)]
    npre = 3
    pf = Poll(A, Z, 'fq' + tag, [ld(1, vT2, vFlag, sFQ)], sleep=4)
    pf0 = Poll(A, Z, 'fq0' + tag, [ld(1, vT0, vFlag0, sFQ)], sleep=4)
    temp_srd(A, pMem, 8 * 640 * 2)
    A("v_bfe_u32 v%d, v0, 2, 2\nv_and_b32 v%d, 1, v0\nv_lshl_add_u32 v%d, v%d, 1, v%d\nv_mul_u32_u24 v%d, 1280, v%d" % (vT0, vT1, vT0, vT0, vT1, vT0, vT0))
    A("v_bfe_u32 v%d, v0, 1, 1\nv_lshl_add_u32 v%d, v%d, 4, v%d\nv_lshrrev_b32 v%d, 4, v0\nv_lshl_add_u32 v%d, v%d, 5, v%d" % (vT1, vT0, vT1, vT0, vT1, vT0, vT1, vT0))
    A("s_mul_i32 s%d, s%d, 640" % (sT, sJ))
    for t in range(5): A("buffer_load_dwordx4 %s, v%d, %s, s%d offen offset:%d" % (v(MF + 4 * t, 4), vT0, TS, sT, 128 * t))
    pf0.issue(); pf0.start(0); A("v_cmp_ge_i32 vcc, 0, v%d" % vT0); pf0.branch()
    for l in k_loads + v_loads: A(l)
    A("s_cmp_eq_u32 s%d, 2\ns_cselect_b32 s%d, s%d, s%d\ns_cselect_b32 s%d, 0, %d\ns_cselect_b64 vcc, -1, 0" % (sW, sFQ, sFQ, sFs, sFs, QKV_SEG))
    A("v_lshlrev_b32 v%d, 2, v%d\nv_cndmask_b32 v%d, v%d, v%d, vcc" % (vFlag, vL16, vFlag, vFlag, vFlag0))
    for l in zero: A(l)
    for k in range(npre):
        for _, l in wrd(k): A(l)
    if lane0: A("v_lshlrev_b32 v0, 24, v0\nv_min_u32 v0, 0x1000000, v0\nv_lshlrev_b32 v0, 4, v0")
    A("s_waitcnt lgkmcnt(0)\ns_nop 15")
    A(top + ":")
    stamp(A, opt, 0)
    if opt.get('lstamp'): A("s_memtime s[96:97]" if opt.get('lcyc') else "s_memrealtime s[96:97]")
    Q = Lgkm()
    for t in range(5): Q.op(('m', t), '')
    pend = []
    for k in range(npre, 3): pend += wrd(k)
    def epi(b, d): return [add(b, b, b + 2), add(b + 1, b + 1, b + 3), cvt(d, b, b + 1)]
    hl = lambda D: [ld(2, D[i], vL8, sHAp, 512 * i) for i in range(3)]
    fill = {}
    def put(p, L):
        for l in L:
            while p in fill: p += 1
            fill[p] = l
    for j in range(5): put(5 * j + 6, epi(AQ + 4 * j, XO[j >> 1] + (j & 1)) + [st(2, XO[j >> 1], vL8, sHAo, 512 * (j >> 1), fl) if j & 1 else tagit(XO[j >> 1])])
    put(36, epi(AV, AV) + ["v_mov_b32 v%d, s%d" % (AV + 3, sTag)])
    put(41, epi(AV + 4, AV + 1))
    def need(p):
        m, i, t = SEQ[p]; w = Q.wait(('m', t))
        if (m, i, t) in WLDS:
            k = WLDS[(m, i, t)]; assert all(x[0] != k for x in pend), p
            w += Q.wait(k)
        return w
    A(need(0))
    bk = list(book)
    for p, (m, i, t) in enumerate(SEQ):
        acc = AV + 4 * i if m == 'v' else AQ + 8 * i + (4 if m == 'k' else 0)
        if (m, i, t) in WLDS:
            k = WLDS[(m, i, t)]; b = WSG + 8 * (k % 3)
            if k + 3 < 15: pend += wrd(k + 3)
        else: b = WREG[(m, i, t)]
        A(smf(acc, MF + 4 * t, b))
        w = need(p + 1) if p + 1 < len(SEQ) else ''
        A(w)
        room = 2 - w.count('\n')
        while bk and bk[0].count('\n') + 1 <= room: room -= bk[0].count('\n') + 1; A(bk.pop(0))
        if p == 31:
            for l in epi(AQ + 20, XO[2] + 1) + [st(2, XO[2], vL8, sHAo, 1024, fl)]: A(l)
            stamp(A, opt, 1)
        for _ in range(1 if p < 31 else 2):
            if pend and (p not in fill or p >= 31 or p in opt.get('dbl', (9, 21, 29))):
                k, l = pend.pop(0); A(Q.op(k, l))
        if p in fill: A(fill[p])
        if p in (34, 35, opt.get('ha_at', 40)): A(hl([x + 2 for x in XO])[min(p - 34, 2)])
    assert not bk
    X2, X3 = [QX + 2 * i for i in range(3)], [WSG + 16 + 2 * i for i in range(3)]
    ve = epi(AV + 8, AV + 2) + [st(4, AV, vL16, sHAo, 1536, fl)]
    for l in (hl(X2) + ve if opt.get('x2first', 0) else ve + hl(X2)): A(l)
    stamp(A, opt, 2)
    ZD = WSG
    budget = "s_add_u32 s%d, s%d, 1\ns_cmp_lt_u32 s%d, %d\ns_cselect_b32 s%d, 1, 0" % (sBud, sBud, sBud, BUDGET, sLive)
    live = "s%d" % sLive
    zcv = [cvt(Z32 + r, ZD + 2 * r, ZD + 2 * r + 1) for r in range(4)] + [cvt(Z16 + r, ZD + 8 + 2 * r, ZD + 9 + 2 * r) for r in range(2)]
    chk = tagcheck([x + 2 for x in XO], vT0)
    A("s_waitcnt vmcnt(5)\n" + mf32(ZD, XO[0], vSelT) + "\n" + chk[0] + "\n" + mf32(ZD + 4, XO[1], vSelT) + "\ns_waitcnt vmcnt(4)\n" + chk[1] + "\n" + chk[2])
    A(mf32(ZD + 8, XO[2], vSelT) + "\n" + chk[3])
    for l in zcv: A(l)
    miss, got = A.lab('hamiss'), A.lab('hagot')
    A("s_cbranch_vccnz %s\n%s:" % (miss, got))
    B = Asm(); B(miss + ":")
    def tsum(D, one):
        for i in range(3): B(mf16(ZD + 4 * i, XO[i], vSelT))
        B("s_waitcnt vmcnt(3)")
        for l in interleave([mf16(ZD + 4 * i, D[i], vSelT, ZD + 4 * i) for i in range(3)], tagcheck(D, vT0, one=one), per=2) + zcv: B(l)
    for l in hl(X3): B(l)
    B(budget); tsum(X2, live); B("s_cbranch_vccz " + got)
    for l in hl(X2): B(l)
    tsum(X3, '1'); B("s_cbranch_vccnz %s\ns_branch %s" % (miss, got))
    Z.extend(B.L)
    stamp(A, opt, 3)
    pv = Poll(A, Z, 'hv' + tag, [ld(4, AV + 4, vL16, sHAp, 1536)])
    short = 1; last, tok = A.lab('last'), A.lab('tok')
    if short:
        B = Asm(); B.uid = A.uid + 2000
        pw = Poll(B, Z, 'hw' + tag, pv.loads)
        B(last + ":")
        for l in q_loads + pw.loads: B(l)
        B("s_barrier\n" + oflag + "\ns_mov_b32 s%d, 0" % sRed)
        pw.start(1)
        for l in tagcheck([AV + 7], vT0): B(l)
        pw.branch()
        B("v_swap_b32 v%d, v%d\nv_mov_b32 v%d, v%d\nv_mov_b32 v%d, 64\ns_branch %s" % (AV + 1, AV + 4, AV + 3, AV + 6, vT2, tok))
        Z.extend(B.L)
    A(mf32(Sp[0], KX, Z32) + ("\ns_cmp_eq_u32 s%d, 63\ns_cbranch_scc1 %s\n" % (sStep, last) if short else "\n") + mf32(Sp[1], KX + 4, Z32) + "\ns_mov_b64 vcc, %s\n" % s(sQm, 2) + mf32(Sp[2], Z32, Z32))
    A("v_add_u32 v%d, %d, v%d\nds_read_b128 %s, v%d offset:%d" % (vT1, L_OT + 1024, vSt8, v(LD, 4), vSt16, L_OT))
    A(mf16(Sp[0], KX + 8, Z16, Sp[0]))
    A("ds_read2_b64 %s, v%d offset0:0 offset1:16" % (v(WSG + 12, 4), vT1))
    A(mf16(Sp[1], KX + 10, Z16, Sp[1]) + "\n" + mf16(Sp[2], Z16, Z16, Sp[2]))
    A(mf16(MF + 16, vZ, vZ))
    stamp(A, opt, 10)
    q23 = "quad_perm:[2,3,2,3] row_mask:0xf bank_mask:0xf"
    for b in range(4): A("v_cndmask_b32_dpp v%d, v%d, v%d, vcc %s" % (Sp[0] + b, Sp[1] + b, Sp[0] + b, q23))
    A("ds_write_b128 v%d, %s offset:%d" % (vSm16, v(Sp[0], 4), L_SPM))
    A("v_cndmask_b32_dpp v%d, v%d, v%d, vcc %s" % (Sp[2], Sp[2] + 1, Sp[2], q23))
    A("ds_write_b32 v%d, v%d offset:%d" % (vSm4, Sp[2], L_SPM + 1024))
    A(zero16(MF))
    pv.issue()
    A("s_waitcnt vmcnt(1) lgkmcnt(0)"); stamp(A, opt, 11); A("s_barrier"); stamp(A, opt, 12)
    T = WSG
    for w in range(2): A("ds_read_b128 %s, v%d offset:%d" % (v(T + 4 * w, 4), vL16, L_SPM + SPM_W * w))
    A("ds_read_b128 %s, v%d offset:%d\nds_read_b128 %s, v%d offset:%d" % (v(T + 8, 4), vL16, L_SPM + SPM_W * 2, v(T + 16, 4), vL16, L_SPM + SPM_W * 3))
    o0 = (L_SPM + 1024) // 256
    A("ds_read2st64_b32 %s, v%d offset0:%d offset1:%d\nds_read2st64_b32 %s, v%d offset0:%d offset1:%d" % (v(T + 20, 2), vL4, o0, o0 + 22, v(T + 22, 2), vL4, o0 + 44, o0 + 66))
    slow = [st(4, LD, vQ32, sO32, 0, 'sc1'), "s_mov_b64 exec, %s\n" % s(sEv, 2) + st(4, WSG + 12, vQ16, sO16, 0, 'sc1') + "\ns_mov_b64 exec, -1"] + q_loads + pf.loads
    slow += [st(1, AV + 3, vL4, sClr, 0, 'sc1')]
    slow = [slow[i] for i in opt.get('sord', (0, 5, 4, 2, 1, 3))]
    nslow = [0]
    plan = list(opt.get('splan', (4, 1, 1, 0, 0, 0, 0)))
    def slow1():
        for _ in range(plan.pop(0)):
            if slow: A(slow.pop(0)); nslow[0] += 1
    slow1()
    x = 0
    A("s_waitcnt lgkmcnt(%d)\n" % (4 + x) + pkadd(T, T, T + 4) + "\n" + pkadd(T + 2, T + 2, T + 6))
    A("s_waitcnt lgkmcnt(%d)\n" % (2 + x) + pkadd(T + 8, T + 8, T + 16) + "\n" + pkadd(T + 10, T + 10, T + 18))
    A(pkadd(T, T, T + 8) + "\n" + pkadd(T + 2, T + 2, T + 10))
    A("s_waitcnt lgkmcnt(%d)\n" % x + pkadd(T + 20, T + 20, T + 22) + "\nv_max3_f32 v%d, v%d, v%d, v%d\n" % (vT0, T, T + 1, T + 2) + add(T + 4, T + 20, T + 21))
    stamp(A, opt, 4)
    qx = "quad_perm:[2,3,0,1] row_mask:0xf bank_mask:0xf"; q01 = "quad_perm:[0,1,0,1] row_mask:0xf bank_mask:0xf"
    A("v_max3_f32 v%d, v%d, v%d, v%d" % (vT0, vT0, T + 3, T + 4))
    slow1()
    A("v_max_f32_dpp v%d, v%d, v%d %s\nv_max_f32_dpp v%d, v%d, v%d %s" % (vT1, vT0, vT0, qx, vT0, vT0, vT0, qx))
    A("v_permlane32_swap_b32 v%d, v%d\nv_max_f32 v%d, v%d, v%d\nv_max_f32 v%d, v%d, v%d" % (vT0, vT1, T + 5, vT0, vT1, vT0, vT0, vT1))
    slow1()
    A("v_permlane16_swap_b32 v%d, v%d\nv_max_f32 v%d, v%d, v%d" % (vT0, T + 5, vT0, vT0, T + 5))
    A("v_mul_f32 v%d, s%d, v%d" % (vT0, sC, vT0))
    for i in range(5): A("v_fma_f32 v%d, v%d, s%d, -v%d" % (T + i, T + i, sC, vT0))
    for i in range(5): A("v_exp_f32 v%d, v%d" % (T + i, T + i))
    A(cvt(P, T, T + 1) + "\n" + cvt(P + 1, T + 2, T + 3))
    A("v_mov_b32_dpp v%d, v%d %s\nv_mov_b32_dpp v%d, v%d %s\nv_mov_b32_dpp v%d, v%d %s" % (T + 5, T + 4, q01, P + 2, P, q01, P + 3, P + 1, q01))
    A(cvt(PM, T + 4, T + 5) + "\n" + cvt(PM + 1, T + 4, T + 5))
    stamp(A, opt, 13)
    def pvmm(mem):
        mm = [mf32(LD, vOne, P)] + [mf32(OD[i], VX + 4 * i, P) for i in range(3)]
        if mem:
            pv.start(nslow[0])
            for l in interleave(mm, tagcheck([AV + 7], vT0), per=2): A(l)
            pv.branch(); A("v_swap_b32 v%d, v%d" % (AV + 1, AV + 4))
        else:
            for l in mm: A(l)
        A(mf16(LD, vOne + 4, PM, LD))
        if mem: A("v_mov_b32 v%d, v%d" % (AV + 3, AV + 6)); slow1()
        A(mf16(OD[0], VM[0], PM, OD[0]))
        if mem: slow1()
        A(mf16(OD[1], VM[1], PM, OD[1]))
        A("v_rcp_f32 v%d, v%d" % (LD, LD))
        A(mf16(OD[2], VM[2], PM, OD[2]))
    def pvnorm(mem, dst):
        for i in range(3):
            if i == 0:
                for r in range(4): A("v_mul_f32 v%d, v%d, v%d" % (OD[0] + r, OD[0] + r, LD))
            else:
                for r in (0, 2): A("v_pk_mul_f32 %s, %s, %s op_sel_hi:[1,0]" % (v(OD[i] + r, 2), v(OD[i] + r, 2), v(LD, 2)))
            for r in (0, 1): A(cvt(dst[i] + r, OD[i] + 2 * r, OD[i] + 2 * r + 1))
            if mem and i == 1: stamp(A, opt, 14)
            if mem and i == 1: A("ds_write_b128 v%d, %s" % (vOw4, v(dst[0], 4)))
            if mem and i == 2: A("ds_write_b64 v%d, %s" % (vOw2, v(dst[2], 2)))
    pvmm(True); pvnorm(True, [OD[0], OD[0] + 2, OD[2]])
    slow1(); slow1(); assert not slow
    A("s_waitcnt lgkmcnt(0)\ns_barrier")
    stamp(A, opt, 5)
    WA, AW, HQ = WSG, MF, WSG + 12
    for t in range(3): A("ds_read_b128 %s, v%d offset:%d" % (v(WA + 4 * t, 4), vL16, L_O + 1024 * t))
    mo = opt.get('mo', [(i, t) for i in range(5) for t in range(3)])
    F = []
    for i in range(5):
        e = max(k for k, x in enumerate(mo) if x[0] == i) + 2
        F += [(e, l) for l in epi(AW + 4 * i, HQ + i) + ["v_bfi_b32 v%d, v%d, s%d, v%d" % (HQ + i, vTm, sTag, HQ + i), st(1, HQ + i, vL4, sMask + 8 + i, 0, fl)]]
    F.sort(key=lambda x: x[0])
    seen = set(); per = opt.get('woper', {})
    for k, (i, t) in enumerate(mo):
        if t not in seen: A("s_waitcnt lgkmcnt(%d)" % (2 - t)); seen.add(t)
        A(smf(AW + 4 * i, WA + 4 * t, WREG[('o', i, t)]))
        for _ in range(per.get(k, 1)):
            if F and F[0][0] <= k: A(F.pop(0)[1])
    for _, l in F: A(l)
    stamp(A, opt, 6)
    RD, DR = WSG, WSG + 20
    nored, join = A.lab('nored'), A.lab('join')
    A("s_waitcnt vmcnt(5)")
    A(tok + ":")
    for l in tokmm: A(l)
    A("s_cmp_eq_u32 s%d, 0\ns_cbranch_scc1 %s" % (sRed, nored))
    rl = lambda d: [ld(4, d + 4 * t, vL16, sHBr, 1024 * t) for t in range(4)]
    pub = A.lab('pub')
    share = "s_waitcnt lgkmcnt(0)\ns_barrier"
    def check(d):
        chk = tagcheck(range(d, d + 16, 4), vT0, one=live)
        A("s_waitcnt vmcnt(6)\n" + mf32(DR, vSelR, d) + "\n" + mf32(DR, vSelR, d + 4, DR) + "\n" + chk[0])
        A("s_waitcnt vmcnt(5)\n" + mf32(DR, vSelR, d + 8, DR) + "\n" + chk[1])
        A("s_waitcnt vmcnt(4)\n" + mf32(DR, vSelR, d + 12, DR))
        for x in chk[2:]: A(x)
    l, l2 = A.lab('hb'), A.lab('hb')
    for x in rl(RD) + tokwr + rl(MF) + [share]: A(x)
    A(l2 + ":\n" + budget)
    check(RD)
    A("s_cbranch_vccz " + pub)
    for x in rl(RD): A(x)
    check(MF)
    A("s_cbranch_vccnz " + l)
    Z.extend([l + ":"] + rl(MF) + ["s_branch " + l2])
    A(pub + ":")
    A("s_mov_b32 exec_hi, 0")
    A(cvt(DR, DR, DR + 1) + "\n" + cvt(DR + 1, DR + 2, DR + 3) + "\n" + tagit(DR))
    A(st(2, DR, vL8, sHCx, 0, 'sc1') + "\n" + st(2, DR, vL8, sHCl, 0, fl))
    A("s_mov_b32 exec_hi, -1")
    stamp(A, opt, 7)
    A(join + ":\ns_waitcnt lgkmcnt(0)\ns_barrier")
    B = Asm(); B.uid = A.uid + 1000
    B(nored + ":\n" + "\n".join(tokwr))
    T_ = MF
    B(share + "\ns_cmp_lt_u32 s%d, 2\ns_cbranch_scc1 %s" % (sW, join))
    for w in range(4): B("ds_read_b128 %s, v%d offset:%d" % (v(T_ + 4 * w, 4), vSelR, L_SPT + SPT_W * w))
    o1 = (L_SPT + 2048) // 256
    B("ds_read2st64_b32 %s, v%d offset0:%d offset1:%d\nds_read2st64_b32 %s, v%d offset0:%d offset1:%d" % (v(T_ + 16, 2), vSelR + 1, o1, o1 + 22, v(T_ + 18, 2), vSelR + 1, o1 + 44, o1 + 66))
    B("v_mov_b32 v%d, s%d" % (vT1, sNeg))
    B("s_waitcnt lgkmcnt(4)\n" + pkadd(T_, T_, T_ + 4) + "\n" + pkadd(T_ + 2, T_ + 2, T_ + 6))
    B("s_waitcnt lgkmcnt(2)\n" + pkadd(T_ + 8, T_ + 8, T_ + 12) + "\n" + pkadd(T_ + 10, T_ + 10, T_ + 14))
    B(pkadd(T_, T_, T_ + 8) + "\n" + pkadd(T_ + 2, T_ + 2, T_ + 10))
    B("s_waitcnt lgkmcnt(0)\n" + pkadd(T_ + 16, T_ + 16, T_ + 18))
    for r in range(4): B("v_cndmask_b32 v%d, v%d, v%d, %s" % (T_ + r, vT1, T_ + r, s(sMask + 2 * r, 2)))
    r8 = "row_ror:8 row_mask:0xf bank_mask:0xf"
    B(add(T_ + 4, T_ + 16, T_ + 17) + "\nv_max3_f32 v%d, v%d, v%d, v%d\nv_max3_f32 v%d, v%d, v%d, v%d" % (vT0, T_, T_ + 1, T_ + 2, vT0, vT0, T_ + 3, T_ + 4))
    B("v_max_f32_dpp v%d, v%d, v%d %s\nv_max_f32_dpp v%d, v%d, v%d %s" % (vT1, vT0, vT0, r8, vT0, vT0, vT0, r8))
    xgroup(B, "v_max_f32", vT0, vT1)
    B("v_mul_f32 v%d, s%d, v%d" % (vT0, sC, vT0))
    for i in range(5): B("v_fma_f32 v%d, v%d, s%d, -v%d" % (T_ + i, T_ + i, sC, vT0))
    for i in range(5): B("v_exp_f32 v%d, v%d" % (T_ + i, T_ + i))
    B(cvt(T_, T_, T_ + 1) + "\n" + cvt(T_ + 1, T_ + 2, T_ + 3) + "\n" + cvt(T_ + 2, T_ + 4, T_ + 4))
    B("ds_write_b64 v%d, %s offset:%d\nds_write_b16 v%d, v%d offset:%d" % (vSelR + 2, v(T_, 2), L_P, vSelR + 3, T_ + 2, L_P + 1024))
    stamp(B, opt, 7)
    B("s_cmp_lg_u32 s%d, 2\ns_cbranch_scc1 %s" % (sW, join))
    B("s_add_u32 s%d, s%d, 1\ns_min_u32 s%d, s%d, 63" % (sT, sStep, sT, sT))
    pf.A = B; pf.start(5); B("v_cmp_ge_i32 vcc, s%d, v%d" % (sT, vT2)); pf.branch(); B("s_branch " + join)
    rdp = "ds_read_b128 %s, v%d offset:%d\nds_read2st64_b32 %s, v%d offset0:%d offset1:%d" % (v(P, 4), vL16, L_P, v(PM, 2), vL4, L_P // 256 + 4, L_P // 256 + 4)
    A(rdp + "\ns_cmp_eq_u32 s%d, 63\ns_cbranch_scc1 %s" % (sStep, done))
    CL, CR, CS, CD = KX + 8, [KX, KX + 4], [QX, QX + 2], MF
    loc = [ld(4, CL, vL16, sHLr), ld(1, CS[0], vL4, sHLr, 1024)]
    rem = lambda k: [ld(4, CR[k], vL16, sHCr), ld(1, CS[k] + 1, vL4, sHCr, 1024)]
    def tags(q, x, one):
        return ["v_bitop3_b32 v%d, v%d, v%d, s%d bitop3:0x7e" % (vT0, q, q + 2, sTag), "v_bitop3_b32 v%d, v%d, s%d, v%d bitop3:0x28" % (vT1, x, sTag, vTe),
                "v_bitop3_b32 v%d, v%d, v%d, %s bitop3:0xa8" % (vT0, vT0, vT1, one), "v_cmp_ne_u32 vcc, 0, v%d" % vT0]
    parts = {'m': lambda: (A("s_waitcnt lgkmcnt(0)"), pvmm(False)), 'n': lambda: pvnorm(False, OT)}
    mem = {'o': ["ds_write_b128 v%d, %s offset:%d\nds_write_b64 v%d, %s offset:%d" % (vSt16, v(OT[0], 4), L_OT, vSt8, v(OT[2], 2), L_OT + 1024)],
           'z': zero, '.': ["s_nop 15"], ',': ["s_nop 7"], 'L': loc, 'R': rem(0), 'S': rem(1), 'v': v_loads, 'k': k_loads, 'f': [oflag], 'j': k_loads[:2], 'i': k_loads[2:]}
    order = opt.get('order', 'mLnRozS'); after = {}
    for c in order:
        n = 0
        if c in parts: parts[c]()
        else:
            for l in mem[c]: A(l); n += l.count('buffer_')
        if c == 'o':
            d, e = A.lab('direct'), A.lab('direct')
            A("s_cmp_eq_u32 s%d, 62\ns_cbranch_scc1 %s\n%s:" % (sStep, d, e))
            Z.extend([d + ":"] + o_stores + ["s_branch " + e])
        if c == 'R': stamp(A, opt, 8)
        for k in after: after[k] += n
        if c in 'LRS': after[c] = 0
    assert after['S'] == 0 and after['R'] == 2
    lchk, lmiss, miss, got = A.lab('hl'), A.lab('hlmiss'), A.lab('hcmiss'), A.lab('hcgot')
    A(budget + "\ns_waitcnt vmcnt(%d)\n%s:" % (after['L'], lchk))
    for l in tags(CL, CS[0], live): A(l)
    pre = [l for k in range(npre) for _, l in wrd(k)]
    for l in pre[:3]: A(l)
    A("s_cbranch_vccnz " + lmiss)
    B(lmiss + ":")
    if opt.get('stamp'): B("s_add_u32 s55, s55, 256")
    for l in loc + rem(0) + rem(1) + [budget, "s_waitcnt vmcnt(4)\ns_branch " + lchk]: B(l)
    def arrive(X, k, one, extra=()):
        for l in interleave([mf16(CD, vSelT, CL), mf16(CD + 4, vSelT, CL + 2)], extra, per=2): X(l)
        c = tags(CR[k], CS[k] + 1, one)
        X("s_waitcnt vmcnt(3)\n" + mf16(CD, vSelT, CR[k], CD) + "\n" + c[0] + "\n" + mf16(CD + 4, vSelT, CR[k] + 2, CD + 4))
        X("s_waitcnt vmcnt(2)\n" + c[1] + "\n" + c[2] + "\n" + mf16(CD + 8, vSel2, CS[k]) + "\n" + c[3])
    arrive(A, 0, live, ["v_mov_b32 v%d, v%d" % (CS[1], CS[0])] + pre[3:])
    A("s_cbranch_vccnz %s\n%s:" % (miss, got))
    B(miss + ":")
    if opt.get('stamp'): B("s_add_u32 s55, s55, 1")
    for l in rem(0): B(l)
    arrive(B, 1, '1'); B("s_cbranch_vccz " + got)
    if opt.get('stamp'): B("s_add_u32 s55, s55, 1")
    for l in rem(1) + [budget]: B(l)
    arrive(B, 0, live); B("s_cbranch_vccnz %s\ns_branch %s" % (miss, got))
    CO = CD + 12
    for r in range(4): A(cvt(CO + r, CD + 2 * (r ^ 1), CD + 2 * (r ^ 1) + 1))
    A("ds_write_b128 v%d, %s offset:%d\n" % (vMw, v(CO, 4), L_M) + cvt(CO + 4, CD + 8, CD + 9) + "\nds_write_b32 v%d, v%d offset:%d" % (vMw1, CO + 4, L_M + 1024))
    stamp(A, opt, 9, True)
    if opt.get('stamp'): A("s_add_u32 s%d, s%d, 64" % (sTS, sTS))
    if opt.get('lstamp'): A("s_mov_b32 m0, s%d\nv_writelane_b32 v0, s96, m0" % sStep)
    d1, d2 = opt.get('dorder', 'v|kf').split('|')
    assert sorted(c for c in order + d1 + d2 if c in 'vkf') in (list('fkv'), list('fv'))
    for c in d1:
        for l in mem[c]: A(l)
    A("s_waitcnt lgkmcnt(0)\ns_barrier")
    for t in range(5): A("ds_read_b128 %s, v%d offset:%d" % (v(MF + 4 * t, 4), vMr, L_M + 1024 * t))
    for c in d2:
        for l in mem[c]: A(l)
    A("s_branch " + top)
    A(done + ":\ns_waitcnt lgkmcnt(0)")
    pvmm(False); pvnorm(False, OT)
    for l in o_stores: A(l)
    A("s_waitcnt vmcnt(0)\ns_barrier\ns_mov_b64 exec, 1\nv_mov_b32 v%d, 64\nbuffer_store_dword v%d, off, %s, s%d sc1\ns_mov_b64 exec, -1" % (vT1, vT1, WS, sFO))
    if opt.get('lstamp'):
        A("s_mov_b32 m0, s%d\nv_writelane_b32 v0, s96, m0" % sStep); ldump(A, vT0, vL16, 0)
    leave(A, opt)
    for z in Z + B.L: A(z)

def rec_role(A, opt):
    place(opt.get('lpos', [0, 2, 4, 9, 15, 21, 28, 29, 32, 36, 37, 38, 42, 43, 44]))
    A("L_role_rec:")
    A("s_lshr_b32 s%d, s%d, 6\ns_bfe_u32 s%d, s%d, 0x10005\ns_and_b32 s%d, s%d, 1\ns_bfe_u32 s%d, s%d, 0x50001" % (sL, sRole, sX, sRole, sJ, sRole, sH, sRole))
    A("s_xor_b32 s%d, s%d, 1" % (sJo, sJ))
    A("s_lshl_b32 s%d, s%d, 3\ns_lshr_b32 s%d, 0x140c0800, s%d\ns_and_b32 s%d, s%d, 255\ns_lshr_b32 s%d, 0x12100604, s%d\ns_and_b32 s%d, s%d, 255" % (sT, sW, sPBc, sT, sPBc, sPBc, sSBc, sT, sSBc, sSBc))
    A("v_lshlrev_b32 v%d, 4, v0\nv_lshlrev_b32 v%d, 3, v0" % (vL16, vL8))
    load_weights(A, opt)
    wait_ready(A, vT0, opt, True)
    consts(A, opt)
    if opt.get('helpers'):
        A("s_cmp_eq_u32 s%d, 0\ns_cselect_b32 s%d, %d, 0\nv_bfe_u32 v%d, v0, 4, 1\nv_mul_lo_u32 v%d, v%d, s%d\nv_add_u32 v%d, v%d, v%d" % (sL, sT, 2 * 72 * FW, vT0, vT0, vT0, sT, vFlag0, vFlag0, vT0))
    def lin(dst, base, terms):
        A("s_mov_b32 s%d, %d" % (dst, base))
        for r, k in terms: A("s_mul_i32 s%d, s%d, %d\ns_add_u32 s%d, s%d, s%d" % (sT, r, k, dst, dst, sT))
    cu, r32, pcu, tau = 96, 97, 98, 99
    A("s_and_b32 s%d, s%d, 63\ns_and_b32 s%d, s%d, 31\ns_xor_b32 s%d, s%d, 1" % (cu, sRole, r32, sRole, pcu, cu))
    lin(sHAo, HA, [(sL, HA_LAYER), (cu, 4 * HA_W), (sW, HA_W)])
    lin(sHAp, HA, [(sL, HA_LAYER), (pcu, 4 * HA_W), (sW, HA_W)])
    A("s_lshr_b32 s%d, s%d, 1" % (pcu, r32))
    lin(sHBq, HB, [(sL, 2 * HB_X), (sX, HB_X), (sJo, 20 * 4096), (sW, 5 * 4096), (pcu, 256)])
    for i in range(5): A("s_add_u32 s%d, s%d, %d" % (sMask + 8 + i, sHBq, 4096 * i))
    A("s_lshr_b32 s%d, s%d, 3\ns_add_u32 s%d, s%d, 1\ns_sub_u32 s%d, s%d, s%d" % (tau, r32, tau, tau, tau, tau, sW))
    A("s_lshl_b32 s%d, s%d, 5\ns_add_u32 s%d, s%d, s%d\ns_cmp_lt_u32 s%d, 40\ns_cselect_b32 s%d, 1, 0" % (sRed, sW, sRed, sRed, r32, sRed, sRed))
    A("s_bfe_u32 s%d, s%d, 0x10002\ns_and_b32 s%d, s%d, 3\ns_mul_i32 s%d, s%d, 5\ns_add_u32 s%d, s%d, s%d" % (pcu, r32, r32, r32, r32, r32, tau, tau, r32))
    lin(sHBr, HB, [(sL, 2 * HB_X), (sX, HB_X), (pcu, 20 * 4096), (tau, 4096)])
    A("s_xor_b32 s%d, s%d, s%d\ns_and_b32 s%d, s%d, 3" % (sHd, sL, sNear, sHd, sHd))
    lin(sHCl, HL, [(sL, 20480), (sX, 10240), (pcu, 5120), (tau, 256)])
    lin(sHCx, HC, [(sX, 65536), (pcu, 32768), (sHd, 8192), (tau, 256)])
    A("s_cmp_eq_u32 s%d, 0\ns_cselect_b32 s%d, 0x%x, s%d" % (sRed, sHCx, OOBS, sHCx))
    lin(sHLr, HL, [(sL, 20480), (sX, 10240), (sJ, 5120), (sW, 1280)])
    lin(sHCr, HC + 65536, [(sX, -65536), (sJ, 32768), (sHd, 8192), (sW, 1280)])
    lin(sT2, QKV, [(sL, LS['q']), (sH, QKV_HEAD)])
    lin(sQ32, -QKV_SEG, [(sPBc, 512), (sJ, 256)]); lin(sQ16, -QKV_SEG, [(sSBc, 512), (sJ, 256)])
    lin(sK32, 12288, [(sPBc, 512)]); lin(sK16, 12288, [(sSBc, 512)])
    lin(sVp, 24576, [(sPBc, 512)]); lin(sVs, 24576, [(sSBc, 512)])
    A("s_min_u32 s%d, s%d, 2" % (tau, sW)); lin(sFs, 12288 if opt.get('pref', 0) else OOBS, [(sJ, 12288), (tau, 4096)])
    for r in (sQ32, sQ16, sK32, sK16, sVp, sVs, sFs): A("s_add_u32 s%d, s%d, s%d" % (r, r, sT2))
    lin(sFQ, FQ, [(sL, 72 * FW)])
    lin(sO32, OO + OOBS - 2 * O_SEG, [(sL, LS['o']), (sH, 24 * 512), (sJ, 256), (sPBc, 512)])
    lin(sO16, OO + OOBS - 2 * O_SEG, [(sL, LS['o']), (sH, 24 * 512), (sJ, 256), (sSBc, 512)])
    lin(sFO, FO, [(sL, 64 * FW), (cu, FW)])
    A("s_cmp_eq_u32 s%d, 3\ns_cselect_b32 s%d, s%d, 0x%x" % (sW, sFO, sFO, OOBS))
    for r in ({0: (), 1: (sO32, sO16), 2: (sO32,), 3: (sO16,)}[opt.get('noo', 0)]) + sum(({'q': (sQ32, sQ16), 'k': (sK32, sK16), 'v': (sVp, sVs)}[c] for c in opt.get('nobulk', '')), ()): A("s_mov_b32 s%d, 0x%x" % (r, 2 * OOBS))
    A("s_mov_b32 s%d, -1\ns_mov_b32 s%d, 0\ns_mov_b32 s%d, 0xffff\ns_mov_b32 s%d, 0xffff" % (sStep, sHd, sEv, sEv + 1))
    if opt.get('stamp'):
        A("s_mov_b32 s55, 0")
        lin(sTS, DBGW, [(cu, 4 * 4096), (sW, 4096)])
        A("s_cmp_eq_u32 s%d, 0\ns_cselect_b32 s%d, s%d, 0x%x" % (sL, sTS, sTS, OOBS))
    A("s_cmp_lg_u32 s%d, 0\ns_cbranch_scc1 L_rec_mixed" % sMix)
    step_loop(A, opt, '', 'a')
    A("L_rec_mixed:")
    step_loop(A, opt, 'sc1', 'b')
```

```python
import re

def v(a, n=1): return "v%d" % a if n == 1 else "v[%d:%d]" % (a, a + n - 1)
def a_(a, n=1): return "a%d" % a if n == 1 else "a[%d:%d]" % (a, a + n - 1)
def s(a, n=1): return "s%d" % a if n == 1 else "s[%d:%d]" % (a, a + n - 1)
def R(u, n=1):
    if u < 256:
        assert u + n <= 256, (u, n)
        return v(u, n)
    return a_(u - 256, n)

_reg = re.compile(r'^(-|abs\(|\|)?([vas])(\d+|\[(\d+):(\d+)\])\)?\|?$')
def regs(tok):
    tok = tok.strip()
    if tok in ('vcc',): return {('s', 106), ('s', 107)}
    if tok == 'vcc_lo': return {('s', 106)}
    if tok == 'vcc_hi': return {('s', 107)}
    if tok == 'exec': return {('s', 126), ('s', 127)}
    if tok == 'm0': return {('s', 124)}
    m = _reg.match(tok)
    if not m: return set()
    f = m.group(2)
    if m.group(4) is not None: lo, hi = int(m.group(4)), int(m.group(5))
    else: lo = hi = int(m.group(3))
    if f == 'a': f, lo, hi = 'v', lo + 256, hi + 256
    return {(f, i) for i in range(lo, hi + 1)}

TRANS = ('v_exp_', 'v_log_', 'v_rcp_', 'v_rsq_', 'v_sqrt_', 'v_sin_', 'v_cos_')
class I:
    def __init__(self, text):
        self.text = text
        t = text.split(';')[0].strip()
        self.label = t.endswith(':')
        self.kind = 'none'; self.w = set(); self.r = set(); self.states = 0
        self.passes = 0; self.C = set(); self.AB = set(); self.dpp = False; self.perm = False
        self.rdlane = False; self.trans = False; self.wide_data = set(); self.ldsdma = False
        self.lanesel = set(); self.branch = False
        if not t or self.label or t.startswith('.'): return
        p = t.split(None, 1); mn = p[0]; self.mn = mn
        rest = p[1] if len(p) > 1 else ''
        rest = re.sub(r'(op_sel|op_sel_hi|neg_lo|neg_hi|quad_perm):\[[^\]]*\]', lambda m: m.group(0).replace(',', '/'), rest)
        ops = [o.strip() for o in rest.split(',')] if rest else []
        if ops:
            last = ops[-1].split()
            mods = last[1:]; ops[-1] = last[0] if last else ''
        else: mods = []
        self.states = 1
        rs = [regs(o) for o in ops]
        U = lambda L: set().union(*L) if L else set()
        if mn == 's_nop': self.kind = 'salu'; self.states = int(ops[0], 0) + 1; return
        if mn.startswith('v_mfma') or mn.startswith('v_smfmac'):
            self.kind = 'mfma'; self.passes = 8 if '32x32' in mn else 4
            self.w = rs[0]
            if mn.startswith('v_smfmac'): self.C = rs[0]; self.AB = rs[1] | rs[2] | rs[3]
            else: self.C = rs[3]; self.AB = rs[1] | rs[2]
            self.r = self.C | self.AB; return
        if mn.startswith('v_'):
            self.kind = 'valu'
            self.trans = mn.startswith(TRANS)
            self.dpp = ('_dpp' in mn) or any(m.startswith(('row_', 'quad_perm', 'wave_')) for m in mods)
            if mn.startswith('v_swap'):
                self.w = rs[0] | rs[1]; self.r = rs[0] | rs[1]; return
            if mn.startswith('v_permlane'):
                self.perm = True; self.w = rs[0] | rs[1]; self.r = rs[0] | rs[1]; return
            if mn.startswith(('v_readfirstlane', 'v_readlane')):
                self.rdlane = True; self.w = rs[0]; self.r = U(rs[1:])
                if len(rs) > 2: self.lanesel = rs[2]
                return
            if mn.startswith('v_writelane'):
                self.w = rs[0]; self.r = U(rs); self.lanesel = rs[2]; return
            if '_co_' in mn or mn.startswith(('v_div_scale', 'v_mad_u64')):
                self.w = rs[0] | rs[1]; self.r = U(rs[2:]); return
            self.w = rs[0]; self.r = U(rs[1:])
            if mn.startswith(('v_fmac', 'v_dot2c', 'v_pk_fmac')) or self.dpp: self.r |= rs[0]
            if mn.startswith('v_cmpx'): raise Exception('no cmpx please')
            return
        if mn.startswith('ds_'):
            self.kind = 'mem'
            if mn.startswith(('ds_read', 'ds_bpermute', 'ds_permute', 'ds_swizzle')) or '_rtn' in mn:
                self.w = rs[0]; self.r = U(rs[1:])
            else: self.r = U(rs)
            return
        if mn.startswith(('buffer_', 'global_')):
            self.kind = 'vmem'
            lds = 'lds' in mods or '_lds_' in mn
            self.ldsdma = lds
            if mn.startswith(('buffer_wbl2', 'buffer_inv')): return
            if 'load' in mn and not lds: self.w = rs[0]; self.r = U(rs[1:])
            elif 'atomic' in mn and 'sc0' in mods:
                self.w = rs[0]; self.r = U(rs)
            else:
                self.r = U(rs)
                if 'x4' in mn or 'x3' in mn:
                    if 'store' in mn: self.wide_data = rs[0] if mn.startswith('buffer') else rs[1]
            return
        if mn.startswith('s_'):
            self.kind = 'salu'
            if mn.startswith(('s_cbranch', 's_branch', 's_setpc', 's_swappc', 's_endpgm')): self.branch = True; return
            if mn.startswith(('s_cmp', 's_waitcnt', 's_barrier', 's_sleep', 's_setprio', 's_bitcmp')):
                self.r = U(rs); return
            self.w = rs[0] if rs else set(); self.r = U(rs[1:])
            if 'saveexec' in mn: self.w = self.w | regs('exec')
            return
        raise Exception('unknown instr ' + text)

def need(p, c):
    n = 0
    pv = {x for x in p.w if x[0] == 'v'}; ps = {x for x in p.w if x[0] == 's'}
    if p.kind == 'valu':
        if c.kind == 'mfma' and pv & c.r: n = max(n, 2)
        if c.kind == 'valu':
            if (c.dpp or c.perm) and pv & c.r: n = max(n, 2)
            if c.rdlane and pv & c.r: n = max(n, 1)
            if p.trans and not c.trans and pv & c.r: n = max(n, 1)
            if ps & c.r: n = max(n, 2)
            if ps & c.lanesel: n = max(n, 4)
        if c.kind == 'vmem' and ps & c.r: n = max(n, 5)
        if p.trans and c.kind in ('mem', 'vmem') and pv & c.r: n = max(n, 1)
    if p.kind == 'mfma':
        big = p.passes == 8
        if c.kind == 'mfma':
            if p.w & c.AB: n = max(n, 12 if big else 8)
            if p.w & c.C and not (p.w == c.C and p.mn == c.mn): n = max(n, 10 if big else 6)
            if p.w & c.w and not (p.w & c.C): n = max(n, 10 if big else 6)
        elif c.kind in ('valu', 'mem', 'vmem'):
            if p.w & (c.r | c.w): n = max(n, 12 if big else 8)
            if c.kind == 'valu' and p.C & c.w: n = max(n, 7 if big else 3)
    if p.kind == 'salu' and ('s', 124) in p.w and c.ldsdma: n = max(n, 1)
    if p.kind == 'vmem' and p.wide_data and p.wide_data & c.w: n = max(n, 2)
    return n

class Asm:
    def __init__(self): self.L = []; self.uid = 0
    def __call__(self, text):
        for l in text.split('\n'):
            l = l.strip()
            if l: self.L.append(l)
    def lab(self, base):
        self.uid += 1; return "L_%s_%d" % (base, self.uid)
    def finish(self):
        ins = [I(t) for t in self.L]
        out = []
        def pad_for(hist, c):
            h = [p for p in hist[-48:] if p.states][-24:]
            n = 0
            for i, p in enumerate(h):
                k = need(p, c)
                if not k: continue
                t = 0; last = None; prev = None
                for q in h[i:] + [c]:
                    if prev is not None:
                        t += prev.states
                        if q is c: tn = t
                        if q.kind == 'mfma' and last is not None: t = max(t, last)
                    if q.kind == 'mfma': last = t + q.passes
                    prev = q
                if t < k + 1: n = max(n, k + 1 - tn)
            return n
        for c in ins:
            if c.states:
                n = pad_for(out, c)
                while n > 0:
                    k = min(n, 16); out.append(I('s_nop %d' % (k - 1))); n -= k
            out.append(c)
        for _ in range(3):
            pos = {x.text.split(';')[0].strip()[:-1]: i for i, x in enumerate(out) if x.label}
            changed = False; res = []
            for i, c in enumerate(out):
                if c.branch and c.mn.startswith(('s_cbranch', 's_branch')):
                    tgt = c.text.split(';')[0].split()[1]
                    hist = res[-40:] + [c]; n = 0; d = 0
                    for t in out[pos[tgt]:pos[tgt] + 60]:
                        if d >= 20: break
                        if t.states:
                            n = max(n, pad_for(hist, t) - 0)
                            hist = hist + [t]; d += t.states
                            if t.branch and t.mn == 's_branch': break
                    if n > 0:
                        changed = True
                        while n > 0:
                            k = min(n, 16); res.append(I('s_nop %d' % (k - 1))); n -= k
                res.append(c)
            out = res
            if not changed: break
        return "\n".join(("" if x.label else "  ") + x.text for x in out) + "\n"

def tidy(text):
    import subprocess
    lines = text.split('\n')
    enc = subprocess.run(['llvm-mc', '-triple', 'amdgcn-amd-amdhsa', '-mcpu=gfx950', '--show-encoding'], input=text.encode(), stdout=subprocess.PIPE, check=True).stdout.decode()
    sizes = [l.split('encoding: [')[1].count(',') + 1 for l in enc.split('\n') if 'encoding: [' in l]
    idx = [i for i, l in enumerate(lines) if l.startswith('  ') and l.strip() and not l.strip().startswith('.')]
    assert len(idx) == len(sizes), (len(idx), len(sizes))
    size = dict(zip(idx, sizes)); mn = {i: lines[i].split()[0] for i in idx}
    targets = {lines[i].split()[1] for i in idx if mn[i].startswith(('s_branch', 's_cbranch'))}
    INF = 1e9; cost = [0.0] + [INF] * 7; back = []; prev = None
    for n, l in enumerate(lines):
        opts = []
        if n in size:
            m = mn[n]; opts = [(l, [size[n]], 0)]
            if size[n] == 4 and m.startswith('v_') and not m.startswith(('v_swap', 'v_readfirst', 'v_permlane', 'v_accvgpr')): opts.append((l.replace(m, m + '_e64', 1), [8], .05))
            if m == 's_nop' and int(l.split()[1]) > 0: opts.append(("  s_nop 0\n  s_nop %d" % (int(l.split()[1]) - 1), [4, 4], .05))
            prev = m
        elif l.endswith(':') and l[:-1] in targets:
            if prev in ('s_branch', 's_endpgm'):
                b = min(range(8), key=lambda p: cost[p]); back.append({0: (b, ".p2align 5\n" + l)}); cost = [cost[b]] + [INF] * 7; prev = None; continue
            nx = [size[j] for j in range(n + 1, min(n + 12, len(lines))) if j in size][:4]
            new = []
            for p in range(8):
                fit = sum(1 for k in range(len(nx)) if 4 * p + sum(nx[:k + 1]) <= 32)
                new.append(cost[p] + .7 * (len(nx) - fit))
            cost = new; back.append({p: (p, l) for p in range(8)}); continue
        else:
            assert not l.strip().startswith('.'), l
            back.append({p: (p, l) for p in range(8)}); continue
        new = [INF] * 8; bk = {}
        for p in range(8):
            if cost[p] >= INF: continue
            for r, ss, c in opts:
                q = p; c += cost[p]
                for x in ss:
                    if x > 4 and q == 7: c += .2
                    q = (q + x // 4) % 8
                if c < new[q]: new[q] = c; bk[q] = (p, r)
        cost = new; back.append(bk)
    p = min(range(8), key=lambda p: cost[p]); out = []
    for bk in back[::-1]: p, r = bk[p]; out.append(r)
    return '\n'.join(out[::-1])
```

```python
from asmlib import *
from layout import *
NAME = 'interleave_layers__memory_aug_recurrent_mem_tr__sliding_local_dilated__prompt'
WS = 's[4:7]'; TS = 's[8:11]'
sW, sRole, sBud, sMix = 12, 13, 14, 15
sNear = 2
pX, pMem, pWq, pWk, pWv, pWo = 16, 18, 20, 22, 24, 26
pBq, pBo, pOut, pDbg, pWs = 32, 34, 36, 38, 40
OOBS = 0x20000000
BUDGET = 100000
LDS_MISC = 40000
DBG_READY = 8

LS = {'p': 64 * 5 * TILE}
def sspread(r, t): return ["s_andn2_b32 s%d, s%d, 0x1fff" % (t, r), "s_add_u32 s%d, s%d, s%d" % (r, r, t)]
def side(r, t): return ["s_and_b32 s%d, s%d, 0x2000" % (t, sNear), "s_add_u32 s%d, s%d, s%d" % (r, r, t)]
RING = [1]
def slot(t, seg, layer, k):
    if not RING[0]: return ["s_mul_i32 s%d, s%d, %d" % (t, seg, k)]
    L = ["s_and_b32 s%d, s%d, 15" % (t, seg)] if layer is None else ["s_lshl_b32 s%d, s%d, 1" % (t, layer), "s_lshr_b32 s%d, 63, s%d" % (t, t), "s_and_b32 s%d, s%d, s%d" % (t, t, seg)]
    return L + ["s_mul_i32 s%d, s%d, %d" % (t, t, k)]
def near(d, q, t, layer=None):
    L = ["s_lshr_b32 s%d, s%d, 8" % (t, q)] if layer is None else ["s_lshl_b32 s%d, s%d, 21" % (t, layer), "s_add_u32 s%d, s%d, s%d" % (t, t, q), "s_lshr_b32 s%d, s%d, 8" % (t, t)]
    return L + ["s_and_b32 s%d, s%d, 0x2000" % (t, t), "s_xor_b32 s%d, s%d, s%d" % (d, q, t)]
def temp_srd(A, p, nbytes):
    A("s_mov_b32 s8, s%d\ns_mov_b32 s9, s%d\ns_mov_b32 s10, %d\ns_mov_b32 s11, 0x20000" % (p, p + 1, nbytes))

def tick(d, g): return "s_mul_i32 s%d, s%d, 65\ns_and_b32 s%d, s%d, 0xc4" % (d, g, d, d)
def prologue(A, opt):
    A("s_cmp_ge_u32 s2, 256\ns_cbranch_scc1 L_end")
    A("s_load_dwordx8 s[16:23], s[0:1], 0\ns_load_dwordx4 s[24:27], s[0:1], 32\ns_load_dwordx8 s[32:39], s[0:1], 64\ns_load_dwordx2 s[40:41], s[0:1], 96")
    A("s_getreg_b32 s42, hwreg(HW_REG_XCC_ID)\ns_and_b32 s42, s42, 7")
    opt.setdefault('xmap', [0, 6, 1, 7, 2, 4, 3, 5])
    if opt.get('xmap'): A("s_lshl_b32 s42, s42, 2\ns_lshr_b32 s42, 0x%x, s42\ns_and_b32 s42, s42, 7" % sum(g << (4 * x) for x, g in enumerate(opt['xmap'])))
    if opt.get('lstamp'): A("s_memrealtime s[30:31]")
    A("v_lshrrev_b32 v1, 6, v0\nv_readfirstlane_b32 s%d, v1" % sW)
    A("s_mov_b32 s%d, 0\ns_mov_b32 s%d, 0" % (sBud, sMix))
    A("s_waitcnt lgkmcnt(0)")
    A("s_mov_b32 s4, s40\ns_mov_b32 s5, s41\ns_mov_b32 s6, %d\ns_mov_b32 s7, 0x20000" % WS_SIZE)
    temp_srd(A, pDbg, 256)
    A("v_mov_b32 v3, %d" % LDS_MISC)
    A("s_cmp_lg_u32 s%d, 0\ns_cbranch_scc1 L_tick_done" % sW)
    A("s_mov_b64 exec, 1\nv_mov_b32 v8, 1\ns_mov_b32 s44, 0")
    if opt.get('forcemix'): A("s_branch L_tick_next")
    A(tick(43, 42) + "\nbuffer_atomic_add v8, off, %s, s43 sc0\ns_waitcnt vmcnt(0)\nv_readfirstlane_b32 s45, v8" % TS)
    A("s_and_b32 s45, s45, 0xffff\ns_cmp_lt_u32 s45, 32\ns_cbranch_scc1 L_tick_got")
    A("L_tick_next:")
    A("s_mov_b32 s42, s44\ns_add_u32 s44, s44, 1\nv_mov_b32 v8, 0x10001\n" + tick(43, 42))
    A("buffer_atomic_add v8, off, %s, s43 sc0\ns_waitcnt vmcnt(0)\nv_readfirstlane_b32 s45, v8" % TS)
    A("s_and_b32 s45, s45, 0xffff\ns_cmp_lt_u32 s45, 32\ns_cbranch_scc1 L_tick_got")
    A("s_cmp_lt_u32 s44, 8\ns_cbranch_scc1 L_tick_next")
    A("s_mov_b32 s42, 8\ns_mov_b32 s45, 0")
    A("L_tick_got:\ns_lshl_b32 s42, s42, 5\ns_add_u32 s42, s42, s45\nv_mov_b32 v8, s42\nds_write_b32 v3, v8\ns_waitcnt lgkmcnt(0)\ns_mov_b64 exec, -1")
    A("L_tick_done:")
    A("s_barrier\nds_read_b32 v8, v3\ns_waitcnt lgkmcnt(0)\nv_readfirstlane_b32 s%d, v8" % sRole)
    A("s_barrier")
    A("v_and_b32 v0, 63, v0")
    A("s_cmp_ge_u32 s%d, 256\ns_cbranch_scc1 L_end" % sRole)
    if opt.get('lstamp'): A("s_memrealtime s[28:29]\ns_waitcnt lgkmcnt(0)\ns_mov_b32 s31, s28")

def fill(A, sSlice, opt):
    if opt.get('nofill'): return
    A("v_mov_b32 v4, -1\nv_mov_b32 v5, -1\nv_mov_b32 v6, -1\nv_mov_b32 v7, -1\nv_lshlrev_b32 v8, 4, v0")
    A("s_mul_i32 s96, s%d, %d\ns_lshl_b32 s97, s%d, 10\ns_add_u32 s96, s96, s97" % (sSlice, SYNC_PER_WG, sW))
    A("s_mov_b32 s97, %d\ns_cmp_lt_u32 s%d, %d\ns_cselect_b32 s97, %d, s97\ns_add_u32 s96, s96, s97" % (HC - SYNC_PER_WG * (NFILL - NFILL2), sSlice, NFILL - NFILL2, SYNC0))
    l = A.lab('fill')
    A("s_add_u32 s97, s96, %d\n%s:\nbuffer_store_dwordx4 v[4:7], v8, %s, s96 offen sc1\ns_add_u32 s96, s96, 4096\ns_cmp_lt_u32 s96, s97\ns_cbranch_scc1 %s" % (SYNC_PER_WG, l, WS, l))
    signal_ready(A, 8)

NPROBE = 8
NREADY = NFILL + 5 + NPROBE
DBG_NEAR = 12
def probe(A, opt, sIdx):
    l, e = A.lab('probe'), A.lab('probe'); n = opt.get('nprobe', 1)
    A("s_cmp_lg_u32 s%d, 0\ns_cbranch_scc1 %s" % (sW, e))
    A("v_and_b32 v4, 7, v0\nv_lshlrev_b32 v4, 4, v4\nv_lshrrev_b32 v5, 3, v0\nv_lshl_add_u32 v8, v5, 12, v4\ns_lshl_b32 s42, s%d, 8\ns_add_u32 s42, s42, %d" % (sIdx, HC + 3 * HC_STEP))
    for i in range(n): A("s_add_u32 s43, s42, %d\nbuffer_store_dwordx4 v[4:7], v8, %s, s43 offen sc1" % (32768 * i, WS))
    A("s_mov_b64 exec, 1\ns_mov_b32 s43, -1\ns_mov_b32 s44, 0\ns_waitcnt vmcnt(0)")
    A(l + ":")
    A("s_xor_b32 s47, s44, s%d\ns_bfe_u32 s45, s47, 0x20001\ns_lshl_b32 s46, s47, 12\ns_add_u32 s46, s46, s42" % sIdx)
    A("s_memtime s[48:49]\ns_waitcnt lgkmcnt(0)\nbuffer_load_dword v5, off, %s, s46 sc1\ns_waitcnt vmcnt(0)\ns_memtime s[50:51]\ns_waitcnt lgkmcnt(0)" % WS)
    A("s_sub_u32 s50, s50, s48")
    if opt.get('lstamp'): A("s_mov_b32 m0, s47\nv_writelane_b32 v9, s50, m0")
    A("s_lshl_b32 s50, s50, 2\ns_or_b32 s50, s50, s45\ns_min_u32 s43, s43, s50\ns_add_u32 s44, s44, 1\ns_cmp_lt_u32 s44, %d\ns_cbranch_scc1 %s" % (8 * n, l))
    A("s_getreg_b32 s44, hwreg(HW_REG_XCC_ID)\ns_bfe_u32 s45, s44, 0x10002\ns_and_b32 s44, s44, 1\ns_lshl_b32 s44, s44, 1\ns_xor_b32 s43, s43, s44\ns_xor_b32 s43, s43, s45\ns_xor_b32 s43, s43, -4")
    if opt['xmap'].index(0) & 1: A("s_xor_b32 s43, s43, 2")
    if 'pair' in opt: A("s_mov_b32 s43, %d" % opt['pair'])
    A("v_mov_b32 v4, %d\nv_mov_b32 v5, s43\nglobal_atomic_umax v4, v5, s[%d:%d]\ns_mov_b64 exec, -1" % (DBG_NEAR, pDbg, pDbg + 1))
    if opt.get('lstamp'):
        A("s_memrealtime s[48:49]\ns_waitcnt lgkmcnt(0)\ns_sub_u32 s48, s48, s30\nv_writelane_b32 v9, s48, 63")
        A("v_lshlrev_b32 v4, 2, v0\ns_lshl_b32 s47, s%d, 8\ns_add_u32 s47, s47, %d\nbuffer_store_dword v9, v4, %s, s47 offen" % (sIdx, DBGW + 786432, WS))
    A(e + ":")
    signal_ready(A, 8)

def signal_ready(A, vt):
    l = A.lab('sig')
    A("s_waitcnt vmcnt(0)\ns_barrier\ns_cmp_lg_u32 s%d, 0\ns_cbranch_scc1 %s" % (sW, l))
    A("s_mov_b64 exec, 1\nv_mov_b32 v%d, %d\nv_mov_b32 v%d, 1" % (vt, DBG_READY, vt + 1))
    A("global_atomic_add v%d, v%d, s[%d:%d]\ns_mov_b64 exec, -1" % (vt, vt + 1, pDbg, pDbg + 1))
    A(l + ":")

def wait_word(A, vt, n, sleep=8):
    l = A.lab('rdy'); d = A.lab('rdyd')
    A(l + ":")
    A("global_load_dword v%d, v%d, s[%d:%d] sc1\ns_waitcnt vmcnt(0)\nv_readfirstlane_b32 s%d, v%d" % (vt + 1, vt, pDbg, pDbg + 1, sMix, vt + 1))
    A("s_and_b32 s3, s%d, 0xffff\ns_cmp_ge_u32 s3, %d\ns_cbranch_scc1 %s" % (sMix, n, d))
    A("s_sleep %d\ns_add_u32 s%d, s%d, 1\ns_cmp_lt_u32 s%d, %d\ns_cbranch_scc1 %s" % (sleep, sBud, sBud, sBud, BUDGET, l))
    A(d + ":")
sPk = 92
def peek_ready(A, vt):
    A("s_lshr_b32 s3, s%d, 5\n" % sRole + tick(3, 3) + "\nv_mov_b32 v%d, s3\nv_writelane_b32 v%d, %d, 0\nv_writelane_b32 v%d, %d, 2\nglobal_load_dword v%d, v%d, s[%d:%d] sc1" % (vt, vt, DBG_READY, vt, DBG_NEAR, vt, vt, pDbg, pDbg + 1))
def peek_take(A, vt):
    A("v_readlane_b32 s%d, v%d, 0\nv_readlane_b32 s%d, v%d, 1\nv_readlane_b32 s%d, v%d, 2" % (sPk, vt, sPk + 1, vt, sNear, vt))
def wait_ready(A, vt, opt, group=False):
    if opt.get('lstamp'): A("s_memrealtime s[28:29]\ns_waitcnt lgkmcnt(0)")
    n = opt.get('nready', NREADY); slow, fast = A.lab('rslow'), A.lab('rfast')
    A("s_mov_b32 s%d, s%d\ns_and_b32 s3, s%d, 0xffff\ns_cmp_lt_u32 s3, %d\ns_cbranch_scc1 %s\ns_and_b32 s3, s%d, 0xffff\ns_cmp_ge_u32 s3, 32\ns_cbranch_scc1 %s" % (sMix, sPk + 1, sPk, n, slow, sMix, fast))
    A(slow + ":\nv_mov_b32 v%d, %d" % (vt, DBG_READY))
    wait_word(A, vt, n)
    A("v_mov_b32 v%d, %d\nglobal_load_dword v%d, v%d, s[%d:%d] sc1\ns_waitcnt vmcnt(0)\nv_readfirstlane_b32 s%d, v%d" % (vt, DBG_NEAR, vt, vt, pDbg, pDbg + 1, sNear, vt))
    A("s_lshr_b32 s%d, s%d, 5\n" % (sMix, sRole) + tick(3, sMix) + "\nv_mov_b32 v%d, s3" % vt)
    wait_word(A, vt, 32)
    A(fast + ":\ns_lshr_b32 s%d, s%d, 16" % (sMix, sMix))
    A("s_and_b32 s%d, s%d, 3\ns_mul_i32 s%d, s%d, 0x2001\ns_xor_b32 s%d, s%d, 0x%x" % (sNear, sNear, sNear, sNear, sNear, sNear, ((HC >> 21) & 1 ^ opt.get('far', 0)) << 13))

def anyempty(A, rl, t):
    rl = list(rl)
    if len(rl) == 1:
        A("v_cmp_eq_u32 vcc, -1, v%d" % rl[0]); return
    if len(rl) == 2: A("v_max_u32 v%d, v%d, v%d" % (t, rl[0], rl[1])); rl = []
    else: A("v_max3_u32 v%d, v%d, v%d, v%d" % (t, rl[0], rl[1], rl[2])); rl = rl[3:]
    while rl:
        if len(rl) == 1: A("v_max_u32 v%d, v%d, v%d" % (t, t, rl[0])); rl = []
        else: A("v_max3_u32 v%d, v%d, v%d, v%d" % (t, t, rl[0], rl[1])); rl = rl[2:]
    A("v_cmp_eq_u32 vcc, -1, v%d" % t)

class Poll:
    def __init__(self, A, Z, name, loads, sleep=0):
        self.A, self.Z, self.loads, self.sleep = A, Z, loads, sleep
        self.top, self.ok, self.retry = A.lab(name + '_top'), A.lab(name + '_ok'), A.lab(name + '_rt')
    def issue(self):
        for l in self.loads: self.A(l)
    def start(self, n):
        self.A("s_waitcnt vmcnt(%d)" % n); self.A(self.top + ":")
    def branch(self):
        self.A("s_cbranch_vccnz %s" % self.retry); self.A(self.ok + ":")
        Z = self.Z
        Z.append(self.retry + ":")
        if self.sleep: Z.append("s_sleep %d" % self.sleep)
        Z.extend(self.loads)
        Z.append("s_add_u32 s%d, s%d, 1\ns_cmp_lt_u32 s%d, %d\ns_waitcnt vmcnt(0)\ns_cbranch_scc1 %s\ns_branch %s" % (sBud, sBud, sBud, BUDGET, self.top, self.ok))

def udiv(A, dst, src, d, tmp_s):
    A("s_mov_b32 s%d, %d\nv_mul_hi_u32 v%d, v%d, s%d" % (tmp_s, (2**32 + d - 1) // d, dst, src, tmp_s))

def interleave(main, fill, start=0, per=1):
    out = []; fill = list(fill)
    for i, m in enumerate(main):
        out.append(m)
        if i >= start:
            for _ in range(per):
                if fill: out.append(fill.pop(0))
    return out + fill

class Lgkm:
    def __init__(self): self.q = []
    def op(self, tag, text): self.q.append(tag); return text
    def wait(self, tag):
        if tag not in self.q: return ""
        last = len(self.q) - 1 - self.q[::-1].index(tag)
        n = len(self.q) - 1 - last
        self.q = self.q[last + 1:]
        assert n <= 15
        return "s_waitcnt lgkmcnt(%d)\n" % n

def ldump(A, vt, vl16, reg=11, reg2=None, off=0):
    A("s_memrealtime s[98:99]\ns_waitcnt lgkmcnt(0)\nv_lshrrev_b32 v%d, 2, v%d\ns_lshl_b32 s97, s%d, 10\ns_add_u32 s97, s97, %d" % (vt, vl16, sRole, DBGW + off))
    A("s_cmp_eq_u32 s%d, 0\ns_cselect_b32 s97, s97, 0x%x\nbuffer_store_dword v%d, v%d, %s, s97 offen" % (sW, OOBS, reg, vt, WS))
    if not off:
        for role, w0, lanes in ((0, 4, (0, 8, 40, 63)), (64, 9, (0, 8, 40, 63)), (255, 14, ())):
            l = A.lab('dd')
            A("s_cmp_lg_u32 s%d, %d\ns_cbranch_scc1 %s" % (sRole, role, l))
            for i, x in enumerate(lanes + (None,)):
                A(("v_readlane_b32 s96, v%d, %d" % (reg, x) if x is not None else "s_mov_b32 s96, s%d" % (98 if role == 255 else 28)) + "\ns_sub_u32 s96, s96, s30\nv_mov_b32 v250, s96\nv_mov_b32 v251, %d\nglobal_store_dword v251, v250, s[%d:%d]" % (4 * (w0 + i), pDbg, pDbg + 1))
            A(l + ":")
    if reg2: A("buffer_store_dword v%d, v%d, %s, s97 offen offset:512" % (reg2, vt, WS))
    A("v_mov_b32 v%d, s98\nv_writelane_b32 v%d, s31, 4" % (reg, reg))
    A("v_writelane_b32 v%d, s98, 0\nv_writelane_b32 v%d, s30, 1\nv_writelane_b32 v%d, s28, 3\nv_writelane_b32 v%d, s%d, 2\nbuffer_store_dword v%d, v%d, %s, s97 offen offset:256\ns_waitcnt vmcnt(0)" % (reg, reg, reg, reg, sBud, reg, vt, WS))

def leave(A, opt):
    if opt.get('wb'):
        l = A.lab('wb')
        A("s_cmp_lg_u32 s%d, %d\ns_cbranch_scc1 %s" % (sRole, opt['wb'], l))
        A("s_cmp_lg_u32 s%d, 0\ns_cbranch_scc1 %s\nbuffer_wbl2 sc1\ns_waitcnt vmcnt(0)\n%s:" % (sW, l, l))
    A("s_endpgm")
```

```python
from common import *
import math, struct, re
def f32(x): return struct.unpack('<I', struct.pack('<f', x))[0]

vL16, vXr, vXr2, vFl, vF, vT0, vT1, vSt, vSt2, vL8 = range(1, 11)
vFr = 171
vDm = vSt2
vOne = 0
XF = 12
ACC = 36
PK = 68
EX = 84
sI, sLc, sSc, sLn, sSn, sSrc, sFb, sRdy, sBuf, sT, sT2, sC0, sC1, sC2, sC3 = range(42, 57)
sO = [57, 58, 59, 60]
sPF, sPV = 61, 62
sMW, sSW, sTS = 63, 64, 65
sMir, sLast, sFrom, sTo = 100, 80, 81, 82
sL2, sS2, sW2 = 83, 84, 85
sBu2 = 94
sFm = 95
L_F = 155648
sE = 66

def mf(d, a, b, c=None): return "v_mfma_f32_32x32x16_bf16 %s, %s, %s, %s" % (v(d, 16), R(a, 4), R(b, 4), "0" if c is None else v(c, 16))
def mf8(d, a, b, c=None): return "v_mfma_f32_32x32x8_bf16 %s, %s, %s, %s" % (v(d, 16), v(a, 2), v(b, 2), "0" if c is None else v(c, 16))
def cvt(d, a, b): return "v_cvt_pk_bf16_f32 v%d, v%d, v%d" % (d, a, b)
def ld(n, d, va, so, off=0, srd=WS, fl='sc1'):
    return "buffer_load_dword%s %s, v%d, %s, s%d offen offset:%d %s" % ({1: '', 2: 'x2', 4: 'x4'}[n], v(d, n), va, srd, so, off, fl)
def st(n, d, va, so, off=0, srd=WS, fl='sc1'):
    return "buffer_store_dword%s %s, v%d, %s, s%d offen offset:%d %s" % ({1: '', 2: 'x2', 4: 'x4'}[n], v(d, n), va, srd, so, off, fl)
def lin(dst, base, terms, t=sT):
    L = ["s_mov_b32 s%d, %d" % (dst, base)]
    for r, k in terms:
        if k == 1: L.append("s_add_u32 s%d, s%d, s%d" % (dst, dst, r))
        else: L += ["s_mul_i32 s%d, s%d, %d" % (t, r, k), "s_add_u32 s%d, s%d, s%d" % (dst, dst, t)]
    return L
def wreg(n):
    return [256 + 4 * i if i < 64 else 256 - 4 * (n - i) for i in range(n)]

WFL = ['']
def load_w(A, ptr, nbytes, sBase, vSrc, rows_per_instr, stride, ipw, nunits, nslots, reads, rev=None, hook=None):
    ub = 4 * ipw * 1024
    temp_srd(A, ptr, nbytes)
    A("s_mul_i32 s%d, s%d, %d\ns_add_u32 s%d, s%d, s%d\ns_mul_i32 s%d, s%d, %d" % (sT, sW, ipw * rows_per_instr * stride, sBase, sBase, sT, sT2, sW, ipw * 1024))
    def run(order):
        def issue(n):
            for i in range(ipw):
                A("s_add_u32 m0, s%d, %d\ns_add_u32 s%d, s%d, %d" % (sT2, (n % nslots) * ub + 1024 * i, sT, sBase, (order[n] * 4 * ipw + i) * rows_per_instr * stride))
                A("buffer_load_dwordx4 v%d, %s, s%d offen %s lds" % (vSrc, TS, sT, WFL[0]))
        d = nslots - 1
        for n in range(min(d, nunits)): issue(n)
        for n in range(nunits):
            A("s_waitcnt vmcnt(%d) lgkmcnt(0)\ns_barrier" % (ipw * (min(n + d, nunits) - n - 1)))
            if n + d < nunits: issue(n + d)
            if n == nunits - 3: peek_ready(A, vF)
            reads(order[n], (n % nslots) * ub)
            if hook and n: hook(n == 1, order[n - 1])
        A("s_waitcnt lgkmcnt(0)")
        if hook: hook(False, order[-1])
    if rev is not None:
        l, e = A.lab('rev'), A.lab('rev')
        A("s_cmp_lg_u32 s%d, 0\ns_cbranch_scc1 %s" % (rev, l)); run(list(range(nunits))); A("s_branch %s\n%s:" % (e, l)); run(list(range(nunits))[::-1]); A(e + ":")
    else: run(list(range(nunits)))
    peek_take(A, vF)
    A("s_waitcnt lgkmcnt(0)\ns_barrier")

def tr_addr(A, dst, rowb, tab, hi_rows=8, t0=vT0, t1=vT1):
    if isinstance(tab, list):
        lo = sum(x << (8 * i) for i, x in enumerate(tab[:4])); hi = sum(x << (8 * i) for i, x in enumerate(tab[4:]))
        A("v_mov_b32 v%d, 0x%x\nv_mov_b32 v%d, 0x%x" % (t0, lo, t1, hi))
    else: A("v_mov_b32 v%d, s%d\nv_mov_b32 v%d, s%d" % (t0, tab[0], t1, tab[1]))
    A("v_and_b32 v%d, 16, v0\nv_cmp_eq_u32 vcc, 0, v%d\nv_cndmask_b32 v%d, v%d, v%d, vcc" % (dst, dst, t0, t1, t0))
    A("v_and_b32 v%d, 3, v0\nv_lshlrev_b32 v%d, 3, v%d\nv_bfe_u32 v%d, v%d, v%d, 8" % (t1, t1, t1, t0, t0, t1))
    A("v_lshrrev_b32 v%d, 5, v0\nv_mul_u32_u24 v%d, %d, v%d\nv_bfe_u32 v%d, v0, 2, 2\nv_add_u32 v%d, v%d, v%d" % (t1, t1, hi_rows, t1, dst, dst, dst, t1))
    A("v_mul_u32_u24 v%d, %d, v%d\nv_lshl_add_u32 v%d, v%d, 3, v%d" % (dst, rowb, dst, dst, t0, dst))
TAB_T = [0, 2, 1, 3, 4, 6, 5, 7]
TAB_P = [0, 2, 4, 6, 1, 3, 5, 7]
TAB_N = [0, 1, 2, 3, 4, 5, 6, 7]
def tabw(t): return sum(x << (8 * i) for i, x in enumerate(t[:4])), sum(x << (8 * i) for i, x in enumerate(t[4:]))

def ident(A, dst, x, t0=vT0, t1=vT1):
    A("v_and_b32 v%d, 1, v0\nv_lshlrev_b32 v%d, 4, v%d\nv_mov_b32 v%d, 0x3f80\nv_lshlrev_b32 v%d, v%d, v%d" % (t0, t0, t0, t1, t1, t0, t1))
    A("v_bfe_u32 v%d, v0, 4, 1\nv_cmp_eq_u32 vcc, %d, v%d\nv_cndmask_b32 v%d, 0, v%d, vcc" % (t0, x, t0, t1, t1))
    A("v_bfe_u32 v%d, v0, 2, 1\nv_lshrrev_b32 v%d, 5, v0\nv_cmp_eq_u32 vcc, v%d, v%d\nv_cndmask_b32 v%d, 0, v%d, vcc" % (t0, dst, t0, dst, t1, t1))
    A("v_bfe_u32 v%d, v0, 3, 1\nv_bfe_u32 v%d, v0, 1, 1\nv_lshl_add_u32 v%d, v%d, 1, v%d" % (t0, dst, t0, t0, dst))
    for d in range(4): A("v_cmp_eq_u32 vcc, %d, v%d\nv_cndmask_b32 v%d, 0, v%d, vcc" % (d, t0, dst + d, t1))

sTab, sCn = 86, 90
def table(lead):
    n0, last, tot = (tuple(lead) + (64,))[:3] if isinstance(lead, tuple) else (lead, 64 - lead, 64)
    T = [0] * n0; done = n0
    for i in range(64):
        T.append(1)
        want = min(tot, n0 + ((i + 1) * (tot - n0) + last - 1) // last)
        T += [0] * (want - done); done = want
    assert len(T) == 64 + tot and sum(T) == 64
    return T
def sched_init(lead):
    if lead is None: return ["s_mov_b32 s%d, 63" % sLast]
    if lead == 'alt': return []
    T = table(lead); b = sum(x << i for i, x in enumerate(T))
    return ["s_mov_b32 s%d, 0x%x" % (sTab + i, (b >> (32 * i)) & 0xffffffff) for i in range(4)] + ["s_mov_b64 %s, 0" % s(sCn, 2), "s_mov_b32 s%d, %d" % (sLast, len(T) - 1)]
def sched(lead, skip=None):
    if lead is None: return ["s_add_u32 s%d, s%d, 2" % (sS2, sI)]
    if lead == 'alt': return ["s_cmp_ge_i32 s%d, s%d\ns_addc_u32 s%d, s%d, 1" % (sS2, sFrom, sS2, sS2)]
    sLn, sSn, sT = sL2, sS2, sT2
    L = ["s_cmp_eq_u32 s%d, 62\ns_cselect_b64 %s, %s, %s" % (sI, s(sTab, 2), s(sTab + 2, 2), s(sTab, 2)),
         "s_and_b32 s%d, s%d, 1\ns_cselect_b32 s%d, s%d, s%d" % (sLn, sTab, sSn, sCn + 1, sCn),
         "s_lshr_b64 %s, %s, 1" % (s(sTab, 2), s(sTab, 2)), "s_add_u32 s%d, s%d, s%d" % (sCn + 1, sCn + 1, sLn),
         "s_xor_b32 s%d, s%d, 1" % (sT, sLn), "s_add_u32 s%d, s%d, s%d" % (sCn, sCn, sT)]
    if skip:
        L += ["s_cmp_eq_u32 s%d, %d\ns_cselect_b32 s%d, %d, s%d" % (sCn, skip[0], sCn, skip[0] + skip[1], sCn),
              "s_lshl_b32 s%d, s%d, 8" % (sT, sLc), "s_add_u32 s%d, s%d, s%d" % (sT, sT, sPV),
              "s_cmp_eq_u32 s%d, s%d\ns_cselect_b32 s%d, s%d, s%d" % (sT, sFrom, sPV, sTo, sPV)]
    return L

def gstamp(A, opt, k, flush=False):
    if opt.get('gstamp'):
        A("%s s[98:99]\ns_waitcnt lgkmcnt(0)\nv_writelane_b32 v11, s98, %d" % ('s_memtime' if opt.get('lcyc') else 's_memrealtime', k))
        if flush: A("s_memtime s[98:99]\ns_waitcnt lgkmcnt(0)\nv_writelane_b32 v11, s98, 6")
        if flush: A("v_writelane_b32 v11, s%d, 7\nv_lshrrev_b32 v%d, 1, v%d\ns_mov_b64 exec, 0xff\nbuffer_store_dword v11, v%d, %s, s%d offen\ns_mov_b64 exec, -1\ns_add_u32 s%d, s%d, 32" % (sRdy, vT0, vL8, vT0, WS, sTS, sTS, sTS))

class Flow:
    def __init__(self, A, opt, name, ndma, n1, lead, src, flagbase, local, skip=None, nc=0):
        self.A, self.opt, self.name, self.ndma, self.n1 = A, opt, name, ndma, n1
        self.skip = skip; self.nc = nc
        self.sums = 1 if flagbase in (FX, FX + 5 * FW) else 0
        if self.sums:
            A("s_lshl_b32 s%d, s%d, 6\ns_sub_u32 s%d, 80, s%d" % (sT, sW, sT, sT))
            A("v_mov_b32 v%d, 0x%x\nv_cmp_gt_i32 vcc, s%d, v0\nv_cndmask_b32 v%d, v%d, v%d, vcc" % (vDm, WS_SIZE, sT, vDm, vDm, vL16))
        self.post = "s_barrier\nv_mov_b32 v%d, s%d\n" % (vT1, sPV) + st(1, vT1, vOne, sPF) + " ; P" + ("\n" + st(1, vT1, vOne, sPF, LOC, fl='') + " ; P" if local else "")
        self.np = 2 if local else 1
        A("v_lshlrev_b32 v%d, 2, v0\nv_add_u32 v%d, %d, v%d\ns_lshl_b32 s%d, s%d, 8\ns_add_u32 s%d, s%d, %d" % (vFr, vFr, L_F, vFr, sFm, sW, sFm, sFm, L_F))
        A("v_or_b32 v0, s%d, v0\nv_lshlrev_b32 v0, 24, v0\nv_min_u32 v0, 0x1000000, v0\nv_lshlrev_b32 v0, 4, v0" % sW)
        self.fload = "s_xor_b32 s%d, s%d, 1024\ns_mov_b32 m0, s%d\nv_xor_b32 v%d, 1024, v%d\nbuffer_load_dword v%d, %s, s%d offen sc1 lds ; F" % (sFm, sFm, sFm, vFr, vFr, vFl, WS, sFb)
        self.fread = "ds_read_b32 v%d, v%d" % (vF, vFr)
        base, terms = src
        self.nxt = sched(lead, skip) + lin(sW2, base, [({'L': sL2, 'S': sS2}.get(r, r), k) for r, k in terms] + [(sMW, 1)], sT2)
        self.page = lambda i: 4096 * i
        if flagbase == FO: self.nxt += slot(sT2, sS2, sL2, 2 * O_SEG) + ["s_add_u32 s%d, s%d, s%d" % (sW2, sW2, sT2)] + near(sW2, sW2, sT2, sL2); self.page = lambda i: spread(4096 * i)
        self.off = ["s_mov_b32 s%d, 0x%x" % (r, OOBS) for r in sO + [sPF]]
        self.rot = "s_mov_b32 s%d, s%d\ns_mov_b32 s%d, s%d\ns_mov_b32 s%d, s%d\ns_mov_b32 s%d, s%d\ns_mov_b32 s%d, s%d\ns_add_u32 s%d, s%d, 1" % (sLc, sLn, sSc, sSn, sSn, sS2, sLn, sL2, sSW, sW2, sI, sI)
        self.lget = ["s_memtime s[98:99]" if opt.get('lcyc') else "s_memrealtime s[98:99]"] if opt.get('lstamp') else []
        self.lput = ["s_lshr_b32 m0, s%d, %d" % ((sI, 1) if lead not in (None, 'alt') else (sSc, 0)), "v_writelane_b32 v11, s98, m0"] if opt.get('lstamp') else []
        if self.lput and lead not in (None, 'alt'): self.lput += ["s_add_u32 s97, s%d, 1" % sI, "s_bfe_u32 m0, s97, 0x60001", "v_writelane_b32 v170, s98, m0"]
        self.decide = [self.missing(sSn) + "\ns_cselect_b32 s%d, 0, 1" % sRdy,
                       "s_cmp_lt_u32 s%d, s%d\ns_cselect_b32 s%d, s%d, 0" % (sI, sLast, sRdy, sRdy),
                       "s_cmp_lg_u32 s%d, 0\ns_cselect_b32 s%d, s%d, 0x%x\ns_xor_b32 s%d, s%d, s%d" % (sRdy, sSrc, sSW, OOBS, sBuf, sBuf, sC3)]
        A("s_lshl_b32 s%d, s%d, 10\ns_mov_b32 s%d, s%d\ns_mov_b32 s%d, -2\ns_mov_b32 s%d, 0\ns_mov_b32 s%d, %d" % (sMW, sW, sBuf, sMW, sI, sPV, sFb, flagbase))
        A("s_cmp_eq_u32 s%d, 0\ns_cselect_b32 s%d, s%d, 0x%x" % (sW, sFb, sFb, OOBS))
        A("s_mov_b32 s%d, %d\ns_mov_b32 s%d, %d" % (sC3, 4096 * (ndma - nc), sC2, 4096 * (ndma - nc)))
        if opt.get('gstamp'):
            for l in lin(sTS, DBGW + 524288 - 128 * 4096, [(sRole, 4096)]): A(l)
            A("s_cmp_eq_u32 s%d, 0\ns_cselect_b32 s%d, s%d, 0x%x" % (sW, sTS, sTS, OOBS))
        if lead in (None, 'alt'): A("s_mov_b32 s%d, s%d" % (sL2, sLn))
        for l in sched_init(lead): A(l)
        if skip:
            a, n = skip; l = A.lab('main')
            A("s_mov_b32 s%d, %d\ns_mov_b32 s%d, %d\ns_mov_b32 s%d, 1\ns_mov_b32 s%d, 1\ns_cmp_eq_u32 s%d, 0\ns_cbranch_scc1 %s" % (sFrom, a, sTo, a + n, sLc, sLn, sMir, l))
            A("s_mov_b64 %s, 0\ns_mov_b32 s%d, %d\ns_mov_b32 s%d, %d\ns_mov_b32 s%d, %d\ns_mov_b32 s%d, 64" % (s(sTab, 2), sCn, a, sLast, n - 1, sFrom, a + n, sTo))
            A("s_add_u32 s%d, s%d, %d\ns_mov_b32 s%d, s%d\ns_mov_b32 s%d, %d\n" % (sC1, sC1, 2 * 72 * FW, sPF, sC1, sPV, a) + self.post)
            A(l + ":")
        for l in self.nxt + [self.rot] + self.nxt + self.off: A(l)
        A("s_mov_b32 s%d, s%d\ns_mov_b32 s%d, 0\ns_mov_b32 s%d, 0" % (sSrc, sSW, sRdy, sBu2))
    def missing(self, seg):
        return "v_cmp_ge_i32 vcc, s%d, v%d\ns_cmp_eq_u32 s%d, 0\ns_cselect_b32 s%d, vcc_lo, vcc_hi\ns_cmp_lg_u32 s%d, 0" % (seg, vF, sLn, sT, sT)
    def see(self, n):
        return "s_waitcnt vmcnt(%s)\ns_barrier\n%s\ns_waitcnt lgkmcnt(0)\n" % (n, self.fread)
    def dma(self):
        return ["s_add_u32 m0, s%d, %d\ns_add_u32 s%d, s%d, %d\nbuffer_load_dwordx4 v%d, %s, s%d offen sc1 lds ; %s" %
                (sBuf if i >= self.nc else sMW, 4096 * (i - self.nc if i >= self.nc else 2 * (self.ndma - self.nc) + i), sT, sSrc, self.page(i), vDm if self.sums and i == self.ndma - 1 else vL16, WS, sT, 'D' if i < self.n1 else 'E') for i in range(self.ndma)]
    def counts(self, L, i0, tail=()):
        kind = lambda l: l[-1] if ' ; ' in l else 'S' if 'store' in l else 'L'
        ops = [kind(l) for l in L[i0:] if l.startswith('buffer_')]; seen = 0
        for i in range(i0, len(L)):
            if L[i].startswith('buffer_'): seen += 1
            m = re.search(r'@(.)', L[i])
            if m: L[i] = L[i].replace(m.group(0), str(seen if m.group(1) == '@' else (ops + list(tail) + ops[:seen])[::-1].index(m.group(1))))
        return (ops + list(tail))[::-1]
    def report(self):
        k = min(max(self.opt.get('kpost', 6), self.n1), self.ndma); d = self.dma()
        return d[:k] + ["s_waitcnt vmcnt(%d)\n" % k + self.post] + d[k:] + self.off + ["s_waitcnt vmcnt(%d)" % (self.ndma - self.n1 + (self.np if k >= self.n1 else 0))]
    def drain(self, nstores, tag, entry):
        A = self.A; drain, spin, fin = ["L_%s_%s%s" % (self.name, x, tag) for x in ('drain', 'spin', 'fin')]
        n2 = self.ndma - self.n1
        A("s_mov_b32 s%d, s%d\ns_cmp_eq_u32 s%d, s%d\ns_cbranch_scc1 %s" % (sSrc, sSW, sI, sLast, fin))
        A(self.see(nstores) + self.missing(sSn) + "\ns_cbranch_scc1 " + drain)
        for l in self.report(): A(l)
        A("s_branch " + entry)
        A(drain + ":")
        A("s_waitcnt vmcnt(0)\n" + self.post)
        for l in self.off: A(l)
        A(spin + ":")
        if self.opt.get('gsleep', 0): A("s_sleep %d" % self.opt.get('gsleep', 0))
        A(self.fload + "\ns_add_u32 s%d, s%d, 1\ns_cmp_lt_u32 s%d, %d\ns_cselect_b32 s%d, s%d, -2" % (sBu2, sBu2, sBu2, BUDGET, sT2, sSn))
        A(self.see(0) + self.missing(sT2) + "\ns_cbranch_scc1 " + spin)
        for l in self.dma(): A(l)
        A("s_waitcnt vmcnt(%d)\ns_branch %s" % (n2, entry))
        A(fin + ":\ns_waitcnt vmcnt(0)\n" + self.post)
        if self.skip: A("s_cmp_lg_u32 s%d, 0\ns_cbranch_scc1 L_helper_done" % sMir)
        if self.name == 'root' and self.opt.get('alt'): A("s_cmp_lt_u32 s101, 5\ns_cbranch_scc1 L_root_again")
        if self.opt.get('lstamp'): ldump(A, vT0, vL16, 11, 170)
        if self.name == 'bo': A("s_endpgm")
        else: leave(A, self.opt)
FLIP = ["v_add_u32 v%d, s%d, v%d" % (vXr, sC2, vXr), "v_add_u32 v%d, s%d, v%d" % (vXr2, sC2, vXr2), "s_sub_u32 s%d, 0, s%d" % (sC2, sC2), "s_add_u32 s%d, s%d, 1" % (sPV, sSc)]
def groups(L, n): return ["\n".join(L[i:i + n]) for i in range(0, len(L), n)]
REST = "s_waitcnt vmcnt(@@)\ns_barrier"

def skeleton(A, opt, name, nk, nt, W, ndma, n1, lead, src, flagbase, outs, stores, tail, fpos, xread=None, extra=None, late=None, pre=0, local=True):
    Z = []
    fl = Flow(A, opt, name, ndma, n1, lead, src, flagbase, local)
    top, top2 = "L_%s_top" % name, "L_%s_top2" % name
    A("s_branch L_%s_spin" % name)
    A(top + ":")
    i0 = len(A.L)
    A("s_waitcnt vmcnt(@D)")
    A(top2 + ":\ns_barrier")
    gstamp(A, opt, 0)
    if xread is None: xread = lambda k, d: ["ds_read_b128 %s, v%d offset:%d" % (v(d, 4), vXr, k * 1024)]
    ring = 4 if nt == 2 else 6
    Q = Lgkm()
    for k in range(ring - 1):
        for l in xread(k, XF + 4 * k): A(Q.op(k, l))
    pE, pD, pP, pF = fpos
    for l in stores + ([fl.fload] if pE == 0 else []) + [fl.rot] + fl.lget + fl.nxt: A(l)
    nm = nk * nt; F = {}
    def put(p, L, step=1):
        for l in L:
            F.setdefault(min(p, nm - 1), []).append(l); p += step
        return p
    put(0, extra() if extra else [])
    if pE: put(pE, [fl.fload])
    w = "s_waitcnt vmcnt(@F)\n"
    if pE is None: w = "s_cmp_eq_u32 s%d, 0\ns_cbranch_scc1 L_%s_have\n%sL_%s_have:\n" % (sRdy, name, w, name)
    p = put(pD, [lambda Q: w + "s_barrier\n" + Q.op('f', fl.fread), "", "", lambda Q: Q.wait('f') + fl.decide[0]] + fl.decide[1:])
    d = fl.dma(); n = min(ndma, max(0, (nm - p + 1) // 2)); put(p, d[:n], 2); rest = d[n:]
    put(pP, ["s_waitcnt vmcnt(@S)\n" + fl.post] + groups(outs, 4))
    if pF < nm: assert not rest; put(pF, [fl.fload])
    else: rest += [''] * (pF - nm) + [fl.fload]
    kr = 4 * n1 - ring + 1
    if late: put(max(late[0], kr * nt), late[1])
    for k in range(nk):
        x = XF + 4 * (k % ring)
        for t in range(nt):
            A((Q.wait(k) if t == 0 else "") + mf(ACC + 16 * t, W[k * nt + t], x, ACC + 16 * t if k else None))
            if t == 0 and k == kr and n1 < ndma: A(REST)
            if t == 0 and k + ring - 1 < nk:
                for l in xread(k + ring - 1, XF + 4 * ((k + ring - 1) % ring)): A(Q.op(k + ring - 1, l))
            for l in F.get(k * nt + t, []): A(l(Q) if callable(l) else l)
    for l in FLIP + fl.lput: A(l)
    gstamp(A, opt, 1)
    T = Asm(); tail(T, Z, fl, None)
    for i, l in enumerate(T.L):
        if i % opt.get('tstep', 14) == 0 and rest: A(rest.pop(0))
        A(l)
    assert not rest
    fl.counts(A.L, i0)
    gstamp(A, opt, 2, True)
    A("s_cmp_lg_u32 s%d, 0\ns_cbranch_scc1 %s" % (sRdy, top))
    for l in stores: A(l)
    fl.drain(len(stores) + pre, '', top2)
    for z in Z: A(z)

def mf16(d, a, b, c=None): return "v_mfma_f32_16x16x32_bf16 %s, %s, %s, %s" % (v(d, 4), R(a, 4), R(b, 4), "0" if c is None else v(c, 4))
def stream(A, opt, name, nk, nt, W, orient, ndma, n1, lead, src, flagbase, outs, epi, XR_, AC, ring, dist, nbar, fpos, late=None, local=True, skip=None):
    fl = Flow(A, opt, name, ndma, n1, lead, src, flagbase, local, skip)
    A("s_branch L_%s_spin1" % name)
    nf = 2 * nk; nm = nf * nt
    assert (2 * nf) % ring == 0
    acc = lambda p, m, t: AC + 8 * nt * p + 4 * (nt * m + t)
    slot = lambda p, f: XR_ + 4 * ((f + p * nf) % ring)
    def rd(p, f):
        o = (f >> 1) * 2048 + (f & 1) * 256
        return "ds_read_b128 %s, v%d offset:%d" % (v(slot(p, f), 4), vXr if o < 65536 else vXr2, o % 65536)
    def mm(p, f, t):
        k, m = f >> 1, f & 1; w, x = W[k * nt + t], slot(p, f)
        return mf16(acc(p, m, t), w if orient == 'T' else x, x if orient == 'T' else w, acc(p, m, t) if k else None)
    A.uid += 100; S = Asm(); S.uid = A.uid + 5000; fl.A = S
    nst = sum('buffer_store' in l for l in epi(lambda m, t: acc(0, m, t), False))
    for p in range(2):
        body, entry, slow = ["L_%s_%s%d" % (name, x, p) for x in ('body', 'entry', 'slow')]
        S(entry + ":\ns_barrier")
        for f in range(dist): S(rd(p, f))
        S("s_branch " + body)
        A(body + ":")
        gstamp(A, opt, 0)
        Q = Lgkm()
        for f in range(dist): Q.op(f, '')
        FS = [[] for _ in range(nm)]; FV = [[] for _ in range(nm)]
        fixs = lambda g: 1 if g % nt == nt - 1 else 0
        fixv = lambda g: 1 if g % nt == 0 and g // nt + dist < nf else 0
        lim = (nf - nbar) * nt - 1
        FS[lim - 1] += ['', '']
        gr = (4 * n1 - dist) * nt
        if n1 < ndma: FS[gr] += REST.split('\n')
        def put(g, L, step=0):
            pv = False
            for l in L:
                if isinstance(l, int): g += l; continue
                sc = l[0] if isinstance(l, tuple) else l.startswith('s_'); l = l[1] if isinstance(l, tuple) else l
                if sc and pv and not step: g += 1
                wt = lambda x: 2 if isinstance(x, str) and x.startswith(('v_rsq', 'buffer_store')) else 1
                w = wt(l); cnt = lambda X: sum(wt(x) for x in X)
                vm = isinstance(l, str) and l.startswith('buffer_')
                while g < lim and (len(FS[g]) + fixs(g) + cnt(FV[g]) + fixv(g) + w > 3 or (not sc and cnt(FV[g]) + fixv(g) + w > 2) or (vm and FV[g])): g += 1
                assert g < lim, (name, l)
                (FS if sc else FV)[g].append(l); pv = not sc
                if pv: g += step
            return g
        flat = lambda L: "\n".join(L).split('\n')
        pE, pD, pP, pF = fpos
        rdf = (False, lambda Q: Q.op('f', fl.fread))
        gf = put(0, [rdf]) if pD == 'B' else put(gr + 1, [rdf]) if pD == 'R' else put(pD, ["s_waitcnt vmcnt(@F)", "s_barrier", rdf])
        ge = put(1, epi(lambda m, t: acc(1 - p, m, t), False))
        g = put(0, flat(fl.lget + [fl.rot]))
        dec = flat(fl.decide)
        g = put(max(g + 1, gf + 6), [(True, lambda Q: Q.wait('f')), dec[0], 2] + dec[1:])
        g = max(g, pE or 0)
        assert pP == 'R' or pP > g
        gd0 = g
        for i, d in enumerate(fl.dma()):
            d = d.split('\n'); g = put(g + 1, d[:2]); g = put(max(g, getattr(put, 'last', -9) + opt.get('dstep_' + name[0], 4 if name == 'leaf' else 6)), d[2:]); put.last = g
            if i + 1 == -pF: g = put(g + 1, flat([fl.fload])); assert i + 1 >= n1
        if pF >= 0: g = put(max(pF, g + 1), flat([fl.fload]))
        gm = g
        sp = lambda k: [(True, "%s s[98:99]\ns_waitcnt lgkmcnt(0)\nv_writelane_b32 v11, s98, %d" % ('s_memtime' if opt.get('lcyc') else 's_memrealtime', k))] if opt.get('gstamp') == 2 else []
        put(opt.get('sp3', ge + 1), sp(3))
        if pP == 'R':
            assert gr > ge and gr > gd0
            FS[gr][0] = "s_waitcnt vmcnt(@S)"; FS[gr][1] = "s_barrier ; R"; g = put(gr + 1, flat([fl.post])[1:] + outs + FLIP[3:])
        else: g = put(max(pP, ge + 1), sp(4) + ["s_waitcnt vmcnt(@S)"] + sp(5) + flat([fl.post]) + outs + FLIP[3:])
        g = put(max(g, gm) + 1, flat(fl.nxt) + fl.lput); assert g < (nf - dist - 1) * nt
        if late: put(max(late[0], ge + 1, gr + 1 if n1 < ndma else 0), late[1])
        put((nf - dist - 1) * nt + 1, FLIP[:3])
        i0 = len(A.L)
        A(Q.wait(0))
        for f in range(nf - nbar):
            for t in range(nt):
                g = f * nt + t
                if g == lim:
                    gstamp(A, opt, 1); gstamp(A, opt, 2, True)
                    A("s_cmp_eq_u32 s%d, 0\ns_cbranch_scc1 %s" % (sRdy, slow))
                A(mm(p, f, t))
                if t == nt - 1 and f + 1 < nf - nbar: A(Q.wait(f + 1))
                for l in FS[g]: A(l(Q) if callable(l) else l)
                if t == 0 and f + dist < nf: A(Q.op(f + dist, rd(p, f + dist)))
                for l in FV[g]: A(l(Q) if callable(l) else l)
        A("s_waitcnt vmcnt(@%s) lgkmcnt(0)\ns_barrier" % ('F' if pD == 'B' else 'D'))
        ops = fl.counts(A.L, i0)
        nx = list(range(dist))
        free = lambda f, done: (nf + f - ring) < done
        for f in range(nf - nbar, nf):
            for t in range(nt):
                if t == 0 and nx and free(nx[0], f): A(rd(1 - p, nx.pop(0)))
                A(mm(p, f, t))
                if nx and free(nx[0], f + (1 if t == nt - 1 else 0)): A(rd(1 - p, nx.pop(0)))
        assert not nx
        if p == 1: A("s_branch L_%s_body0" % name)
        S(slow + ":\n" + mm(p, nf - nbar - 1, nt - 1) + "\ns_waitcnt lgkmcnt(0)")
        for f in range(nf - nbar, nf):
            for t in range(nt): S(mm(p, f, t))
        nn = S.lab('nonext')
        S("s_mov_b32 s%d, s%d\ns_cmp_eq_u32 s%d, s%d\ns_cbranch_scc1 %s" % (sSrc, sSW, sI, sLast, nn))
        S(fl.see(min(ops.index('F'), ops.index('E' if n1 < ndma else 'D'))) + fl.missing(sSn) + "\ns_cbranch_scc1 " + nn)
        if name == 'leaf' and opt.get('lfirst', 1):
            for l in epi(lambda m, t: acc(p, m, t), True) + fl.report(): S(l)
            S("s_branch L_%s_entry%d" % (name, 1 - p))
        else:
            for l in fl.dma() + epi(lambda m, t: acc(p, m, t), True) + fl.off[:-1]: S(l)
            S("s_waitcnt vmcnt(%d)\ns_branch L_%s_entry%d" % (nst + ndma - n1, name, 1 - p))
        S(nn + ":\n" + fl.fload)
        for l in epi(lambda m, t: acc(p, m, t), True): S(l)
        fl.drain(nst, str(p), "L_%s_entry%d" % (name, 1 - p))
    A.L.extend(S.L)

def row_stats(SX, n):
    L = ["v_add_f32 v%d, v%d, v%d" % (SX + i, SX + i, SX + n * p + i) for p in range(1, 5) for i in range(n)]
    L += ["v_mul_f32 v%d, 0x%x, v%d" % (SX + i, f32(1 / 640 if i & 1 else -1 / 640), SX + i) for i in range(n)]
    for op in ("v_fma_f32 v{1}, -v{0}, v{0}, v{1}", "v_max_f32 v{1}, 0, v{1}", "v_add_f32 v{1}, 0x%x, v{1}" % f32(1e-5), "v_rsq_f32 v{1}, v{1}"):
        L += [op.format(SX + i, SX + i + 1) for i in range(0, n, 2)]
    return L

def two_streams(A, lstride):
    A("v_lshrrev_b32 v%d, 5, v0\nv_mul_u32_u24 v%d, %d, v%d\nv_add_u32 v%d, v%d, v%d" % (vT0, vT0, lstride, vT0, vFl, vFl, vT0))
def common_init(A, ndma, nflag):
    XB = 4096 * ndma
    A("v_lshlrev_b32 v%d, 3, v0\nv_mov_b32 v%d, v%d\nv_add_u32 v%d, 0x10000, v%d" % (vL8, vXr, vL16, vXr2, vL16))
    A("v_and_b32 v%d, 31, v0\nv_min_u32 v%d, %d, v%d\nv_lshlrev_b32 v%d, 8, v%d" % (vFl, vFl, nflag - 1, vFl, vFl, vFl))

def hold(A, opt):
    if opt.get('hold', 1):
        l, l2 = A.lab('hold'), A.lab('hold')
        A("s_cmp_lg_u32 s%d, 0\ns_cbranch_scc1 %s\nv_mov_b32 v%d, %d" % (sW, l, vT0, DBG_READY))
        wait_word(A, vT0, opt.get('nready', NREADY), 32)
        if opt.get('hold', 1) > 1:
            A(l2 + ":\ns_sleep 16\nbuffer_load_dword v%d, off, %s, 0 offset:%d sc1\ns_add_u32 s%d, s%d, 1\ns_waitcnt vmcnt(0)\nv_readfirstlane_b32 s3, v%d" % (vT0, WS, FX, sBud, sBud, vT0))
            A("s_cmp_ge_u32 s%d, %d\ns_cbranch_scc1 %s\ns_cmp_lt_i32 s3, %d\ns_cbranch_scc1 %s" % (sBud, BUDGET, l, opt['hold'], l2))
        A(l + ":\ns_barrier")
WHERE = {}
def nearby(A, opt, producer, keys=None):
    if keys is None:
        A("s_lshr_b32 s%d, s%d, 5" % (sT, sRole)); keys = (sT, {g: g for g in range(4, 8)})
    A("s_mov_b64 vcc, 0")
    for k, g in keys[1].items():
        m = sum(1 << l for l in range(64) if producer(k, l) and WHERE[producer(k, l)] >> 5 == g)
        if m: A("s_cmp_eq_u32 s%d, %d\ns_cselect_b32 vcc_lo, 0x%x, vcc_lo\ns_cselect_b32 vcc_hi, 0x%x, vcc_hi" % (keys[0], k, m & 0xffffffff, m >> 32))
    A("s_cmp_eq_u32 s%d, 0\ns_cselect_b32 s%d, %d, 0\nv_mov_b32 v%d, s%d\nv_cndmask_b32 v%d, 0, v%d, vcc\nv_add_u32 v%d, v%d, v%d" % (sMix, sT, LOC, vT0, sT, vT0, vT0, vFl, vFl, vT0))
def leaf_index(opt, ks, ns): return 5 * ns + ks if opt.get('byns') else 5 * ks + ns
def tr16(A, dst, rowb):
    A("v_lshrrev_b32 v%d, 4, v0\nv_bfe_u32 v%d, v0, 2, 2\nv_lshl_add_u32 v%d, v%d, 3, v%d\nv_mul_u32_u24 v%d, %d, v%d\nv_and_b32 v%d, 3, v0" % (vT0, dst, dst, vT0, dst, dst, rowb, dst, vT0))
def x16(A):
    A("v_and_b32 v%d, 0xf0, v%d\nv_lshrrev_b32 v%d, 4, v0\nv_lshl_add_u32 v%d, v%d, 9, v%d\nv_mov_b32 v%d, v%d" % (vSt2, vL16, vT0, vSt, vT0, vSt2, vXr, vSt))

def qkv_role(A, opt, sIdx):
    sM, sU, sHd, sTh, sBase, sP = sE, sE + 1, sE + 2, sE + 3, sE + 4, sE + 6
    XR_, AC, PK_, CS, SX, SV = 12, 28, 92, 108, 124, 144
    L_SC = 2 * 45056
    A("L_role_qkv:")
    A("s_mul_i32 s%d, s%d, 43\ns_lshr_b32 s%d, s%d, 10\ns_mul_i32 s%d, s%d, 24\ns_sub_u32 s%d, s%d, s%d" % (sM, sIdx, sM, sM, sT, sM, sU, sIdx, sT))
    A("s_lshl_b32 s%d, s%d, 9\ns_lshl_b32 s%d, s%d, 2\ns_add_u32 s%d, s%d, s%d" % (sBase, sU, sU, sU, sU, sU, sW))
    A("s_mul_i32 s%d, s%d, 171\ns_lshr_b32 s%d, s%d, 9\ns_mul_i32 s%d, s%d, 3\ns_sub_u32 s%d, s%d, s%d" % (sHd, sU, sHd, sHd, sT, sHd, sTh, sU, sT))
    A("v_lshlrev_b32 v%d, 4, v0" % vL16)
    vS, vA, vB = 20, [21, 22, 23, 24], 25
    A("v_lshrrev_b32 v%d, 5, v0\nv_mul_u32_u24 v%d, %d, v%d\nv_add_u32 v%d, v%d, v%d" % (vS, vS, 12288 - 512, vS, vS, vS, vL16))
    tr16(A, vB, 512)
    for t in range(4):
        p, i = t >> 1, t & 1
        A("s_cmp_eq_u32 s%d, %d\ns_cselect_b32 s%d, s%d, 0\ns_cmp_eq_u32 s%d, 2\ns_cselect_b32 s%d, 3, 4\ns_cselect_b32 s%d, %d, %d" % (sTh, 2 - 2 * p, sT, sM, sT, sT, sT2, 32 * i, 8 * i))
        A("v_lshlrev_b32 v%d, s%d, v%d\nv_add3_u32 v%d, v%d, s%d, v%d" % (vA[t], sT, vT0, vA[t], vA[t], sT2, vB))
        A("s_lshl_b32 s%d, s%d, 7\ns_add_u32 s%d, s%d, %d\nv_add_u32 v%d, s%d, v%d" % (sT, sW, sT, sT, 64 * p, vA[t], sT, vA[t]))
    A("s_cmp_eq_u32 s%d, 1\ns_cselect_b32 s%d, s%d, s%d\ns_cselect_b32 s%d, s%d, s%d" % (sM, sP, pWk, pWq, sP + 1, pWk + 1, pWq + 1))
    A("s_cmp_eq_u32 s%d, 2\ns_cselect_b32 s%d, s%d, s%d\ns_cselect_b32 s%d, s%d, s%d" % (sM, sP, pWv, sP, sP + 1, pWv + 1, sP + 1))
    W = wreg(80)
    for d in range(4): A("v_mov_b32 v%d, 0x3f803f80" % (XR_ + d))
    def reads(u, b):
        for t in range(4):
            A("v_add_u32 v%d, %d, v%d" % (26 + t, b, vA[t]))
            for rd in range(2): A("ds_read_b64_tr_b16 %s, v%d offset:%d" % (R(W[4 * u + t] + 2 * rd, 2), 26 + t, 4 * rd * 512))
    load_w(A, sP, 640 * 6144 * 2, sBase, vS, 2, 12288, 4, 20, 9, reads, sMir if opt.get('helpers') and opt.get('qrev', 0) else None,
           lambda first, u: [A(mf16(CS + 4 * t, W[4 * u + t], XR_, None if first else CS + 4 * t) + '\n' + mf16(SV + 4 * t, XR_, W[4 * u + t], None if first else SV + 4 * t)) for t in range(4)])
    common_init(A, 11, 5); x16(A)
    A("v_add_u32 v%d, %d, v%d" % (vXr2, TILE, vSt2))
    for l in lin(sC0, QKV // 2, [(sHd, QKV_HEAD), (sM, 12288), (sTh, 4096)]) + sspread(sC0, sT) + lin(sC1, FQ, [(sIdx, FW)]): A(l)
    src = (XS, [('L', 2 * 64 * XT), ('S', XT)]); two_streams(A, 2 * 5 * FW)
    outs = slot(sT2, sSc, sLc, 2 * QKV_SEG) + ["s_add_u32 s%d, s%d, s%d" % (sO[0], sC0, sT2)] + near(sO[0], sO[0], sT2, sLc) + lin(sPF, 0, [(sC1, 1), (sLc, 72 * FW)], sT2)
    stats = [(False, lambda Q, p=p: Q.op('st', "ds_read_b128 %s, v%d offset:%d" % (v(SX + 4 * p, 4), vXr2, 256 * p))) for p in range(5)]
    stats += [10, (True, lambda Q: Q.wait('st'))] + row_stats(SX, 4)
    lead = opt.get('lead_q', 16); fpos = opt.get('fq', (54, 'B', 'R', -8)); n1 = opt.get('n1q', 7)
    A("s_cmp_eq_u32 s%d, 2\ns_cbranch_scc1 L_qkv_v" % sM)
    wait_ready(A, vT0, opt, True); nearby(A, opt, lambda k, l: ('s', (30 if l < 32 else 35) + min(l & 31, 4)))
    for l in side(sC0, sT): A(l)
    if opt.get('qfar', 1): A("s_cmp_eq_u32 s%d, 0\ns_cselect_b32 s%d, 0x2000, 0\ns_xor_b32 s%d, s%d, s%d" % (sM, sT, sC0, sC0, sT))
    def epi_t(acc, fast):
        L = []
        for p in range(2):
            for m in range(2):
                d = PK_ + 4 * (2 * p + m)
                for i in range(2):
                    a, c = acc(m, 2 * p + i), CS + 4 * (2 * p + i)
                    if fast:
                        L += ["v_pk_fma_f32 %s, %s, %s, %s op_sel_hi:[1,0,1]" % (v(a + r, 2), v(c + r, 2), v(SX + 2 * m, 2), v(a + r, 2)) for r in (0, 2)]
                        L += ["v_pk_mul_f32 %s, %s, %s op_sel:[0,1] op_sel_hi:[1,1]" % (v(a + r, 2), v(a + r, 2), v(SX + 2 * m, 2)) for r in (0, 2)]
                    else:
                        L += ["v_fmac_f32 v%d, v%d, v%d" % (a + r, SX + 2 * m, c + r) for r in range(4)]
                        L += ["v_mul_f32 v%d, v%d, v%d" % (a + r, a + r, SX + 2 * m + 1) for r in range(4)]
                    L += [cvt(d + 2 * i, a, a + 1), cvt(d + 2 * i + 1, a + 2, a + 3)]
                L.append(st(4, d, vSt, sO[0], 2048 * p + 256 * m))
        return L
    stream(A, opt, 'qk', 20, 4, W, 'T', 11, n1, lead, src, FX, outs, epi_t, XR_, AC, 4, 3, 2, fpos, late=(60, stats), local=False, skip=opt.get('helpers'))
    A("L_qkv_v:")
    A("v_and_b32 v%d, 3, v0\nv_lshrrev_b32 v%d, 4, v0\nv_lshl_add_u32 v%d, v%d, 2, v%d\nv_lshlrev_b32 v%d, 4, v%d\nv_add_u32 v%d, %d, v%d" % (vXr2, vT0, vXr2, vT0, vXr2, vXr2, vXr2, vXr2, TILE, vXr2))
    wait_ready(A, vT0, opt, True); nearby(A, opt, lambda k, l: ('s', (30 if l < 32 else 35) + min(l & 31, 4)))
    for l in side(sC0, sT): A(l)
    if opt.get('qfar', 1): A("s_cmp_eq_u32 s%d, 0\ns_cselect_b32 s%d, 0x2000, 0\ns_xor_b32 s%d, s%d, s%d" % (sM, sT, sC0, sC0, sT))
    qb = lambda b: "quad_perm:[%d,%d,%d,%d] row_mask:0xf bank_mask:0xf" % (b, b, b, b)
    def epi_n(acc, fast):
        L = []
        for t in range(4):
            for m in range(2):
                a = acc(m, t)
                L += ["v_fmac_f32_dpp v%d, v%d, v%d %s" % (a + b, SX + 2 * m, SV + 4 * t, qb(b)) for b in range(4)]
                L += ["v_mul_f32_dpp v%d, v%d, v%d %s" % (a + b, SX + 2 * m + 1, a + b, qb(b)) for b in range(4)]
                L += [cvt(PK_ + 4 * t + 2 * m, a, a + 1), cvt(PK_ + 4 * t + 2 * m + 1, a + 2, a + 3)]
            L.append(st(4, PK_ + 4 * t, vL16, sO[0], 1024 * t))
        return L
    stream(A, opt, 'v', 20, 4, W, 'N', 11, n1, lead, src, FX, outs, epi_n, XR_, AC, 4, 3, 2, fpos, late=(60, stats), local=False, skip=opt.get('helpers'))

def wo_src(A, sK0, sNs, vS, sBase):
    A("v_lshlrev_b32 v%d, 4, v0" % vL16)
    A("v_lshrrev_b32 v%d, 4, v0\nv_mul_u32_u24 v%d, %d, v%d\nv_add_u32 v%d, v%d, v%d" % (vS, vS, 1280 - 256, vS, vS, vS, vL16))
    for l in lin(sBase, 0, [(sK0, 1280), (sNs, 256)]): A(l)
def o_flags(A, sK0, K):
    A("s_mul_i32 s%d, s%d, 683\ns_lshr_b32 s%d, s%d, 17\ns_lshl_b32 s%d, s%d, 1" % (sT, sK0, sT, sT, sT, sT))
    A("s_add_u32 s%d, s%d, %d\ns_mul_i32 s%d, s%d, 683\ns_lshr_b32 s%d, s%d, 17\ns_lshl_b32 s%d, s%d, 1\ns_add_u32 s%d, s%d, 1" % (sT2, sK0, K - 64, sT2, sT2, sT2, sT2, sT2, sT2, sT2, sT2))
    A("v_and_b32 v%d, 31, v0\nv_add_u32 v%d, s%d, v%d\nv_min_u32 v%d, s%d, v%d\nv_lshlrev_b32 v%d, 8, v%d" % (vFl, vFl, sT, vFl, vFl, sT2, vFl, vFl, vFl))
def leaf_role(A, opt, sIdx):
    sNs, sKs, sK0, sBase = sE, sE + 1, sE + 2, sE + 4
    XR_, AC, PK_ = 12, 44, 76
    nk = KLEAF // 32; ndma = KLEAF // 64
    A("L_role_leaf:")
    hold(A, opt)
    A("s_mul_i32 s%d, s%d, 52\ns_lshr_b32 s%d, s%d, 8\ns_mul_i32 s%d, s%d, 5\ns_sub_u32 s%d, s%d, s%d\ns_mul_i32 s%d, s%d, %d" % (sKs, sIdx, sKs, sKs, sT, sKs, sNs, sIdx, sT, sK0, sKs, KLEAF))
    vS, vA = 20, 21
    wo_src(A, sK0, sNs, vS, sBase); tr16(A, vA, 256)
    A("v_lshl_add_u32 v%d, v%d, 4, v%d\ns_lshl_b32 s%d, s%d, 6\nv_add_u32 v%d, s%d, v%d" % (vA, vT0, vA, sT, sW, vA, sT, vA))
    W = wreg(2 * nk)
    def reads(u, b):
        A("v_add_u32 v22, %d, v%d" % (b, vA))
        for kk in range(2):
            for t in range(2):
                for rd in range(2): A("ds_read_b64_tr_b16 %s, v22 offset:%d" % (R(W[(2 * u + kk) * 2 + t] + 2 * rd, 2), (32 * kk + 4 * rd) * 256 + 8 * t))
    load_w(A, pWo, 640 * 6144 * 2, sBase, vS, 4, 1280, 4, ndma, 9, reads)
    common_init(A, ndma, 1); o_flags(A, sK0, KLEAF); x16(A)
    A("v_add_u32 v%d, 0x10000, v%d" % (vXr2, vXr))
    for l in lin(sC0, PP, [(sKs, TILE), (sNs, 8192), (sW, 2048)]) + lin(sC1, FP, [(sNs, 5 * FW), (sKs, FW)]): A(l)
    wait_ready(A, vT0, opt)
    for l in ["s_lshl_b32 s%d, s%d, 17" % (sK0, sKs)] + side(sK0, sT): A(l)
    src = (OO, [(sK0, 1)]); two_streams(A, 64 * FW)
    outs = slot(sO[0], sSc, None, 5 * TILE) + lin(sO[0], 0, [(sC0, 1), (sLc, LS['p'])], sT2)[1:] + lin(sPF, 0, [(sC1, 1), (sLc, 25 * FW)], sT2)
    def epi(acc, fast):
        L = []
        for m in range(2):
            for i in range(2): L += [cvt(PK_ + 4 * m + 2 * i, acc(m, i), acc(m, i) + 1), cvt(PK_ + 4 * m + 2 * i + 1, acc(m, i) + 2, acc(m, i) + 3)]
            L.append(st(4, PK_ + 4 * m, vSt, sO[0], 256 * m))
        return L
    stream(A, opt, 'leaf', nk, 2, W, 'T', ndma, opt.get('n1l', 9), opt.get('lead_o', 11), src, FO, outs, epi, XR_, AC, 8, 5, 3, opt.get('fl', (None, 'B', 'R', -9)))

ID, PL, RS = EX, EX + 8, EX + 48
vSw, vSr, vS8, vFp = EX + 64, EX + 65, EX + 66, EX + 67
sRes, sPp, sPr, sFpb, sOnes = sE + 8, sE + 9, sE + 10, sE + 12, sE + 5
L_RS = 151552
def halves(A, op, t0, t1):
    A("v_mov_b32 v%d, v%d\nv_permlane32_swap_b32 v%d, v%d\n%s v%d, v%d, v%d" % (t1, t0, t0, t1, op, t0, t0, t1))
def rn_init(A):
    ident(A, ID, 0); ident(A, ID + 4, 1)
    A("v_and_b32 v%d, 0xf0, v%d\nv_bfe_u32 v%d, v0, 4, 1\nv_lshl_add_u32 v%d, v%d, 3, v%d\nv_lshrrev_b32 v%d, 5, v0\nv_lshl_add_u32 v%d, v%d, 8, v%d" % (vSw, vL16, vT0, vSw, vT0, vSw, vT0, vSw, vT0, vSw))
    A("s_lshl_b32 s%d, s%d, 9\ns_add_u32 s%d, s%d, %d\nv_add_u32 v%d, s%d, v%d" % (sT, sW, sT, sT, L_RS, vSw, sT, vSw))
    A("v_lshlrev_b32 v%d, 2, v0\nv_add_u32 v%d, %d, v%d\ns_cmp_eq_u32 s%d, 0\ns_cselect_b32 s%d, 0, 0x%x\nv_add_u32 v%d, s%d, v%d" % (vS8, vSr, L_RS, vS8, sW, sT, OOBS, vS8, sT, vS8))
def tight(A, opt, name, nk, W, ndma, n1, nc, lead, src, flagbase, outs, head, extra, tail, fpos, xread, mid=None):
    Z = Asm(); Z.uid = A.uid + 7000
    fl = Flow(A, opt, name, ndma, n1, lead, src, flagbase, True, nc=nc)
    top, body, entry, slow = ["L_%s_%s" % (name, x) for x in ('top', 'body', 'entry', 'slow')]
    ring = 6; X = PL
    fill = [l for k in range(ring - 1) for l in xread(k, XF + 4 * k)] + [fl.fread]
    pack = [cvt(PK + i, ACC + 2 * i, ACC + 2 * i + 1) for i in range(8)]
    wr = "ds_write_b64 v%d, %s" % (vSw, v(PK + 10, 2))
    rd = ["ds_read2st64_b32 %s, v%d offset0:%d offset1:%d" % (v(X + 2 * i, 2), vSr, 2 * i, 2 * i + 1) for i in range(4)]
    sm = ["v_add_f32 v%d, v%d, v%d" % (X, X, X + i) for i in range(1, 8)] + [st(1, X, vS8, sO[1])]
    a, b = PK + 10, PK + 11
    dots = ["v_dot2_f32_bf16 v%d, v%d, s%d, %s\nv_dot2_f32_bf16 v%d, v%d, v%d, %s" % (a, PK + i, sOnes, "v%d" % a if i else "0", b, PK + i, PK + i, "v%d" % b if i else "0") for i in range(8)]
    A("s_mov_b32 s%d, 0x3f803f80\ns_branch L_%s_spin" % (sOnes, name))
    Z(entry + ":\ns_barrier")
    for l in fill + ["s_branch " + body]: Z(l)
    A(top + ":"); it = len(A.L); A("s_waitcnt vmcnt(0)\ns_barrier")
    for l in fill + pack + dots: A(l)
    A(body + ":")
    i0 = len(A.L)
    gstamp(A, opt, 0)
    Q = Lgkm()
    for k in range(ring - 1): Q.op(k, '')
    Q.op('f', '')
    F = [[] for _ in range(nk)]; room = [4 if k + ring - 1 < nk else 5 for k in range(nk)]; wide = set()
    for k in range(nk - ring + 1): room[k] -= len(xread(k + ring - 1, 0)) - 1
    def put(p, L):
        for l in L:
            if isinstance(l, int): p += l; continue
            n, l = l if isinstance(l, tuple) else (l.count('\n') + 1, l)
            w = isinstance(l, str) and 'dwordx' in l
            while (room[p] < min(n, 3) if F[p] or n < 3 else False) or (F[p] and room[p] < n) or (w and wide & {p - 1, p, p + 1}): p += 1
            F[p].append(l); room[p] -= n
            if w: wide.add(p)
        return p
    pS, pP, pF, nF = fpos
    kr = 4 * n1 - ring + 1
    assert kr >= 4 * nc - 1; room[kr] -= 2
    hd = head(A, Z)
    put(0, [hd[0], (2, lambda Q: "s_nop 0\n" + Q.op('w', wr)), hd[1]])
    p = put(3 if len(hd) > 2 else 1, fl.rot.split('\n') + fl.lget)
    dec = fl.decide[0].split('\n', 1)
    q = put(pS, [(2, lambda Q: Q.wait('w') + "s_barrier")] + [(1, lambda Q, l=l: Q.op('s', l)) for l in rd] + [3, (1, lambda Q: Q.wait('s'))])
    q = put(q, sm)
    pd = put(p, [(2, lambda Q: Q.wait('f') + dec[0]), 1, dec[1]] + fl.decide[1:])
    if mid: q = put(q + 1, [fl.fload])
    assert pP > q
    sp = lambda k: "s_memtime s[98:99]\ns_waitcnt lgkmcnt(0)\nv_writelane_b32 v11, s98, %d\n" % k if opt.get('gstamp') else ""
    q = put(pP, [(6, lambda Q: sp(3) + "s_waitcnt vmcnt(@%s)\n" % ('F' if mid else 'S') + fl.post + "\n" + sp(4) + ("\n" + Q.op('g', fl.fread) if mid else ""))])
    pe = put(p, extra)
    if mid: pm = put(max(q + 3, pe + 1), [(5, lambda Q: Q.wait('g') + mid[0]), 1] + mid[1])
    d = fl.dma(); p = pd + 1; todo = list(range(ndma))
    for j in range(ndma):
        if j == nF: assert min(todo) >= n1; p = put(max(p + 1, pF), [fl.fload]) + 1; assert p > q + 4 or not mid
        i = todo[0] if p > kr - 2 else min(x for x in todo if x >= nc); todo.remove(i)
        p = put(max(p, kr + 1) if i < nc else p, [d[i]])
    if nF == ndma: put(max(p + 1, pF), [fl.fload])
    if mid:
        l = A.lab('look'); put(max(p + 1, nk - 8), [(3, "s_cmp_lg_u32 s%d, 0\ns_cbranch_scc1 %s\n%s\n%s:" % (mid[2], l, fl.fload.replace('buffer_', 'BUFFER_'), l))])
    put(nk - ring + 1, FLIP[:3] if not nc else [FLIP[0], FLIP[2]])
    put(max(q, put(pe + 1, fl.nxt + groups(fl.lput, 9))) + 1, outs + (["s_mov_b32 s%d, s%d" % (sPV, sSn)] if lead == 'alt' else FLIP[3:]))
    for k in range(nk):
        A(Q.wait(k) + mf(ACC, W[k], XF + 4 * (k % ring), ACC if k else None))
        if k == kr: A(REST + "\n" + sp(5))
        if k + ring - 1 < nk:
            for l in xread(k + ring - 1, XF + 4 * ((k + ring - 1) % ring)): A(Q.op(k + ring - 1, l))
        for l in F[k]: A(l(Q) if callable(l) else l)
    ops = fl.counts(A.L, i0)
    A.L[it] = "s_waitcnt vmcnt(%d)" % ops.index('F')
    A.L[i0:] = [l.replace('BUFFER_', 'buffer_') for l in A.L[i0:]]
    gstamp(A, opt, 1)
    tail(A, Z, fl, ops.index)
    gstamp(A, opt, 2, True)
    A("s_cmp_lg_u32 s%d, 0\ns_cbranch_scc1 %s" % (sRdy, top))
    A(fl.fload)
    hd = [l[1] if isinstance(l, tuple) else l for l in head(A, Z)]
    for l in pack + hd[:1] + dots + hd[1:2] + ["s_nop 1", wr, "s_waitcnt lgkmcnt(0)\ns_barrier"] + rd + ["s_waitcnt lgkmcnt(0)"] + sm: A(l)
    fl.drain(3, '', entry)
    A.L.extend(Z.L)

def root_role(A, opt, sIdx):
    sNs, sPw, sK0, sCol, sBase = sE, sE + 1, sE + 2, sE + 3, sE + 4
    alt = opt.get('alt') or 65
    nk = KROOT // 16; ndma = KROOT // 64
    A("L_role_root:")
    hold(A, opt)
    A("s_cmp_ge_u32 s%d, 5\ns_cselect_b32 s%d, 1, 0\ns_mul_i32 s%d, s%d, 5\ns_sub_u32 s%d, s%d, s%d\ns_mov_b32 s%d, %d" % (sIdx, sLn, sT, sLn, sNs, sIdx, sT, sK0, 5 * KLEAF))
    vS, vA = EX, EX + 1
    wo_src(A, sK0, sNs, vS, sBase); tr_addr(A, vA, 256, TAB_T)
    A("s_lshl_b32 s%d, s%d, 6\nv_add_u32 v%d, s%d, v%d" % (sT, sW, vA, sT, vA))
    W = wreg(nk)
    def reads(u, b):
        A("v_add_u32 v%d, %d, v%d" % (EX + 3, b, vA))
        for kk in range(4):
            for rd in range(2): A("ds_read_b64_tr_b16 %s, v%d offset:%d" % (R(W[4 * u + kk] + 2 * rd, 2), EX + 3, (16 * kk + 4 * rd) * 256))
    load_w(A, pWo, 640 * 6144 * 2, sBase, vS, 4, 1280, 4, ndma, 9, reads)
    A("s_mov_b32 s%d, -1\ns_cmp_eq_u32 s%d, 0\ns_cselect_b32 s%d, 64, %d\ns_cselect_b32 s%d, 63, %d" % (sS2, sLn, sFrom, alt - 1, sLast, alt + (63 - alt) // 2 - 1))
    for l in lin(sPw, FX + 5 * FW, [(sLn, 10 * FW), (sNs, FW)]): A(l)
    A("s_branch L_root_init\nL_root_again:\nv_mbcnt_lo_u32_b32 v0, -1, 0\nv_mbcnt_hi_u32_b32 v0, -1, v0\ns_add_u32 s%d, s%d, 10\ns_mov_b32 s%d, 1\ns_mov_b32 s%d, %d" % (sIdx, sIdx, sLn, sK0, 5 * KLEAF))
    A("s_mov_b32 s%d, %d\ns_mov_b32 s%d, 0\ns_mov_b32 s%d, %d\ns_add_u32 s%d, s%d, %d\nL_root_init:" % (sS2, alt - 2, sFrom, sLast, (63 - alt) // 2, sPw, sPw, 15 * FW))
    common_init(A, ndma, 1); o_flags(A, sK0, KROOT); rn_init(A)
    for l in lin(sCol, 0, [(sNs, 4), (sW, 1)]) + lin(sC0, XS, [(sLn, 2 * 64 * XT), (sCol, 2048)]) + lin(sC1, XS + 64 * XT + TILE, [(sLn, 2 * 64 * XT), (sNs, 256)]): A(l)
    for l in lin(sFpb, FP, [(sLn, 25 * FW), (sNs, 5 * FW)]): A(l)
    A("s_mul_i32 s%d, s%d, %d\nv_add_u32 v%d, s%d, v%d" % (sT, sLn, 64 * FW, vFl, sT, vFl))
    A("v_and_b32 v%d, 31, v0\nv_min_u32 v%d, 4, v%d\nv_lshlrev_b32 v%d, 8, v%d\ns_sub_u32 s%d, s%d, %d\nv_add_u32 v%d, s%d, v%d" % (vT0, vT0, vT0, vT0, vT0, sT, sFpb, FO, vT0, sT, vT0))
    A("v_lshrrev_b32 v%d, 5, v0\nv_cmp_eq_u32 vcc, s%d, v%d\nv_cndmask_b32 v%d, v%d, v%d, vcc\ns_not_b64 %s, vcc" % (vT1, sLn, vT1, vFl, vT0, vFl, s(sPr, 2)))
    wait_ready(A, vT0, opt, True); nearby(A, opt, lambda k, l: ('s', leaf_index(opt, min(l & 31, 4), k % 5)) if l >> 5 != min(k // 5, 1) else None, (sIdx, {k: WHERE[('s', 25 + k % 10)] >> 5 for k in range(15)}))
    A("s_add_u32 s%d, s%d, %d\ns_or_b32 s%d, s%d, s%d\ns_cselect_b32 s%d, 0x%x, s%d\ns_mov_b64 exec, 1\nv_mov_b32 v%d, %d" % (sT, sPw, 15 * FW, sT2, sLn, sW, sT, OOBS, sT, vT1, alt))
    A("buffer_store_dword v%d, off, %s, s%d sc1\nbuffer_store_dword v%d, off, %s, s%d offset:%d\ns_mov_b64 exec, -1" % (vT1, WS, sT, vT1, WS, sT, LOC))
    for l in ["s_mov_b32 s%d, %d" % (sK0, 5 << 17)] + side(sK0, sT): A(l)
    src = (OO, [(sK0, 1)])
    outs = ["s_add_u32 s%d, s%d, %d" % (sO[0], sRes, 64 * XT)] + lin(sO[1], 0, [(sC1, 1), (sSc, XT)], sT2) + ["s_mov_b32 s%d, s%d" % (sPF, sPw)]
    pl = lambda r: [ld(4, PL + 4 * k, vL16, r, 1024 * (k & 1)) + ("\ns_add_u32 s%d, s%d, %d" % (r, r, TILE) if k & 1 else "") for k in range(10)]
    extra = lin(sRes, 0, [(sC0, 1), (sSc, XT)], sT2) + [ld(4, RS, vL16, sRes), ld(4, RS + 4, vL16, sRes, 1024)] + lin(sPp, PP, [(sLc, LS['p']), (sCol, 2048)], sT2) + slot(sT2, sSc, None, 5 * TILE) + ["s_add_u32 s%d, s%d, s%d" % (sPp, sPp, sT2)]
    sPq, sFast = sFpb, sFpb + 1
    mid = ("v_cmp_ge_i32 vcc, s%d, v%d\ns_and_b64 vcc, vcc, %s\ns_cselect_b32 s%d, 0x%x, s%d\ns_cselect_b32 s%d, 0, 1" % (sSc, vF, s(sPr, 2), sPq, OOBS, sPp, sFast),
           [l.replace(' sc1', ' sc1 ; M') for l in pl(sPq)], sFast)
    def tail(A, Z, fl, n):
        again, chk, go, slow, sums = A.lab('fpagain'), A.lab('fpchk'), A.lab('fpgo'), A.lab('fpslow'), A.lab('fpsum')
        A("s_waitcnt vmcnt(%d)\n" % n('L') + mf(ACC, ID, RS, ACC) + "\ns_cmp_eq_u32 s%d, 0\ns_cbranch_scc1 %s\n" % (sFast, slow) + mf(ACC, ID + 4, RS + 4, ACC))
        for k in range(10): A("s_waitcnt vmcnt(%d)\n" % (n('M') + 9 - k) + mf(ACC, ID + 4 * (k & 1), PL + 4 * k, ACC))
        A(sums + ":")
        B = Z
        B(slow + ":\n" + mf(ACC, ID + 4, RS + 4, ACC))
        B(chk + ":\n" + fl.see(0) + "v_cmp_ge_i32 vcc, s%d, v%d\ns_and_b64 vcc, vcc, %s\ns_cbranch_vccnz %s\n%s:" % (sSc, vF, s(sPr, 2), again, go))
        for l in pl(sPp): B(l)
        for k in range(10): B("s_waitcnt vmcnt(%d)\n" % (9 - k) + mf(ACC, ID + 4 * (k & 1), PL + 4 * k, ACC))
        B("s_branch " + sums)
        B(again + ":\n" + fl.fload + "\ns_add_u32 s%d, s%d, 1\ns_cmp_lt_u32 s%d, %d\ns_cbranch_scc1 %s\ns_branch %s" % (sBu2, sBu2, sBu2, BUDGET, chk, go))
    nc = max(0, ndma - 16)
    A("v_add_u32 v%d, %d, v%d" % (vXr2, 8192 * (ndma - nc), vL16))
    xread = lambda k, d: ["ds_read_b128 %s, v%d offset:%d" % (v(d, 4), vXr2 if k < 4 * nc else vXr, (k if k < 4 * nc else k - 4 * nc) * 1024)]
    tight(A, opt, 'root', nk, W, ndma, opt.get('n1r', 6), nc, 'alt', src, FO, outs, lambda A, Z: [st(4, PK + 4 * i, vL16, sO[0], 1024 * i) for i in range(2)], extra, tail, opt.get('fr', (3, 42, 0, 16)), xread, mid)

def bo_role(A, opt, sIdx):
    sBase, sCol = sE + 4, sE + 3
    vS, vA, vB = EX, EX + 1, EX + 2
    A("L_role_bo:")
    hold(A, opt)
    A("v_lshlrev_b32 v%d, 4, v0" % vL16)
    A("v_lshrrev_b32 v%d, 4, v0\nv_mul_u32_u24 v%d, %d, v%d\nv_add_u32 v%d, v%d, v%d" % (vS, vS, 1280 - 256, vS, vS, vS, vL16))
    tr_addr(A, vA, 256, TAB_T); tr_addr(A, vB, 256, TAB_T, hi_rows=40)
    A("s_lshl_b32 s%d, s%d, 6\nv_add_u32 v%d, s%d, v%d\nv_add_u32 v%d, s%d, v%d\ns_lshl_b32 s%d, s%d, 8" % (sT, sW, vA, sT, vA, vB, sT, vB, sBase, sIdx))
    W = wreg(40)
    def reads(u, b):
        A("v_add_u32 v%d, %d, v%d\nv_add_u32 v%d, %d, v%d" % (EX + 3, b, vA, EX + 4, b, vB))
        for rd in range(2):
            for kk in range(4): A("ds_read_b64_tr_b16 %s, v%d offset:%d" % (R(W[4 * u + kk] + 2 * rd, 2), EX + 3, (20 * kk + 4 * rd) * 256))
            A("ds_read_b64_tr_b16 %s, v%d offset:%d" % (R(W[32 + u] + 2 * rd, 2), EX + 4, (20 * rd + 16) * 256))
    load_w(A, pBo, 640 * 640 * 2, sBase, vS, 4, 1280, 5, 8, 7, reads)
    common_init(A, 10, 8); rn_init(A)
    A("v_and_b32 v%d, 31, v0\nv_mul_u32_u24 v%d, 1280, v%d\nv_lshrrev_b32 v%d, 5, v0\nv_lshl_add_u32 v%d, v%d, 4, v%d" % (vSt2, vSt2, vSt2, vT0, vSt2, vT0, vSt2))
    A("v_and_b32 v%d, 0xf8, v%d\nv_lshrrev_b32 v%d, 5, v0\nv_lshl_add_u32 v%d, v%d, 9, v%d\nv_add_u32 v%d, 0x8000, v%d" % (vXr2, vL8, vT0, vXr2, vT0, vXr2, vXr2, vXr2))
    for l in lin(sCol, 0, [(sIdx, 4), (sW, 1)]): A(l)
    temp_srd(A, pOut, S * D * 2)
    wait_ready(A, vT0, opt, True); nearby(A, opt, lambda k, l: ('b', 8 * (l >> 5) + min(l & 31, 7)))
    def xread(k, d):
        if k < 32: return ["ds_read_b128 %s, v%d offset:%d" % (v(d, 4), vXr, k * 1024)]
        return ["ds_read_b64 %s, v%d offset:%d" % (v(d + 2 * h, 2), vXr2, (k - 32) * 1024 + 256 * h) for h in range(2)]
    src = (OB, [('L', 64 * TILE), ('S', TILE)]); two_streams(A, 8 * FW)
    outs = ["s_add_u32 s%d, s%d, %d" % (sO[0], sRes, 64 * XT)] + lin(sO[1], XS + 2 * 64 * XT + TILE, [(sIdx, 256), (sSc, XT)], sT2)
    outs += lin(sO[2], 0, [(sCol, 64), (sSc, TILE)], sT2) + lin(sPF, FX + 10 * FW, [(sIdx, FW)], sT2)
    outs += ["s_cmp_eq_u32 s%d, 0\n" % sLc + "\n".join("s_cselect_b32 s%d, s%d, 0x%x" % (r, r, OOBS) for r in (sO[1], sPF))]
    extra = [16] + lin(sRes, XS + 64 * XT, [(sLc, 2 * 64 * XT), (sSc, XT), (sCol, 2048)], sT2) + [ld(4, RS, vL16, sRes), ld(4, RS + 4, vL16, sRes, 1024)]
    extra[0] = 0
    def tail(A, Z, fl, n): A("s_waitcnt vmcnt(%d)\n" % n('L') + mf(ACC, ID, RS, ACC) + "\n" + mf(ACC, ID + 4, RS + 4, ACC))
    def head(A, Z):
        L = []
        for i in range(2):
            l1, l2 = A.lab('bofin'), A.lab('bojoin')
            L.append((2, "s_cmp_lg_u32 s%d, 0\ns_cbranch_scc1 %s\n%s\n%s:" % (sLc, l1, st(4, PK + 4 * i, vL16, sO[0], 1024 * i), l2)))
            Z(l1 + ":\n" + st(4, PK + 4 * i, vSt2, sO[2], 32 * i, TS, '') + "\ns_branch " + l2)
        return L + ['']
    A("s_mov_b32 s%d, 0" % sLn)
    tight(A, opt, 'bo', 40, W, 10, opt.get('n1o', 5), 0, opt.get('lead_b', 11), src, FB, outs, head, extra, tail, opt.get('fo', (3, 33, 0, 5)), xread)

def bq_role(A, opt, sIdx):
    sG, sBase, sHd, sCs = sE, sE + 4, sE + 1, sE + 2
    A("L_role_bq:\ns_cmp_ge_u32 s%d, %d\ns_cbranch_scc1 L_bq_np" % (sIdx, NPROBE))
    probe(A, opt, sIdx)
    A("L_bq_np:")
    hold(A, opt)
    A("s_lshr_b32 s%d, s%d, 3\ns_and_b32 s%d, s%d, 7\ns_mul_i32 s%d, s%d, 160\ns_lshl_b32 s%d, s%d, 2\ns_add_u32 s%d, s%d, s%d" % (sLn, sIdx, sG, sIdx, sBase, sG, sHd, sG, sHd, sHd, sW))
    A("v_lshlrev_b32 v%d, 4, v0" % vL16)
    vS, vA = EX, [EX + 1, EX + 2]
    A("v_and_b32 v%d, 31, v0\nv_mul_u32_u24 v%d, 26, v%d\nv_lshrrev_b32 v%d, 8, v%d\nv_mul_u32_u24 v%d, %d, v%d\nv_lshl_add_u32 v%d, v%d, 4, v%d" % (vT0, vT1, vT0, vT1, vT1, vS, 1280 - 160, vT1, vS, vT0, vS))
    A("v_lshrrev_b32 v%d, 5, v0\nv_mul_u32_u24 v%d, 3840, v%d\nv_add_u32 v%d, v%d, v%d" % (vT1, vT1, vT1, vS, vS, vT1))
    A("v_mov_b32 v%d, 0x%x\nv_cmp_gt_u32 vcc, 30, v%d\nv_cndmask_b32 v%d, v%d, v%d, vcc" % (vT1, OOBS, vT0, vS, vT1, vS))
    tabs = [[0, 1, 2, 3, 20, 21, 22, 23], [40, 42, 41, 43, 4, 44, 24, 60]]
    for t in range(2):
        tr_addr(A, vA[t], 512, tabs[t])
        A("s_mul_i32 s%d, s%d, 40\nv_mov_b32 v%d, s%d" % (sT, sW, vT0, sT))
        if t == 1: A("v_and_b32 v%d, 19, v0\nv_cmp_ne_u32 vcc, 19, v%d\nv_cndmask_b32 v%d, 0, v%d, vcc" % (vT1, vT1, vT0, vT0))
        A("v_add_u32 v%d, v%d, v%d" % (vA[t], vA[t], vT0))
    W = wreg(80)
    def reads(u, b):
        for t in range(2):
            A("v_add_u32 v%d, %d, v%d" % (EX + 3 + t, b, vA[t]))
            for kk in range(2):
                for rd in range(2): A("ds_read_b64_tr_b16 %s, v%d offset:%d" % (R(W[(2 * u + kk) * 2 + t] + 2 * rd, 2), EX + 3 + t, (16 * kk + 4 * rd) * 512))
    load_w(A, pBq, 640 * 1920 * 2, sBase, vS, 2, 3840, 4, 20, 9, reads)
    common_init(A, 11, 5)
    MR, KP, VP, MC, I1, I2, vSel, G, CS, VT, PE = 28, 74, 80, 84, 108, 112, 114, 116, 132, 172, 20
    VQ, SX = XF, VT
    PE = [20, 24, 164]
    for d in range(4): A("v_mov_b32 v%d, 0x3f803f80" % (XF + d))
    for k in range(40):
        for t in range(2): A(mf(CS + 16 * t, W[2 * k + t], XF, CS + 16 * t if k else None))
    A("v_and_b32 v%d, 0xf0, v%d\nv_bfe_u32 v%d, v0, 4, 1\nv_lshl_add_u32 v%d, v%d, 3, v%d\nv_add_u32 v%d, %d, v%d" % (vXr2, vL16, vT0, vXr2, vT0, vXr2, vXr2, TILE, vXr2))
    ident(A, I1, 0)
    A("v_and_b32 v%d, 1, v0\nv_lshlrev_b32 v%d, 4, v%d\nv_mov_b32 v%d, 0x3f80\nv_lshlrev_b32 v%d, v%d, v%d\nv_lshrrev_b32 v%d, 1, v0" % (vT0, vT0, vT0, vT1, vT1, vT0, vT1, vT0))
    for d in range(2): A("v_cmp_eq_u32 vcc, %d, v%d\nv_cndmask_b32 v%d, 0, v%d, vcc" % (24 + d, vT0, I2 + d, vT1))
    A("v_and_b32 v%d, 31, v0\nv_lshrrev_b32 v%d, 5, v0\nv_lshlrev_b32 v%d, 2, v%d\nv_sub_u32 v%d, v%d, v%d\nv_mov_b32 v%d, 0xff800000" % (vT0, vT1, vT1, vT1, vT0, vT0, vT1, G))
    for r in range(24):
        key = 8 * (r >> 2) + (r & 3) if r < 16 else 8 * ((r - 8) >> 2) + (r & 3) - 32
        A("v_subrev_u32 v%d, %d, v%d\nv_and_b32 v%d, 0xfffffff1, v%d\nv_cmp_ne_u32 vcc, 0, v%d\nv_cndmask_b32 v%d, 0, v%d, vcc" % (vT1, key, vT0, vT1, vT1, vT1, MC + r if r < 16 else MR + r - 16, G))
    for r in range(8): A("v_mov_b32 v%d, 0xff800000" % (MC + 16 + r))
    for r in range(10): A("v_mov_b32 v%d, 0" % (KP + r))
    A("v_and_b32 v%d, 1, v0\nv_cmp_eq_u32 vcc, 0, v%d" % (vT0, vT0))
    for d, (ev, od) in enumerate(((0x0c0c0100, 0x01000c0c), (0x0c0c0302, 0x03020c0c))):
        A("v_mov_b32 v%d, 0x%x\nv_mov_b32 v%d, 0x%x\nv_cndmask_b32 v%d, v%d, v%d, vcc" % (vT0, ev, vT1, od, vSel + d, vT1, vT0))
    A("v_mov_b32 v%d, 0x%x\nv_cmp_gt_u32 vcc, 32, v0\nv_cndmask_b32 v%d, v%d, v%d, vcc" % (vT0, OOBS, vSt, vT0, vL8))
    A("s_mov_b32 s%d, 0x%x" % (sCs, f32(20 ** -0.5 * math.log2(math.e))))
    A("s_mul_i32 s%d, s%d, 5\ns_add_u32 s%d, s%d, 4\nv_and_b32 v%d, 31, v0\nv_min_u32 v%d, s%d, v%d\nv_lshlrev_b32 v%d, 8, v%d" % (sT, sLn, sT, sT, vFl, vFl, sT, vFl, vFl, vFl))
    A("s_mul_i32 s%d, s%d, %d\nv_add_u32 v%d, s%d, v%d" % (sT, sLn, 2 * 5 * FW, vFl, sT, vFl))
    wait_ready(A, vT0, opt, True); nearby(A, opt, lambda k, l: ('s', 25 + (5 + min(l & 31, 9)) % 10 if k >> 3 else 25 + min(l & 31, 4)), (sIdx, {k: WHERE[('b', k)] >> 5 for k in range(16)}))
    src = (XS + 64 * XT, [('L', 2 * 64 * XT), ('S', XT)])
    outs = lin(sO[0], OB, [(sLc, 64 * TILE), (sSc, TILE)], sT2) + lin(sO[1], 32768, [(sO[0], 1), (sHd, 256)], sT2)
    outs += ["s_lshl_b32 s%d, s%d, 10\ns_add_u32 s%d, s%d, s%d" % (sT2, sHd, sO[0], sO[0], sT2)] + lin(sPF, FB, [(sLc, 8 * FW), (sG, FW)], sT2)
    stats = [(lambda Q, p=p: Q.op('st', "ds_read_b64 %s, v%d offset:%d" % (v(SX + 2 * p, 2), vXr2, 256 * p))) for p in range(5)]
    stats += ["s_nop 0"] * 3 + [lambda Q: Q.wait('st') or "s_nop 0"] + row_stats(SX, 2)
    def tail(A, Z, fl, n):
        Q1, K1, V1, Q2, K2 = G, G + 4, G + 8, G + 12, G + 14
        Sc, Sp = ACC, ACC + 16
        for i in range(16):
            a = ACC + 2 * i
            A("v_pk_fma_f32 %s, %s, %s, %s op_sel_hi:[1,0,1]" % (v(a, 2), v(CS + 2 * i, 2), v(SX, 2), v(a, 2)))
            A("v_pk_mul_f32 %s, %s, %s op_sel:[0,1] op_sel_hi:[1,1]\n" % (v(a, 2), v(a, 2), v(SX, 2)) + cvt(G + i, a, a + 1))
        A(mf(Sc, K1, Q1, MC) + "\n" + mf(Sp, KP, Q1, MC + 8) + "\n" + mf(VT, V1, I1))
        A(mf8(Sc, K2, Q2, Sc) + "\n" + mf8(Sp, KP + 4, Q2, Sp))
        for i in range(4): A("v_mov_b32 v%d, v%d" % (KP + i, K1 + i))
        A(mf8(VT, Q2, I2, VT))
        for i in range(2): A("v_mov_b32 v%d, v%d" % (KP + 4 + i, K2 + i))
        E = G
        for i in range(8): A("v_max_f32 v%d, v%d, v%d" % (E + i, Sc + 2 * i, Sc + 2 * i + 1))
        for i in range(4): A("v_max_f32 v%d, v%d, v%d" % (E + 8 + i, Sp + 8 + 2 * i, Sp + 9 + 2 * i))
        A("v_max3_f32 v%d, v%d, v%d, v%d" % (vT0, E, E + 1, E + 2))
        for i in range(3, 11, 2): A("v_max3_f32 v%d, v%d, v%d, v%d" % (vT0, vT0, E + i, E + i + 1))
        A("v_max_f32 v%d, v%d, v%d" % (vT0, vT0, E + 11))
        halves(A, "v_max_f32", vT0, vT1)
        A("v_mul_f32 v%d, s%d, v%d" % (vT0, sCs, vT0))
        for i in range(12): A("v_fma_f32 v%d, v%d, s%d, -v%d" % (E + i, E + i, sCs, vT0))
        for i in range(12): A("v_exp_f32 v%d, v%d" % (E + i, E + i))
        for i in range(8): A(cvt(VQ + i, VT + 2 * i, VT + 2 * i + 1))
        for i in range(6):
            A(cvt(vT0, E + 2 * i, E + 2 * i + 1) + "\nv_perm_b32 v%d, v%d, v%d, v%d\nv_perm_b32 v%d, v%d, v%d, v%d" % (PE[i >> 1] + 2 * (i & 1), vT0, vT0, vSel, PE[i >> 1] + 2 * (i & 1) + 1, vT0, vT0, vSel + 1))
        O = ACC
        sm = ["v_add_f32 v%d, v%d, v%d" % (vT0, E, E + 1)] + ["v_add_f32 v%d, v%d, v%d" % (vT0, vT0, E + i) for i in range(2, 12)]
        for l in interleave([mf(O, VQ, PE[0]), mf(O, VQ + 4, PE[1], O), mf(O, VP, PE[2], O)], sm, per=5): A(l)
        halves(A, "v_add_f32", vT0, vT1)
        A("v_rcp_f32 v%d, v%d" % (vT0, vT0))
        for i in range(4): A("v_mov_b32 v%d, v%d" % (VP + i, VQ + 4 + i))
        for r in range(8): A("v_mov_b32 v%d, v%d" % (MC + 16 + r, MR + r))
        for i in range(6):
            A("v_mul_f32 v%d, v%d, v%d\nv_mul_f32 v%d, v%d, v%d\n" % (O + 2 * i, O + 2 * i, vT0, O + 2 * i + 1, O + 2 * i + 1, vT0) + cvt(PK + i, O + 2 * i, O + 2 * i + 1))
    skeleton(A, opt, 'bq', 40, 2, W, 11, opt.get('n1b', 4), None, src, FX + 5 * FW, outs, [st(4, PK, vL16, sO[0]), st(2, PK + 4, vSt, sO[1])], tail, opt.get('fb', (44, 66, 28, 81)), late=(34, stats))

def ln0_role(A, opt, sIdx):
    sS, sA, sB, sF = sE, sE + 1, sE + 2, sE + 3
    vA, vB, vP, vK, D0, X, P = 12, 13, 14, 15, [16, 56], 96, 100
    A("L_role_ln0:")
    A("v_and_b32 v%d, 7, v0\nv_lshrrev_b32 v%d, 3, v0\nv_mul_u32_u24 v%d, 1280, v%d\nv_lshl_add_u32 v%d, v%d, 4, v%d" % (vT0, vT1, vA, vT0, vA, vT1, vA))
    A("v_lshlrev_b32 v%d, 4, v%d\nv_lshl_add_u32 v%d, v%d, 9, v%d" % (vB, vT0, vB, vT1, vB))
    A("v_and_b32 v%d, 15, v0\nv_lshlrev_b32 v%d, 4, v%d\nv_bfe_u32 v%d, v0, 4, 1\nv_lshl_add_u32 v%d, v%d, 3, v%d" % (vP, vP, vP, vT0, vP, vT0, vP))
    A("s_lshl_b32 s%d, s%d, 8\nv_mov_b32 v%d, s%d\nv_mov_b32 v%d, 1024\nv_cmp_gt_u32 vcc, 32, v0\nv_cndmask_b32 v%d, v%d, v%d, vcc\nv_add_u32 v%d, v%d, v%d" % (sT, sW, vT0, sT, vK, vT0, vK, vT0, vP, vP, vT0))
    A("v_cmp_eq_u32 s[96:97], s%d, v%d" % (sW, vT1))
    A("s_sub_u32 s%d, s%d, 5" % (sS, sIdx))
    for l in lin(sF, FX, [(sS, FW)]): A(l)
    A("s_cmp_eq_u32 s%d, 0\ns_cselect_b32 s%d, s%d, 0x%x" % (sW, sF, sF, OOBS))
    temp_srd(A, pX, S * D * 2)
    loads = lambda d: lin(sA, 0, [(sS, TILE), (sW, 8 * 1280)]) + [ld(4, d + 4 * i, vA, sA, 128 * i, TS, '') for i in range(10)]
    A("s_mov_b64 exec, 1\nv_mov_b32 v%d, -1\nbuffer_store_dword v%d, off, %s, s%d sc1\nbuffer_store_dword v%d, off, %s, s%d offset:%d sc1\ns_mov_b64 exec, -1" % (vT1, vT1, WS, sF, vT1, WS, sF, LOC))
    for l in loads(D0[0]): A(l)
    signal_ready(A, vT0)
    A("L_ln0_top:")
    for h in range(2):
        d = D0[h]
        for l in lin(sB, XS, [(sS, XT), (sW, 128)]): A(l)
        for i in range(10): A(st(4, d + 4 * i, vB, sB) + "\ns_add_u32 s%d, s%d, 4096" % (sB, sB))
        A("s_add_u32 s%d, s%d, 5" % (sS, sS))
        for l in loads(D0[1 - h]): A(l)
        for i in range(40):
            A("v_lshlrev_b32 v%d, 16, v%d\nv_and_b32 v%d, 0xffff0000, v%d" % (X, d + i, X + 1, d + i))
            if i == 0: A("v_pk_mul_f32 %s, %s, %s\nv_mov_b32 v%d, v%d\nv_mov_b32 v%d, v%d" % (v(P + 2, 2), v(X, 2), v(X, 2), P, X, P + 1, X + 1))
            else: A("v_pk_add_f32 %s, %s, %s\nv_pk_fma_f32 %s, %s, %s, %s" % (v(P, 2), v(P, 2), v(X, 2), v(P + 2, 2), v(X, 2), v(X, 2), v(P + 2, 2)))
        A("v_add_f32 v%d, v%d, v%d\nv_add_f32 v%d, v%d, v%d" % (P, P, P + 1, P + 1, P + 2, P + 3))
        for t in (P, P + 1):
            A("v_add_f32_dpp v%d, v%d, v%d row_ror:8 row_mask:0xf bank_mask:0xf" % (t, t, t))
            A("v_mov_b32 v%d, v%d\nv_permlane16_swap_b32 v%d, v%d\nv_add_f32 v%d, v%d, v%d" % (vT1, t, t, vT1, t, t, vT1))
            halves(A, "v_add_f32", t, vT1)
            A("v_cndmask_b32 v%d, 0, v%d, s[96:97]" % (t, t))
        A("s_lshl_b32 s%d, s%d, 7\ns_sub_u32 s%d, s%d, s%d\n" % (sT, sW, sB, sB, sT) + st(2, P, vP, sB))
        A("s_waitcnt vmcnt(0)\ns_barrier\ns_mov_b64 exec, 1\nv_mov_b32 v%d, s%d\nbuffer_store_dword v%d, off, %s, s%d sc1\nbuffer_store_dword v%d, off, %s, s%d offset:%d\ns_mov_b64 exec, -1" % (vT1, sS, vT1, WS, sF, vT1, WS, sF, LOC))
        if opt.get('lstamp'): A("s_memrealtime s[98:99]\ns_sub_u32 m0, s%d, 5\ns_waitcnt lgkmcnt(0)\nv_writelane_b32 v11, s98, m0" % sS)
        A("s_cmp_ge_u32 s%d, 64\ns_cbranch_scc1 L_ln0_done" % sS)
    A("s_branch L_ln0_top\nL_ln0_done:")
    if opt.get('lstamp'):
        A("v_lshlrev_b32 v%d, 4, v0" % vL16); ldump(A, vT0, vL16, 11, None, 262144)
    A("s_branch L_role_root")
```

```python
S, D, H, E, SEG, NSEG, M = 2048, 640, 32, 192, 32, 64, 8
TILE = 40960
HA_W = 2560
LOC = 128
FW = 256
FX = 0
SYNC0 = 5 * FW
FQ = FX + 5 * 5 * FW
FO = FQ + 3 * 72 * FW
FP = FO + 2 * 64 * FW
FB = FP + 2 * 25 * FW
HA = -(-(FB + 2 * 8 * FW) // 4096) * 4096
HA_LAYER = 64 * 4 * HA_W
HB = HA + 2 * HA_LAYER
HB_X = 40 * 4096
HL = HB + 2 * 2 * HB_X
HC = -(-(HL + 4 * 10240) // 524288) * 524288
HC_STEP = 131072
HC_FILL = 1
NFILL = 35
SYNC_PER_WG = 65536
NFILL2 = 2
SYNC_SIZE = HC + 4 * HC_STEP
assert HC >= SYNC0 + SYNC_PER_WG * (NFILL - NFILL2) >= HL + 4 * 10240 and 3 * HC_STEP >= SYNC_PER_WG * NFILL2 >= HC_FILL * HC_STEP
XT = 45056
XS = SYNC_SIZE
def spread(x): return x + (x & ~8191)
QKV = -(-(XS + 4 * 64 * XT) // 1048576) * 1048576
QKV_HEAD = 3 * 12288
QKV_SEG = 32 * QKV_HEAD
OO = QKV + 2 * 64 * QKV_SEG
O_SEG = 524288
PP = OO + 2 * 64 * O_SEG
OB = PP + 2 * 64 * 5 * TILE
DBGW = OB + 2 * 64 * TILE
WS_END = DBGW + (1 << 20)
WS_SIZE = 268435456
assert OO % 1048576 == 0
assert WS_END <= WS_SIZE, WS_END
PB = [0, 64, 96, 160]
SB = [32, 48, 128, 144]
KLEAF, KROOT = 960, 1344
if __name__ == '__main__':
    print(SYNC_PER_WG, SYNC_SIZE, WS_END)
```

```python
from common import *

L_M, L_O, L_SPM, L_SPT, L_WV = 0, 5120, 11264, 12544, 40960
SPM_W = SPT_W = 5632
L_OT = 15104
L_P = 33792
SLOT = 24576
vIdx, vL16, vL8 = 1, 2, 3
vSel2, vTm, vTe, vSelR, vOne, vSelT = 4, 6, 7, 8, 12, 18
vZ, vZ1, vMr, vMw, vMw1, vFlag, vQ32, vQ16, vOw4, vOw2, vSt16, vSm4, vSt8, vL4, vWv, vT0, vT1, vT2 = range(22, 40)
vSm16 = vSt16
vFlag0 = 127
KX, VX, QX = 40, 52, 64
MF, AQ, AV, WSG = 72, 92, 116, 128
WO_V0 = 152
SEQ = [(m, i, t) for i in range(3) for m in 'qk' for t in range(5)] + [('v', i, t) for i in range(3) for t in range(5)]
WREG = {}; WLDS = {}
def place(LPOS):
    WREG.clear(); WLDS.clear(); ALL = SEQ + [('o', i, t) for i in range(5) for t in range(3)]; assert len(LPOS) == 15
    for k, o in enumerate([o for p, o in enumerate(ALL) if p not in LPOS]):
        WREG[o] = 256 + 8 * k if k < 32 else WO_V0 + 8 * (k - 32)
    for k, p in enumerate(LPOS): WLDS[ALL[p]] = k
sL, sX, sJ, sH, sStep = 42, 43, 44, 45, 46
sHAo, sHAp, sTag, sHBq, sClr, sHBr, sJo = 47, 48, 49, 50, 51, 52, 53
sHd, sHCl, sHCx = 54, 56, 57
sK32, sK16, sQ32, sQ16, sVp, sVs, sFQ, sO32, sO16, sFO, sRed = 58, 59, 60, 61, 62, 63, 64, 65, 66, 67, 68
sC, sNeg, sT, sT2, sPBc, sSBc, sFs, sTS = 69, 70, 71, 72, 73, 74, 76, 78
sMask = 80
sLive, sHLr, sHCr = 75, 79, 77
LIN = dict(zip((sK32, sK16, sQ32, sQ16, sVp, sVs, sO32, sO16), range(20, 28)))
sRm, sPl = 93, 3
sEv = 98
sQm = 100

def smf(d, a, b): return "v_smfmac_f32_16x16x64_bf16 %s, %s, %s, v%d" % (v(d, 4), v(a, 4), R(b, 8), vIdx)
def mf32(d, a, b, c=None): return "v_mfma_f32_16x16x32_bf16 %s, %s, %s, %s" % (v(d, 4), v(a, 4), v(b, 4), "0" if c is None else v(c, 4))
def mf16(d, a, b, c=None): return "v_mfma_f32_16x16x16_bf16 %s, %s, %s, %s" % (v(d, 4), v(a, 2), v(b, 2), "0" if c is None else v(c, 4))
def cvt(d, a, b): return "v_cvt_pk_bf16_f32 v%d, v%d, v%d" % (d, a, b)
def ld(n, d, va, so, off=0, fl='sc1'):
    return "buffer_load_dword%s %s, v%d, %s, s%d offen offset:%d %s" % ({1: '', 2: 'x2', 4: 'x4'}[n], v(d, n), va, WS, so, off, fl)
def st(n, d, va, so, off=0, fl=''):
    return "buffer_store_dword%s %s, v%d, %s, s%d offen offset:%d %s" % ({1: '', 2: 'x2', 4: 'x4'}[n], v(d, n), va, WS, so, off, fl)

def load_weights(A, opt):
    load_setup(A, opt)
    if opt.get('rev'):
        A("s_cmp_eq_u32 s%d, 1\ns_cbranch_scc1 L_rec_ldrev" % sL)
        load_units(A, opt, 0); A("s_branch L_rec_ldone\nL_rec_ldrev:"); load_units(A, opt, 1); A("L_rec_ldone:")
    else: load_units(A, opt, 0)
vA = [140, 141, 142]; vB = [143, 144, 145, 146, 147]; vTP, vTS, vTO, va, vb = 148, 149, 150, 151, 139
sA, sB, sM6, sM5 = 80, 81, 82, 83
def load_setup(A, opt):
    for i in range(3):
        A("v_add_u32 v%d, %d, v%d" % (va, 1024 * i, vL16)); udiv(A, vb, va, 384, sT)
        A("v_mul_u32_u24 v%d, %d, v%d\nv_add_u32 v%d, v%d, v%d" % (vA[i], 12288 - 384, vb, vA[i], vA[i], va))
    for i in range(5):
        A("v_add_u32 v%d, %d, v%d" % (va, 1024 * i, vL16)); udiv(A, vb, va, 640, sT)
        A("v_mul_u32_u24 v%d, %d, v%d\nv_add_u32 v%d, v%d, v%d" % (vB[i], 640, vb, vB[i], vB[i], va))
    A("v_lshrrev_b32 v%d, 5, v0\nv_lshlrev_b32 v%d, 4, v%d" % (va, va, va))
    A("v_bfe_u32 v%d, v0, 4, 1\nv_lshl_add_u32 v%d, v%d, 2, v%d" % (vb, va, vb, va))
    A("v_bfe_u32 v%d, v0, 2, 1\nv_add_u32 v%d, v%d, v%d" % (vb, va, va, vb))
    A("v_bfe_u32 v%d, v0, 3, 1\nv_lshl_add_u32 v%d, v%d, 3, v%d" % (vb, va, vb, va))
    A("v_and_b32 v%d, 3, v0" % vb)
    A("v_mul_u32_u24 v%d, 384, v%d\nv_mul_u32_u24 v%d, 640, v%d" % (vTP, va, vTO, va))
    A("v_lshl_add_u32 v%d, v%d, 3, v%d\nv_lshl_add_u32 v%d, v%d, 4, v%d\nv_lshl_add_u32 v%d, v%d, 3, v%d" % (vTS, vb, vTP, vTP, vb, vTP, vTO, vb, vTO))
    A("s_lshl_b32 s%d, s%d, 4\nv_add_u32 v%d, s%d, v%d" % (sT, sPBc, vTP, sT, vTP))
    A("s_lshl_b32 s%d, s%d, 4\nv_add_u32 v%d, s%d, v%d" % (sT, sSBc, vTS, sT, vTS))
    A("s_mul_i32 s%d, s%d, 160\nv_add_u32 v%d, s%d, v%d" % (sT, sW, vTO, sT, vTO))
    A("s_mul_i32 s%d, s%d, %d\ns_mul_i32 s%d, s%d, 384\ns_add_u32 s%d, s%d, s%d" % (sA, sJ, 320 * 12288, sT, sH, sA, sA, sT))
    A("s_mul_i32 s%d, s%d, %d\ns_add_u32 s%d, s%d, s%d" % (sT, sW, 16 * 12288, sA, sA, sT))
    A("s_mul_i32 s%d, s%d, %d\ns_mul_i32 s%d, s%d, 640\ns_add_u32 s%d, s%d, s%d" % (sB, sH, 192 * 1280, sT, sJo, sB, sB, sT))
    A("s_mul_i32 s%d, s%d, %d\ns_add_u32 s%d, s%d, s%d" % (sT, sW, 8 * 1280, sB, sB, sT))
    A("s_mul_i32 s%d, s%d, 6144\ns_mul_i32 s%d, s%d, 5120" % (sM6, sW, sM5, sW))
def load_units(A, opt, rev):
    units = [('q', t) for t in range(5)] + [('k', t) for t in range(5)] + [('o', t) for t in range(6)] + [('v', t) for t in range(5)]
    if opt.get('uorder'): units = [units[i] for i in opt['uorder']]
    if rev: units = units[::-1]
    ptr = {'q': pWq, 'k': pWk, 'v': pWv, 'o': pWo}
    VT = 8
    cur = [None]
    def issue(u):
        m, t = units[u]; slot = u % 6
        if cur[0] != m: temp_srd(A, ptr[m], 640 * 6144 * 2); cur[0] = m
        n = 5 if m == 'o' else 6
        for i in range(n):
            if m == 'o': so, vo = 32 * t * 1280, vB[i]
            else: so, vo = (64 * t + 8 * (i // 3)) * 12288, vA[i % 3]
            A("s_add_u32 m0, s%d, %d\ns_add_u32 s%d, s%d, %d" % (sM5 if m == 'o' else sM6, slot * SLOT + 1024 * i, sT, sB if m == 'o' else sA, so))
            A("buffer_load_dwordx4 v%d, %s, s%d offen %s lds" % (vo, TS, sT, opt.get('wfl', '')))
        return n
    cnt = [issue(u) for u in range(5)]
    for u, (m, t) in enumerate(units):
        A("s_waitcnt vmcnt(%d) lgkmcnt(0)\ns_barrier" % sum(cnt[u + 1:]))
        if u + 5 < len(units): cnt.append(issue(u + 5))
        if u == len(units) - 2: peek_ready(A, 128)
        if u == len(units) - 1: peek_take(A, 128)
        base = (u % 6) * SLOT
        if m == 'o':
            A("v_add_u32 v%d, %d, v%d" % (va, base, vTO))
            for i in range(5):
                for rd in range(2):
                    A("ds_read_b64_tr_b16 %s, v%d offset:%d" % (R((VT + WLDS[('o', i, t // 2)] * 8 if ('o', i, t // 2) in WLDS else WREG[('o', i, t // 2)]) + 4 * (t & 1) + 2 * rd, 2), va, 2 * rd * 640 + 32 * i))
        else:
            A("v_add_u32 v%d, %d, v%d\nv_add_u32 v%d, %d, v%d" % (va, base, vTP, vb, base, vTS))
            for i in range(3):
                d = VT + WLDS[(m, i, t)] * 8 if (m, i, t) in WLDS else WREG[(m, i, t)]
                for hf in range(2):
                    for rd in range(2):
                        A("ds_read_b64_tr_b16 %s, v%d offset:%d" % (R(d + 4 * hf + 2 * rd, 2), vb if i == 2 else va, (32 * hf + 2 * rd) * 384 + (8 if i == 1 else 0)))
    A("s_waitcnt lgkmcnt(0)\ns_barrier")
    A("s_mul_i32 s%d, s%d, 30720\ns_add_u32 s%d, s%d, %d\nv_add_u32 v%d, s%d, v%d" % (sT, sW, sT, sT, L_WV, va, sT, vL16))
    for k in range(30): A("ds_write_b128 v%d, %s offset:%d" % (va, v(VT + 4 * k, 4), k * 1024))
    A("s_waitcnt lgkmcnt(0)")

def consts(A, opt):
    n, g, t, u, g0, g1, n16, n7, nh, rw = range(128, 138)
    def fld(d, src, lo, w): A("v_bfe_u32 v%d, v%d, %d, %d" % (d, src, lo, w))
    def mad(d, a, sh, b): A("v_lshl_add_u32 v%d, v%d, %d, v%d" % (d, a, sh, b))
    def sadd(d, expr_s): A("v_add_u32 v%d, s%d, v%d" % (d, expr_s, d))
    fld(n, 0, 0, 4); fld(g, 0, 4, 2); fld(g0, 0, 4, 1); fld(g1, 0, 5, 1); fld(nh, 0, 3, 1)
    A("v_lshlrev_b32 v%d, 4, v%d\nv_and_b32 v%d, 0x70, v%d" % (n16, n, n7, n16))
    fld(t, 0, 1, 1)
    A("v_mov_b32 v%d, 0x4444\nv_mov_b32 v%d, 0xeeee\nv_cmp_eq_u32 vcc, 0, v%d\nv_cndmask_b32 v%d, v%d, v%d, vcc" % (vT0, vT1, t, vIdx, vT1, vT0))
    A("v_and_b32 v%d, 1, v%d\nv_lshlrev_b32 v%d, 4, v%d\nv_mov_b32 v%d, 0x3f80\nv_lshlrev_b32 v%d, v%d, v%d" % (t, n, t, t, u, u, t, u))
    A("v_and_b32 v%d, 4, v%d\nv_lshlrev_b32 v%d, 2, v%d\nv_mov_b32 v%d, 0x3f80\nv_lshlrev_b32 v%d, v%d, v%d\nv_and_b32 v%d, 3, v%d" % (t, n, t, t, rw, rw, t, rw, t, n))
    for d in range(4): A("v_cmp_eq_u32 vcc, %d, v%d\nv_cndmask_b32 v%d, 0, v%d, vcc" % (d, t, vSelR + d, rw))
    A("v_cmp_eq_u32 vcc, 0, v%d\nv_cndmask_b32 v%d, 0, 1, vcc" % (t, vTm))
    A("v_and_b32 v%d, 1, v%d\nv_xor_b32 v%d, 1, v%d" % (vTe, n, vTe, vTe))
    fld(vT0, n, 2, 2); fld(vT1, n, 1, 1)
    A("v_cmp_eq_u32 vcc, v%d, v%d\nv_cndmask_b32 v%d, 0, v%d, vcc" % (vT0, g, u, u))
    A("v_mov_b32 v%d, v%d\nv_mov_b32 v%d, v%d" % (vSel2, u, vSel2 + 1, u))
    for d in range(2): A("v_cmp_eq_u32 vcc, %d, v%d\nv_cndmask_b32 v%d, 0, v%d, vcc" % (1 - d, vT1, vSelT + d, u))
    A("v_mov_b32 v%d, v%d\nv_mov_b32 v%d, v%d" % (vSelT + 2, vSelT, vSelT + 3, vSelT + 1))
    A("s_mov_b32 s%d, 0xcccccccc\ns_mov_b32 s%d, 0xcccccccc" % (sQm, sQm + 1))
    for d in range(5): A("v_mov_b32 v%d, 0x3f803f80" % (vOne + d))
    A("v_mov_b32 v%d, 0\nv_mov_b32 v%d, 0\nv_mov_b32 v%d, 0" % (vOne + 5, vZ, vZ1))
    mad(vQ16, g0, 3, n16); mad(vQ32, g, 9, n16); mad(vQ16, g1, 9, vQ16)
    A("v_lshlrev_b32 v%d, 3, v%d" % (u, g0)); mad(u, g1, 5, u)
    A("v_and_b32 v%d, 1, v%d\nv_lshlrev_b32 v%d, 7, v%d" % (t, n, vMr, t)); fld(rw, n, 1, 3); mad(vMr, rw, 4, vMr); mad(vMr, g, 8, vMr)
    A("s_mul_i32 s%d, s%d, 1280\nv_add_u32 v%d, s%d, v%d\nv_lshlrev_b32 v%d, 2, v0\nv_add_u32 v%d, s%d, v%d" % (sT, sW, vMw, sT, vL16, vMw1, vMw1, sT, vMw1))
    A("v_xor_b32 v%d, 1, v%d\nv_mul_u32_u24 v%d, 3072, v%d\nv_and_b32 v%d, 0xd0, v%d\nv_add_u32 v%d, v%d, v%d" % (t, vT1, t, t, rw, n16, t, t, rw))
    A("v_add_u32 v%d, v%d, v%d\ns_lshl_b32 s%d, s%d, 7\ns_add_u32 s%d, s%d, %d" % (vOw2, t, u, sT, sSBc, sT, sT, L_O)); sadd(vOw2, sT)
    mad(vOw4, g0, 5, t); mad(vOw4, g1, 8, vOw4)
    A("s_lshl_b32 s%d, s%d, 7\ns_add_u32 s%d, s%d, %d" % (sT, sPBc, sT, sT, L_O)); sadd(vOw4, sT)
    A("v_lshlrev_b32 v%d, 2, v0" % vL4)
    A("s_mul_i32 s%d, s%d, %d\nv_add_u32 v%d, s%d, v%d\nv_add_u32 v%d, s%d, v%d" % (sT, sW, SPM_W, vSm16, sT, vL16, vSm4, sT, vL4))
    A("s_mul_i32 s%d, s%d, %d\nv_add_u32 v%d, s%d, v%d\nv_add_u32 v%d, s%d, v%d" % (sT, sW, SPT_W, vSt16, sT, vL16, vSt8, sT, vL8))
    A("s_mul_i32 s%d, s%d, 30720\ns_add_u32 s%d, s%d, %d\nv_add_u32 v%d, s%d, v%d" % (sT, sW, sT, sT, L_WV, vWv, sT, vL16))
    A("v_min_u32 v%d, 8, v%d\nv_mul_u32_u24 v%d, 86, v%d\nv_lshrrev_b32 v%d, 8, v%d\nv_mul_u32_u24 v%d, 93, v%d\ns_mul_i32 s%d, s%d, 3" % (vFlag0, n, t, vFlag0, t, t, t, t, sT, sH))
    A("v_add3_u32 v%d, v%d, v%d, s%d\nv_lshrrev_b32 v%d, 2, v%d\nv_lshlrev_b32 v%d, 8, v%d" % (vFlag0, vFlag0, t, sT, vFlag0, vFlag0, vFlag0, vFlag0))
    if True:
        l = A.lab('nosel')
        A("s_and_b32 s%d, s%d, 1\ns_lshl_b32 s%d, s%d, 3\nv_and_b32 v%d, 7, v%d\nv_add_u32 v%d, s%d, v%d" % (sT, sW, sT, sT, n, n, n, sT, n))
        A("s_cmp_lt_u32 s%d, 2\ns_cbranch_scc1 %s" % (sW, l))
        mad(t, g, 4, n)
        A("v_lshlrev_b32 v%d, 4, v%d" % (vSelR, t)); mad(vSelR + 2, nh, 3, vSelR); mad(vSelR, nh, 10, vSelR)
        A("v_lshrrev_b32 v%d, 1, v%d\nv_lshrrev_b32 v%d, 2, v%d" % (vSelR + 1, vSelR + 2, vSelR + 3, vSelR + 2))
        A(l + ":")
        A("v_lshlrev_b32 v%d, 2, v%d" % (t, g)); mad(t, nh, 4, t)
    A("s_lshl_b32 s%d, s%d, 4\nv_add_u32 v%d, s%d, v%d\nv_sub_u32 v%d, v%d, v%d" % (sT, sJ, n, sT, n, n, n, t))
    for b in range(4): A("v_cmp_le_i32 %s, %d, v%d" % (s(sMask + 2 * b, 2), b, n))
    import math, struct
    c = struct.unpack('<I', struct.pack('<f', 192 ** -0.5 * math.log2(math.e)))[0]
    A("s_mov_b32 s%d, 0x%x\ns_mov_b32 s%d, 0xff800000" % (sC, c, sNeg))

def pkadd(d, a, b): return "v_pk_add_f32 %s, %s, %s" % (v(d, 2), v(a, 2), v(b, 2))
def tagit(d): return "v_bfi_b32 v%d, 1, s%d, v%d" % (d, sTag, d)
def tagcheck(rl, t, fixed0=False, one='1'):
    rl = list(rl); L = []
    if fixed0:
        L.append("v_or3_b32 v%d, v%d, v%d, v%d" % (t, rl[0], rl[1], rl[2])); rl = rl[3:]
        while len(rl) > 1: L.append("v_or3_b32 v%d, v%d, v%d, v%d" % (t, t, rl[0], rl[1])); rl = rl[2:]
        if rl: L.append("v_or_b32 v%d, v%d, v%d" % (t, t, rl[0]))
    elif len(rl) == 1: L.append("v_xor_b32 v%d, s%d, v%d" % (t, sTag, rl[0]))
    else:
        L.append("v_bitop3_b32 v%d, v%d, v%d, s%d bitop3:0x7e" % (t, rl[0], rl[1], sTag))
        for r in rl[2:]: L.append("v_bitop3_b32 v%d, v%d, v%d, s%d bitop3:0xf6" % (t, t, r, sTag))
    return L + ["v_and_b32 v%d, %s, v%d" % (t, one, t), "v_cmp_ne_u32 vcc, 0, v%d" % t]
def xgroup(A, op, t0, t1):
    A("v_permlane32_swap_b32 v%d, v%d\n%s v%d, v%d, v%d\nv_mov_b32 v%d, v%d" % (t0, t1, op, t0, t0, t1, t1, t0))
    A("v_permlane16_swap_b32 v%d, v%d\n%s v%d, v%d, v%d" % (t0, t1, op, t0, t0, t1))

LITE = [16, 18, 28, 30, 32, 34, 36, 40, 94, 96]
def stamp(A, opt, k, flush=False):
    if opt.get('lite'):
        if k in opt['lite']: A("%s %s" % ('s_memrealtime' if opt.get('rt') else 's_memtime', s(LITE[opt['lite'].index(k)], 2)))
        return
    if opt.get('stamp') and (opt['stamp'] == 1 or k in opt['stamp'] or flush):
        A("%s s[96:97]\ns_waitcnt lgkmcnt(0)\nv_writelane_b32 v0, s96, %d" % ('s_memrealtime' if opt.get('rt') else 's_memtime', k))
        if flush:
            if opt['stamp'] != 1: A("v_writelane_b32 v0, s55, 14")
            A("v_writelane_b32 v0, s%d, 15\ns_mov_b64 exec, 0xffff" % sBud)
            A("buffer_store_dword v0, v%d, %s, s%d offen\ns_mov_b64 exec, -1" % (vL4, WS, sTS))

def add(d, a, b): return "v_add_f32 v%d, v%d, v%d" % (d, a, b)
def zero16(d): return "v_mfma_f32_32x32x8_bf16 %s, %s, %s, 0" % (v(d, 16), v(vZ, 2), v(vZ, 2))
def step_loop(A, opt, fl, tag):
    Z = []
    top, done = "L_rec_top" + tag, "L_rec_done" + tag
    XO = [AQ + 8 * i for i in range(3)]
    Z32, Z16, P, PM, LD = AQ + 4, AQ + 12, AQ, AQ + 14, AV + 8
    Sp = OD = [AQ + 8, AQ + 16, AQ + 20]
    VM = [AV, AV + 4, AV + 2]
    plan = {'g1': 'V0', 'g2': 'V1', 'g3': 'V2', 'a': 'X', 'b': 'Q0 Q1', 's1': 'C', 's2': 'F', 'p1': 'S', 'd1': 'K0 K1 K2', 'd2': 'K3 O0 O1'}
    for k, x in opt.get('plan', {}).items():
        for y in plan: plan[y] = ' '.join(o for o in plan[y].split() if o not in x.split())
        plan[k] = x
    where = {o: k for k, x in plan.items() for o in x.split()}
    vearly = where['V0'][0] in 'dA'; assert not vearly
    Q32, Q16 = (WSG + 20, AV + 6) if where['O1'][0] == 'c' else (QX, QX + 4)
    assert Q32 == QX or (where['Q0'][0] in 'sp' and where['Q1'][0] == 'p')
    OT = [QX, QX + 2, QX + 4]
    St = [P, OD[1], LD]
    k_loads = [ld(4, KX, vQ32, sK32), ld(4, KX + 4, vQ32, sK32, 256), ld(2, KX + 8, vQ16, sK16), ld(2, KX + 10, vQ16, sK16, 256)]
    q_loads = [ld(4, Q32, vQ32, sQ32), ld(2, Q16, vQ16, sQ16)]
    v_loads = [ld(4, VX, vL16, sVp), ld(4, VX + 4, vL16, sVp, 1024), ld(4, VX + 8, vL16, sVs)]
    o_swap = "v_permlane16_swap_b32 v%d, v%d\nv_permlane16_swap_b32 v%d, v%d" % (OT[2], OT[2] + 2, OT[2] + 1, OT[2] + 3)
    o_stores = [st(4, OT[0], vQ32, sO32, 0, 'sc1'), "s_mov_b64 exec, %s\n" % s(sEv, 2) + st(4, OT[2], vQ16, sO16, 0, 'sc1') + "\ns_mov_b64 exec, -1"]
    oflag = "s_mov_b64 exec, 1\nv_mov_b32 v%d, s%d\nbuffer_store_dword v%d, off, %s, s%d sc1\ns_mov_b64 exec, -1" % (vT1, sStep, vT1, WS, sFO)
    lane0 = not (opt.get('stamp') or opt.get('lstamp'))
    if lane0: oflag = "v_mov_b32 v%d, s%d\n" % (vT1, sStep) + st(1, vT1, 0, sFO, 0, 'sc1')
    adv = lambda rs, k: ["s_add_u32 s%d, s%d, %s" % (r, r, k) for r in rs]
    zero = [zero16(AQ), zero16(AQ + 16), mf16(AQ + 32, vZ, vZ)]
    toks = lambda a, b: [mf32(St[0], KX, a), mf32(St[1], KX + 4, a), mf32(St[2], Z32, a), mf16(St[0], KX + 8, b, St[0]), mf16(St[1], KX + 10, b, St[1]), mf16(St[2], Z16, b, St[2])]
    tokmm = toks(Q32, Q16)
    tokwr = ["ds_write_b128 v%d, %s offset:%d" % (vSt16, v(St[i], 4), L_SPT + 1024 * i) for i in range(2)] + ["ds_write_b64 v%d, %s offset:%d" % (vSt8, v(St[2], 2), L_SPT + 2048)]
    book = ["s_add_u32 s%d, s%d, 1" % (sStep, sStep), "s_and_b32 s%d, s%d, 1" % (sTag, sStep)] + adv((sHCx, sHCr), "s%d" % sHd)
    book += ["s_mov_b32 s%d, %d" % (sHd, HC_STEP), "s_andn2_b32 s%d, 3, s%d\ns_cselect_b32 s%d, s%d, %d" % (sT, sStep, sHd, sHd, -3 * HC_STEP), "s_add_u32 s%d, s%d, s%d" % (sClr, sHCx, sHd)]
    for rs, k in (((sQ32, sQ16) + (() if vearly else (sVp, sVs)), QKV_SEG), ((sO32, sO16), O_SEG), ((sK32, sK16) + ((sVp, sVs) if vearly else ()), QKV_SEG)):
        if sK32 in rs: book += ["s_andn2_b32 s%d, s%d, s%d\ns_cselect_b32 s%d, 1, -15" % (sT, sRm, sStep, sFs)]
        book += ["s_mul_i32 s%d, s%d, %d" % (sT2, sFs, 2 * k)]
        for r in rs: book += adv((LIN[r],), "s%d" % sT2) + (near(r, LIN[r], sT) if k != O_SEG else [])
    pref = opt.get('pref', 0)
    if pref: book += adv((sPl,), "s%d" % sT2) + near(sT2, sPl, sT) + ["s_cmp_eq_u32 s%d, 2\ns_cselect_b32 s%d, s%d, s%d" % (sW, sFQ, sFQ, sT2)]
    onext = near(sO32, LIN[sO32], sT) + near(sO16, LIN[sO16], sT)
    def wrd(k, d=None):
        d = d or WSG + 8 * (k % 3)
        return [(k, "ds_read_b128 %s, v%d offset:%d" % (v(d + 4 * h, 4), vWv, k * 2048 + 1024 * h)) for h in range(2)]
    npre = 3
    pf = Poll(A, Z, 'fq' + tag, [ld(1, vT2, vFlag, sFQ)], sleep=4)
    pv = Poll(A, Z, 'hv' + tag, [ld(4, AV + 4, vL16, sHAp, 1536)])
    OPS = {'X': pv.loads[0], 'S': pf.loads[0], 'F': oflag, 'C': st(1, AV + 3, vL4, sClr, 0, 'sc1')}
    for c, L in (('K', k_loads), ('Q', q_loads), ('V', v_loads), ('O', o_stores)): OPS.update({c + str(i): l for i, l in enumerate(L)})
    assert sorted(' '.join(plan.values()).split()) == sorted(OPS) and not any(c in plan.get(d, '') for c in 'Q' for d in ('d1', 'd2'))
    hold = any(where[o][0] not in 'dA' for o in ('O0', 'O1'))
    if hold and where['F'][0] != 'd': OPS['F'] = "s_sub_u32 s%d, s%d, 1\n" % (sT, sStep) + oflag.replace("s%d\n" % sStep, "s%d\n" % sT)
    assert where['F'][0] not in 'Aga'
    issued = []
    def slot(k):
        for o in plan.pop(k, '').split():
            assert o[0] != 'Q' or Q32 != QX or where['O' + o[1]][0] == 'd' or 'O' + o[1] in issued
            A(OPS[o]); issued.append(o)
    def younger(*names): return len(issued) - 1 - max(issued.index(o) for o in names)
    pf0 = Poll(A, Z, 'fq0' + tag, [ld(1, vT0, vFlag0, sFQ)], sleep=4)
    temp_srd(A, pMem, 8 * 640 * 2)
    A("v_bfe_u32 v%d, v0, 2, 2\nv_and_b32 v%d, 1, v0\nv_lshl_add_u32 v%d, v%d, 1, v%d\nv_mul_u32_u24 v%d, 1280, v%d" % (vT0, vT1, vT0, vT0, vT1, vT0, vT0))
    A("v_bfe_u32 v%d, v0, 1, 1\nv_lshl_add_u32 v%d, v%d, 4, v%d\nv_lshrrev_b32 v%d, 4, v0\nv_lshl_add_u32 v%d, v%d, 5, v%d" % (vT1, vT0, vT1, vT0, vT1, vT0, vT1, vT0))
    A("s_mul_i32 s%d, s%d, 640" % (sT, sJ))
    for t in range(5): A("buffer_load_dwordx4 %s, v%d, %s, s%d offen offset:%d" % (v(MF + 4 * t, 4), vT0, TS, sT, 128 * t))
    pf0.issue(); pf0.start(0); A("v_cmp_ge_i32 vcc, 0, v%d" % vT0); pf0.branch()
    if vearly:
        for r in (sVp, sVs): A("\n".join(adv((LIN[r],), 2 * QKV_SEG) + near(r, LIN[r], sT)))
    for l in k_loads + v_loads * vearly + ["s_mov_b32 s%d, 0x%x" % (r, OOBS) for r in (sO32, sO16)]: A(l)
    A("v_lshlrev_b32 v%d, %d, v%d" % (vFlag, (0, 3, 4)[pref], vL4))
    A("s_cmp_eq_u32 s%d, 2\ns_cselect_b32 s%d, s%d, 0x%x\ns_cselect_b64 vcc, -1, 0\nv_cndmask_b32 v%d, v%d, v%d, vcc" % (sW, sFQ, sFQ, OOBS, vFlag, vFlag, vFlag0))
    for l in zero: A(l)
    for k in range(npre):
        for _, l in wrd(k): A(l)
    if lane0: A("v_lshlrev_b32 v0, 24, v0\nv_min_u32 v0, 0x1000000, v0\nv_lshlrev_b32 v0, 4, v0")
    A("s_waitcnt lgkmcnt(0)\ns_nop 15\ns_branch " + top)
    A(top + ":")
    if not opt.get('lite'): stamp(A, opt, 0)
    if opt.get('lstamp'): A("s_memtime s[96:97]" if opt.get('lcyc') else "s_memrealtime s[96:97]")
    Q = Lgkm()
    for t in range(5): Q.op(('m', t), '')
    pend = []
    for k in range(npre, 3): pend += wrd(k)
    def epi(b, d): return [add(b, b, b + 2), add(b + 1, b + 1, b + 3), cvt(d, b, b + 1)]
    hl = lambda D: [ld(2, D[i], vL8, sHAp, 512 * i) for i in range(3)]
    fill = {}; nl = sum(o[0] != 'o' for o in WLDS)
    def put(p, L):
        for l in L:
            while p in fill: p += 1
            fill[p] = l
    for j in range(5): put(5 * j + 6, epi(AQ + 4 * j, XO[j >> 1] + (j & 1)) + [st(2, XO[j >> 1], vL8, sHAo, 512 * (j >> 1), fl) if j & 1 else tagit(XO[j >> 1])])
    put(36, epi(AV, AV) + ["v_mov_b32 v%d, s%d" % (AV + 3, sTag)])
    put(41, epi(AV + 4, AV + 1))
    def need(p):
        m, i, t = SEQ[p]; w = Q.wait(('m', t))
        if (m, i, t) in WLDS:
            k = WLDS[(m, i, t)]; assert all(x[0] != k for x in pend), p
            w += Q.wait(k)
        return w
    A(need(0))
    if opt.get('lite'): stamp(A, opt, 0)
    bk = list(book)
    for p, (m, i, t) in enumerate(SEQ):
        acc = AV + 4 * i if m == 'v' else AQ + 8 * i + (4 if m == 'k' else 0)
        if (m, i, t) in WLDS:
            k = WLDS[(m, i, t)]; b = WSG + 8 * (k % 3)
            if k + 3 < nl: pend += wrd(k + 3)
        else: b = WREG[(m, i, t)]
        A(smf(acc, MF + 4 * t, b))
        w = need(p + 1) if p + 1 < len(SEQ) else ''
        A(w)
        room = 2 - w.count('\n')
        while bk and bk[0].count('\n') + 1 <= room: room -= bk[0].count('\n') + 1; A(bk.pop(0))
        if p == 31:
            for l in epi(AQ + 20, XO[2] + 1) + [st(2, XO[2], vL8, sHAo, 1024, fl)]: A(l)
            stamp(A, opt, 1)
        for _ in range(1 if p < 31 else 2):
            if pend and (p not in fill or p >= 31 or p in opt.get('dbl', (9, 21, 29))):
                k, l = pend.pop(0); A(Q.op(k, l))
        if p in fill: A(fill[p])
        if p in (34, 35, opt.get('ha_at', 40)): A(hl([x + 2 for x in XO])[min(p - 34, 2)])
    assert not bk
    X2, X3 = [VX + 2 * i for i in range(3)], [VX + 6 + 2 * i for i in range(3)]
    ve = epi(AV + 8, AV + 2) + [st(4, AV, vL16, sHAo, 1536, fl)]
    for l in (hl(X2) + ve if opt.get('x2first', 0) else ve + hl(X2)): A(l)
    ZD = WSG
    budget = "s_add_u32 s%d, s%d, 1\ns_cmp_lt_u32 s%d, %d\ns_cselect_b32 s%d, 1, 0" % (sBud, sBud, sBud, BUDGET, sLive)
    live = "s%d" % sLive
    zcv = [cvt(Z32 + r, ZD + 2 * r, ZD + 2 * r + 1) for r in range(4)] + [cvt(Z16 + r, ZD + 8 + 2 * r, ZD + 9 + 2 * r) for r in range(2)]
    chk = tagcheck([x + 2 for x in XO], vT0)
    A("s_waitcnt vmcnt(5)\n" + mf32(ZD, XO[0], vSelT) + "\n" + chk[0] + "\n" + mf32(ZD + 4, XO[1], vSelT) + "\ns_waitcnt vmcnt(4)\n" + chk[1] + "\n" + chk[2])
    A(mf32(ZD + 8, XO[2], vSelT) + "\n" + chk[3])
    for l in zcv: A(l)
    miss, got = A.lab('hamiss'), A.lab('hagot')
    A("s_cbranch_vccnz %s\n%s:" % (miss, got))
    B = Asm(); B(miss + ":")
    if opt.get('stamp'): B("s_add_u32 s55, s55, 65536")
    def tsum(D, one):
        for i in range(3): B(mf16(ZD + 4 * i, XO[i], vSelT))
        B("s_waitcnt vmcnt(3)")
        for l in interleave([mf16(ZD + 4 * i, D[i], vSelT, ZD + 4 * i) for i in range(3)], tagcheck(D, vT0, one=one), per=2) + zcv: B(l)
    for l in hl(X3): B(l)
    B(budget); tsum(X2, live); B("s_cbranch_vccz " + got)
    for l in hl(X2): B(l)
    tsum(X3, '1'); B("s_cbranch_vccnz %s\ns_branch %s" % (miss, got))
    Z.extend(B.L)
    stamp(A, opt, 3)
    last, nored = A.lab('last'), A.lab('nored')
    B = Asm(); B.uid = A.uid + 2000
    pw = Poll(B, Z, 'hw' + tag, pv.loads)
    B(last + ":")
    for l in (o_stores if hold else []) + onext + [ld(4, QX, vQ32, sQ32), ld(2, QX + 4, vQ16, sQ16)] + v_loads * (not vearly) + pw.loads: B(l)
    nv = 1 if vearly else 4
    B("s_waitcnt vmcnt(%d)\ns_barrier\n" % nv + oflag if hold else "s_barrier\n" + oflag + "\ns_waitcnt vmcnt(%d)" % (nv + 1))
    for l in toks(QX, QX + 4): B(l)
    pw.start(1)
    for l in tagcheck([AV + 7], vT0): B(l)
    pw.branch()
    B("v_swap_b32 v%d, v%d\nv_mov_b32 v%d, v%d\nv_mov_b32 v%d, 64\ns_branch %s" % (AV + 1, AV + 4, AV + 3, AV + 6, vT2, nored))
    Z.extend(B.L)
    A(mf32(Sp[0], KX, Z32) + "\ns_cmp_eq_u32 s%d, 63\ns_cbranch_scc1 %s\n" % (sStep, last) + mf32(Sp[1], KX + 4, Z32) + "\ns_mov_b64 vcc, %s" % s(sQm, 2))
    for i, l in enumerate([mf32(Sp[2], Z32, Z32), mf16(Sp[0], KX + 8, Z16, Sp[0]), mf16(Sp[1], KX + 10, Z16, Sp[1]), mf16(Sp[2], Z16, Z16, Sp[2]), mf16(MF + 16, vZ, vZ)]):
        slot('g%d' % (i + 1)); A(l)
    stamp(A, opt, 10)
    q23 = "quad_perm:[2,3,2,3] row_mask:0xf bank_mask:0xf"
    for b in range(4): A("v_cndmask_b32_dpp v%d, v%d, v%d, vcc %s" % (Sp[0] + b, Sp[1] + b, Sp[0] + b, q23))
    A("ds_write_b128 v%d, %s offset:%d" % (vSm16, v(Sp[0], 4), L_SPM))
    A("v_cndmask_b32_dpp v%d, v%d, v%d, vcc %s" % (Sp[2], Sp[2] + 1, Sp[2], q23))
    A("ds_write_b32 v%d, v%d offset:%d" % (vSm4, Sp[2], L_SPM + 1024))
    A(zero16(MF))
    slot('a')
    A("s_waitcnt lgkmcnt(0)"); stamp(A, opt, -1 if opt.get('fineA') else 11); A("s_barrier"); stamp(A, opt, 12)
    T = WSG
    for w in range(2): A("ds_read_b128 %s, v%d offset:%d" % (v(T + 4 * w, 4), vL16, L_SPM + SPM_W * w))
    A("ds_read_b128 %s, v%d offset:%d\nds_read_b128 %s, v%d offset:%d" % (v(T + 8, 4), vL16, L_SPM + SPM_W * 2, v(T + 16, 4), vL16, L_SPM + SPM_W * 3))
    o0 = (L_SPM + 1024) // 256
    A("ds_read2st64_b32 %s, v%d offset0:%d offset1:%d\nds_read2st64_b32 %s, v%d offset0:%d offset1:%d" % (v(T + 20, 2), vL4, o0, o0 + 22, v(T + 22, 2), vL4, o0 + 44, o0 + 66))
    slot('b')
    x = 0
    A("s_waitcnt lgkmcnt(%d)\n" % (4 + x) + pkadd(T, T, T + 4) + "\n" + pkadd(T + 2, T + 2, T + 6))
    A("s_waitcnt lgkmcnt(%d)\n" % (2 + x) + pkadd(T + 8, T + 8, T + 16) + "\n" + pkadd(T + 10, T + 10, T + 18))
    A(pkadd(T, T, T + 8) + "\n" + pkadd(T + 2, T + 2, T + 10))
    A("s_waitcnt lgkmcnt(%d)\n" % x + pkadd(T + 20, T + 20, T + 22) + "\nv_max3_f32 v%d, v%d, v%d, v%d\n" % (vT0, T, T + 1, T + 2) + add(T + 4, T + 20, T + 21))
    stamp(A, opt, -1 if opt.get('fineA') else 4)
    qx = "quad_perm:[2,3,0,1] row_mask:0xf bank_mask:0xf"; q01 = "quad_perm:[0,1,0,1] row_mask:0xf bank_mask:0xf"
    A("v_max3_f32 v%d, v%d, v%d, v%d" % (vT0, vT0, T + 3, T + 4))
    slot('s1')
    A("v_max_f32_dpp v%d, v%d, v%d %s\nv_max_f32_dpp v%d, v%d, v%d %s" % (vT1, vT0, vT0, qx, vT0, vT0, vT0, qx))
    A("v_permlane32_swap_b32 v%d, v%d\nv_max_f32 v%d, v%d, v%d\nv_max_f32 v%d, v%d, v%d" % (vT0, vT1, T + 5, vT0, vT1, vT0, vT0, vT1))
    slot('s2')
    A("v_permlane16_swap_b32 v%d, v%d\nv_max_f32 v%d, v%d, v%d" % (vT0, T + 5, vT0, vT0, T + 5))
    A("v_mul_f32 v%d, s%d, v%d" % (vT0, sC, vT0))
    for i in range(5): A("v_fma_f32 v%d, v%d, s%d, -v%d" % (T + i, T + i, sC, vT0))
    for i in range(5): A("v_exp_f32 v%d, v%d" % (T + i, T + i))
    A(cvt(P, T, T + 1) + "\n" + cvt(P + 1, T + 2, T + 3))
    A("v_mov_b32_dpp v%d, v%d %s\nv_mov_b32_dpp v%d, v%d %s\nv_mov_b32_dpp v%d, v%d %s" % (T + 5, T + 4, q01, P + 2, P, q01, P + 3, P + 1, q01))
    A(cvt(PM, T + 4, T + 5) + "\n" + cvt(PM + 1, T + 4, T + 5))
    stamp(A, opt, -1 if opt.get('fineA') else 13)
    def pvmm(mem, between=None):
        mm = [mf32(LD, vOne, P)] + [mf32(OD[i], VX + 4 * i, P) for i in range(3)]
        if mem:
            pv.start(younger(*(['X'] if vearly else ['X', 'V0', 'V1', 'V2'])))
            for l in interleave(mm, tagcheck([AV + 7], vT0), per=2): A(l)
            pv.branch(); A("v_swap_b32 v%d, v%d" % (AV + 1, AV + 4))
        else:
            for l in mm: A(l)
            if between: between()
        A(mf16(LD, vOne + 4, PM, LD))
        if mem: A("v_mov_b32 v%d, v%d" % (AV + 3, AV + 6)); assert 'C' in issued; slot('p1')
        A(mf16(OD[0], VM[0], PM, OD[0]))
        if mem: slot('p2')
        A(mf16(OD[1], VM[1], PM, OD[1]))
        A("v_rcp_f32 v%d, v%d" % (LD, LD))
        A(mf16(OD[2], VM[2], PM, OD[2]))
    def pvnorm(mem, dst):
        for i in range(3):
            if i == 0:
                for r in range(4): A("v_mul_f32 v%d, v%d, v%d" % (OD[0] + r, OD[0] + r, LD))
            else:
                for r in (0, 2): A("v_pk_mul_f32 %s, %s, %s op_sel_hi:[1,0]" % (v(OD[i] + r, 2), v(OD[i] + r, 2), v(LD, 2)))
            for r in (0, 1): A(cvt(dst[i] + r, OD[i] + 2 * r, OD[i] + 2 * r + 1))
            if mem and i == 1: stamp(A, opt, -1 if opt.get('fineA') else 14)
            if mem and i == 1: A("ds_write_b128 v%d, %s" % (vOw4, v(dst[0], 4)))
            if mem and i == 2: A("ds_write_b64 v%d, %s" % (vOw2, v(dst[2], 2)))
    pvmm(True); pvnorm(True, [OD[0], OD[0] + 2, OD[2]])
    nc = opt.get('nc', (0, 0))
    if nc[1]: A("s_waitcnt vmcnt(%d)" % younger('Q0', 'Q1'))
    for l in tokmm[:nc[0]]: A(l)
    slot('c1')
    A("s_waitcnt lgkmcnt(0)\ns_barrier")
    stamp(A, opt, 5)
    WA, AW = WSG, MF
    WL = dict(zip([o for o in WLDS if o[0] == 'o'], (WSG + 12, AQ + 16)))
    for t in range(3): A("ds_read_b128 %s, v%d offset:%d" % (v(WA + 4 * t, 4), vL16, L_O + 1024 * t))
    for l in tokmm[nc[0]:nc[1]]: A(l)
    slot('c2')
    wrin = 0; assert not nc[1] or len(WL) < 2
    mo = opt.get('mo', [(i, t) for i in range(5) for t in range(3)])
    F = []
    for i in range(5):
        e = max(k for k, x in enumerate(mo) if x[0] == i) + 2
        h = AW + 4 * i
        F += [(e, l) for l in epi(h, h) + ["v_bfi_b32 v%d, v%d, s%d, v%d" % (h, vTm, sTag, h), st(1, h, vL4, sMask + 8 + i, 0, fl)]]
    Q = Lgkm()
    for t in range(3): Q.op(t, '')
    for o, d in WL.items():
        for _, l in wrd(WLDS[o], d): A(Q.op(o, l))
    for k, (i, t) in enumerate(mo):
        A(Q.wait(t) + Q.wait(('o', i, t)) + smf(AW + 4 * i, WA + 4 * t, WL.get(('o', i, t)) or WREG[('o', i, t)]))
        if 3 <= k < 6: A("\n".join(onext[2 * k - 6:2 * k - 4]))
        if F and F[0][0] <= k: A(F.pop(0)[1])
    for _, l in F: A(l)
    stamp(A, opt, 6)
    RD, DR = WSG, WSG + 20
    join = A.lab('join')
    if not nc[1]: A("s_waitcnt vmcnt(%d)" % (younger('Q0', 'Q1') + 5))
    for l in tokmm[nc[1]:]: A(l)
    A("s_cmp_eq_u32 s%d, 0\ns_cbranch_scc1 %s" % (sRed, nored))
    rl = lambda d: [ld(4, d + 4 * t, vL16, sHBr, 1024 * t) for t in range(4)]
    pub = A.lab('pub')
    share = "s_waitcnt lgkmcnt(0)\ns_barrier"
    def check(d):
        chk = tagcheck(range(d, d + 16, 4), vT0, one=live)
        A("s_waitcnt vmcnt(6)\n" + mf32(DR, vSelR, d) + "\n" + mf32(DR, vSelR, d + 4, DR) + "\n" + chk[0])
        A("s_waitcnt vmcnt(5)\n" + mf32(DR, vSelR, d + 8, DR) + "\n" + chk[1])
        A("s_waitcnt vmcnt(4)\n" + mf32(DR, vSelR, d + 12, DR))
        for x in chk[2:]: A(x)
    l, l2 = A.lab('hb'), A.lab('hb')
    for x in {0: rl(RD) + tokwr[wrin:] + rl(MF) + [share], 1: tokwr[wrin:] + [share] + rl(RD) + rl(MF), 2: rl(RD) + tokwr[wrin:] + [share] + rl(MF)}[opt.get('rord', 0)]: A(x)
    A(l2 + ":\n" + budget)
    check(RD)
    A("s_cbranch_vccz " + pub)
    for x in rl(RD): A(x)
    check(MF)
    A("s_cbranch_vccnz " + l)
    Z.extend([l + ":"] + rl(MF) + ["s_branch " + l2])
    A(pub + ":")
    A("s_mov_b32 exec_hi, 0")
    A(cvt(DR, DR, DR + 1) + "\n" + cvt(DR + 1, DR + 2, DR + 3) + "\n" + tagit(DR))
    A(st(2, DR, vL8, sHCx, 0, 'sc1') + "\n" + st(2, DR, vL8, sHCl, 0, fl))
    A("s_mov_b32 exec_hi, -1")
    stamp(A, opt, 7)
    A(join + ":\ns_waitcnt lgkmcnt(0)\ns_barrier")
    if opt.get('lite'): stamp(A, opt, 2)
    B = Asm(); B.uid = A.uid + 1000
    B(nored + ":\n" + "\n".join(tokwr[wrin:]))
    T_ = MF
    B(share + "\ns_cmp_lt_u32 s%d, 2\ns_cbranch_scc1 %s" % (sW, join))
    for w in range(4): B("ds_read_b128 %s, v%d offset:%d" % (v(T_ + 4 * w, 4), vSelR, L_SPT + SPT_W * w))
    o1 = (L_SPT + 2048) // 256
    B("ds_read2st64_b32 %s, v%d offset0:%d offset1:%d\nds_read2st64_b32 %s, v%d offset0:%d offset1:%d" % (v(T_ + 16, 2), vSelR + 1, o1, o1 + 22, v(T_ + 18, 2), vSelR + 1, o1 + 44, o1 + 66))
    B("v_mov_b32 v%d, s%d" % (vT1, sNeg))
    B("s_waitcnt lgkmcnt(4)\n" + pkadd(T_, T_, T_ + 4) + "\n" + pkadd(T_ + 2, T_ + 2, T_ + 6))
    B("s_waitcnt lgkmcnt(2)\n" + pkadd(T_ + 8, T_ + 8, T_ + 12) + "\n" + pkadd(T_ + 10, T_ + 10, T_ + 14))
    B(pkadd(T_, T_, T_ + 8) + "\n" + pkadd(T_ + 2, T_ + 2, T_ + 10))
    B("s_waitcnt lgkmcnt(0)\n" + pkadd(T_ + 16, T_ + 16, T_ + 18))
    for r in range(4): B("v_cndmask_b32 v%d, v%d, v%d, %s" % (T_ + r, vT1, T_ + r, s(sMask + 2 * r, 2)))
    r8 = "row_ror:8 row_mask:0xf bank_mask:0xf"
    B(add(T_ + 4, T_ + 16, T_ + 17) + "\nv_max3_f32 v%d, v%d, v%d, v%d\nv_max3_f32 v%d, v%d, v%d, v%d" % (vT0, T_, T_ + 1, T_ + 2, vT0, vT0, T_ + 3, T_ + 4))
    B("v_max_f32_dpp v%d, v%d, v%d %s\nv_max_f32_dpp v%d, v%d, v%d %s" % (vT1, vT0, vT0, r8, vT0, vT0, vT0, r8))
    xgroup(B, "v_max_f32", vT0, vT1)
    B("v_mul_f32 v%d, s%d, v%d" % (vT0, sC, vT0))
    for i in range(5): B("v_fma_f32 v%d, v%d, s%d, -v%d" % (T_ + i, T_ + i, sC, vT0))
    for i in range(5): B("v_exp_f32 v%d, v%d" % (T_ + i, T_ + i))
    B(cvt(T_, T_, T_ + 1) + "\n" + cvt(T_ + 1, T_ + 2, T_ + 3) + "\n" + cvt(T_ + 2, T_ + 4, T_ + 4))
    B("ds_write_b64 v%d, %s offset:%d\nds_write_b16 v%d, v%d offset:%d" % (vSelR + 2, v(T_, 2), L_P, vSelR + 3, T_ + 2, L_P + 1024))
    stamp(B, opt, 7)
    B("s_cmp_lg_u32 s%d, 2\ns_cbranch_scc1 %s" % (sW, join))
    B("s_add_u32 s%d, s%d, 1\ns_min_u32 s%d, s%d, 63" % (sT, sStep, sT, sT))
    pf.A = B; pf.start(5); B("v_cmp_ge_i32 vcc, s%d, v%d" % (sT, vT2)); pf.branch(); B("s_branch " + join)
    rdp = "ds_read_b128 %s, v%d offset:%d\nds_read2st64_b32 %s, v%d offset0:%d offset1:%d" % (v(P, 4), vL16, L_P, v(PM, 2), vL4, L_P // 256 + 4, L_P // 256 + 4)
    A(rdp + "\ns_cmp_eq_u32 s%d, 63\ns_cbranch_scc1 %s" % (sStep, done))
    CL, CP, CR, CS, CD, CE = KX, KX + 4, [KX + 8, VX, VX + 4], [KX + 6, KX + 7, VX + 8], MF, MF + 8
    loc = [ld(4, CL, vL16, sHLr), ld(1, CP, vL4, sHLr, 1024)]
    rem = lambda k: [ld(4, CR[k], vL16, sHCr), ld(1, CS[k], vL4, sHCr, 1024)]
    def tags(q, x, one):
        return ["v_bitop3_b32 v%d, v%d, v%d, s%d bitop3:0x7e" % (vT0, q, q + 2, sTag), "v_bitop3_b32 v%d, v%d, s%d, v%d bitop3:0x28" % (vT1, x, sTag, vTe),
                "v_bitop3_b32 v%d, v%d, v%d, %s bitop3:0xa8" % (vT0, vT0, vT1, one), "v_cmp_ne_u32 vcc, 0, v%d" % vT0]
    pre = [l for k in range(npre) for _, l in wrd(k)]
    mem = {'o': [o_swap], 'z': zero, 'x': zero[:1], 'y': zero[1:], '.': ["s_nop 15"], ',': ["s_nop 7"], 'L': loc, 'R': rem(0), 'S': rem(1), 'U': rem(2),
           'f': ["s_waitcnt lgkmcnt(0)"] + ["v_writelane_b32 v0, s%d, %d" % (LITE[i], k) for i, k in enumerate(opt.get('lite', ()))] +
                ["v_writelane_b32 v0, s55, 15\ns_mov_b64 exec, 0xffff\nbuffer_store_dword v0, v%d, %s, s%d offen\ns_mov_b64 exec, -1" % (vL4, WS, sTS)]}
    order = opt.get('order', '[]LnRowzS'); after = {'pub': 2}
    if opt.get('lite'): order = order.replace('n', 'nf')
    def run(cs):
        for c in cs:
            n = 0
            if c == 'n': pvnorm(False, OT)
            elif c == 'w': A("\n".join(["s_waitcnt vmcnt(%d)" % after['pub']] + pre))
            else:
                for l in mem[c]: A(l); n += l.count('buffer_')
            if c == 'R': stamp(A, opt, 8)
            for k in after: after[k] += n
            if c in 'LRSU': after[c] = 0
    o1, o2, o3 = order.replace(']', '[').split('['); assert set(o1) <= set('LRw') and 'w' in order
    run(o1); A("s_waitcnt lgkmcnt(0)"); pvmm(False, lambda: run(o2)); run(o3)
    ns = 3 if 'U' in order else 2; assert after['R'] > after['S'] > after.get('U', -1)
    lchk, lmiss, miss, got = A.lab('hl'), A.lab('hlmiss'), A.lab('hcmiss'), A.lab('hcgot')
    A(budget + "\ns_waitcnt vmcnt(%d)\n%s:" % (after['L'], lchk))
    for l in interleave([mf16(CD, vSelT, CL), mf16(CD + 4, vSelT, CL + 2)], tags(CL, CP, live), per=2): A(l)
    A("s_cbranch_vccnz " + lmiss)
    B(lmiss + ":")
    if opt.get('stamp'): B("s_add_u32 s55, s55, 256")
    for l in loc + [budget, "s_waitcnt vmcnt(0)\ns_branch " + lchk]: B(l)
    def arrive(X, k, one, n):
        c = tags(CR[k], CS[k], one)
        X("s_waitcnt vmcnt(%d)\n" % (n + 1) + mf16(CE, vSelT, CR[k], CD) + "\ns_waitcnt vmcnt(%d)\nv_mov_b32 v%d, v%d\n" % (n, CP + 1, CS[k]) + c[0])
        X(mf16(CE + 4, vSelT, CR[k] + 2, CD + 4) + "\n" + c[1] + "\n" + c[2] + "\n" + mf16(CE + 8, vSel2, CP) + "\n" + c[3])
    arrive(A, 0, live, after['R'])
    A("s_cbranch_vccnz %s\n%s:" % (miss, got))
    B(miss + ":")
    for k in range(ns):
        if opt.get('stamp'): B("s_add_u32 s55, s55, 1")
        for l in rem(k) + ([budget] if k == ns - 1 else []): B(l)
        arrive(B, (k + 1) % ns, live if k == ns - 1 else '1', 2 * ns - 2); B("s_cbranch_vccz " + got)
    B("s_branch " + miss)
    for r in range(4): A(cvt(CD + r, CE + 2 * (r ^ 1), CE + 2 * (r ^ 1) + 1))
    A("ds_write_b128 v%d, %s offset:%d\n" % (vMw, v(CD, 4), L_M) + cvt(CD + 4, CE + 8, CE + 9) + "\nds_write_b32 v%d, v%d offset:%d" % (vMw1, CD + 4, L_M + 1024))
    stamp(A, opt, 9, True)
    if opt.get('stamp'): A("s_add_u32 s%d, s%d, 64" % (sTS, sTS))
    if opt.get('lstamp'): A("s_mov_b32 m0, s%d\nv_writelane_b32 v0, s96, m0" % sStep)
    slot('d1')
    A("s_waitcnt lgkmcnt(0)\ns_barrier")
    for t in range(5): A("ds_read_b128 %s, v%d offset:%d" % (v(MF + 4 * t, 4), vMr, L_M + 1024 * t))
    slot('d2'); assert not ''.join(plan.values())
    A("s_branch " + top)
    A(done + ":\ns_waitcnt lgkmcnt(0)")
    pvmm(False); pvnorm(False, OT)
    for l in [o_swap] + o_stores: A(l)
    A("s_waitcnt vmcnt(0)\ns_barrier\ns_mov_b64 exec, 1\nv_mov_b32 v%d, 64\nbuffer_store_dword v%d, off, %s, s%d sc1\ns_mov_b64 exec, -1" % (vT1, vT1, WS, sFO))
    if opt.get('lstamp'):
        A("s_mov_b32 m0, s%d\nv_writelane_b32 v0, s96, m0" % sStep); ldump(A, vT0, vL16, 0)
    leave(A, opt)
    for z in Z + B.L: A(z)

def rec_role(A, opt):
    place(opt.get('lpos', [0, 2, 4, 9, 15, 21, 28, 29, 32, 36, 37, 38, 42, 43, 44]))
    A("L_role_rec:")
    A("s_lshr_b32 s%d, s%d, 6\ns_bfe_u32 s%d, s%d, 0x10005\ns_and_b32 s%d, s%d, 1\ns_bfe_u32 s%d, s%d, 0x50001" % (sL, sRole, sX, sRole, sJ, sRole, sH, sRole))
    A("s_xor_b32 s%d, s%d, 1" % (sJo, sJ))
    A("s_lshl_b32 s%d, s%d, 3\ns_lshr_b32 s%d, 0x140c0800, s%d\ns_and_b32 s%d, s%d, 255\ns_lshr_b32 s%d, 0x12100604, s%d\ns_and_b32 s%d, s%d, 255" % (sT, sW, sPBc, sT, sPBc, sPBc, sSBc, sT, sSBc, sSBc))
    A("v_lshlrev_b32 v%d, 4, v0\nv_lshlrev_b32 v%d, 3, v0" % (vL16, vL8))
    if opt.get('rhold'):
        l = A.lab('rhold')
        A("s_cmp_lg_u32 s%d, 0\ns_cbranch_scc1 %s\nv_mov_b32 v%d, %d" % (sW, l, vT0, DBG_READY))
        wait_word(A, vT0, opt['rhold'], 16)
        A(l + ":\ns_barrier")
    load_weights(A, opt)
    wait_ready(A, vT0, opt, True)
    consts(A, opt)
    if opt.get('helpers'):
        A("s_cmp_eq_u32 s%d, 0\ns_cselect_b32 s%d, %d, 0\nv_bfe_u32 v%d, v0, 4, 1\nv_mul_lo_u32 v%d, v%d, s%d\nv_add_u32 v%d, v%d, v%d" % (sL, sT, 2 * 72 * FW, vT0, vT0, vT0, sT, vFlag0, vFlag0, vT0))
    def lin(dst, base, terms):
        A("s_mov_b32 s%d, %d" % (dst, base))
        for r, k in terms: A("s_mul_i32 s%d, s%d, %d\ns_add_u32 s%d, s%d, s%d" % (sT, r, k, dst, dst, sT))
    cu, r32, pcu, tau = 96, 97, 98, 99
    A("s_and_b32 s%d, s%d, 63\ns_and_b32 s%d, s%d, 31\ns_xor_b32 s%d, s%d, 1" % (cu, sRole, r32, sRole, pcu, cu))
    lin(sHAo, HA, [(sL, HA_LAYER), (cu, 4 * HA_W), (sW, HA_W)])
    lin(sHAp, HA, [(sL, HA_LAYER), (pcu, 4 * HA_W), (sW, HA_W)])
    A("s_lshr_b32 s%d, s%d, 1" % (pcu, r32))
    lin(sHBq, HB, [(sL, 2 * HB_X), (sX, HB_X), (sJo, 20 * 4096), (sW, 5 * 4096), (pcu, 256)])
    for i in range(5): A("s_add_u32 s%d, s%d, %d" % (sMask + 8 + i, sHBq, 4096 * i))
    A("s_lshr_b32 s%d, s%d, 3\ns_add_u32 s%d, s%d, 1\ns_sub_u32 s%d, s%d, s%d" % (tau, r32, tau, tau, tau, tau, sW))
    A("s_lshl_b32 s%d, s%d, 5\ns_add_u32 s%d, s%d, s%d\ns_cmp_lt_u32 s%d, 40\ns_cselect_b32 s%d, 1, 0" % (sRed, sW, sRed, sRed, r32, sRed, sRed))
    A("s_bfe_u32 s%d, s%d, 0x10002\ns_and_b32 s%d, s%d, 3\ns_mul_i32 s%d, s%d, 5\ns_add_u32 s%d, s%d, s%d" % (pcu, r32, r32, r32, r32, r32, tau, tau, r32))
    lin(sHBr, HB, [(sL, 2 * HB_X), (sX, HB_X), (pcu, 20 * 4096), (tau, 4096)])
    A("s_xor_b32 s%d, s%d, s%d\ns_and_b32 s%d, s%d, 3" % (sHd, sL, sNear, sHd, sHd))
    lin(sHCl, HL, [(sL, 20480), (sX, 10240), (pcu, 5120), (tau, 256)])
    lin(sHCx, HC, [(sX, 65536), (pcu, 32768), (sHd, 8192), (tau, 256)])
    A("s_cmp_eq_u32 s%d, 0\ns_cselect_b32 s%d, 0x%x, s%d" % (sRed, sHCx, OOBS, sHCx))
    lin(sHLr, HL, [(sL, 20480), (sX, 10240), (sJ, 5120), (sW, 1280)])
    lin(sHCr, HC + 65536, [(sX, -65536), (sJ, 32768), (sHd, 8192), (sW, 1280)])
    lin(sFQ, FQ, [(sL, 72 * FW)])
    A("s_mov_b32 s%d, %d\ns_lshl_b32 s%d, s%d, 13\ns_xor_b32 s%d, s%d, s%d\ns_and_b32 s%d, s%d, 0x2000" % (sFs, 1, tau, sL, tau, tau, sNear, tau, tau))
    A("s_cmp_eq_u32 s%d, 0\ns_cselect_b32 s%d, 63, %d" % (sL, sRm, 15 if RING[0] else 63))
    A("s_mul_i32 s%d, s%d, 52\ns_lshr_b32 s%d, s%d, 8\ns_min_u32 s%d, s%d, 5" % (r32, sH, r32, r32, r32, r32))
    for r, b, h, c, j in ((sQ32, QKV // 2 - QKV_SEG, QKV_HEAD, sPBc, 1), (sQ16, QKV // 2 - QKV_SEG, QKV_HEAD, sSBc, 1), (sK32, QKV // 2 + 12288, QKV_HEAD, sPBc, 0),
                          (sK16, QKV // 2 + 12288, QKV_HEAD, sSBc, 0), (sVp, QKV // 2 + 24576 - QKV_SEG, QKV_HEAD, sPBc, 0), (sVs, QKV // 2 + 24576 - QKV_SEG, QKV_HEAD, sSBc, 0),
                          (sO32, OO // 2 - O_SEG, 12288, sPBc, 1), (sO16, OO // 2 - O_SEG, 12288, sSBc, 1)):
        lin(LIN[r], b, [(sH, h), (c, 512)] + [(sJ, 256)] * j + [(r32, 4096)] * (h == 12288))
        for l in sspread(LIN[r], sT) + ["s_add_u32 s%d, s%d, s%d" % (LIN[r], LIN[r], tau)] + ["s_xor_b32 s%d, s%d, 0x2000" % (LIN[r], LIN[r])] * (opt.get('qfar', 1) and r in (sQ32, sQ16)) + near(r, LIN[r], sT): A(l)
    A("s_min_u32 s%d, s%d, 2" % (r32, sW))
    lin(sPl, QKV // 2 + (24576 if opt.get('pref') == 1 else 12288), [(sH, QKV_HEAD), (r32, 4096), (sJ, 2048 if opt.get('pref') == 1 else 12288)])
    for l in sspread(sPl, sT) + ["s_add_u32 s%d, s%d, s%d" % (sPl, sPl, tau)]: A(l)
    lin(sFO, FO, [(sL, 64 * FW), (cu, FW)])
    A("s_cmp_eq_u32 s%d, 3\ns_cselect_b32 s%d, s%d, 0x%x" % (sW, sFO, sFO, OOBS))
    for r in ({0: (), 1: (sO32, sO16), 2: (sO32,), 3: (sO16,)}[opt.get('noo', 0)]) + sum(({'q': (sQ32, sQ16), 'k': (sK32, sK16), 'v': (sVp, sVs)}[c] for c in opt.get('nobulk', '')), ()): A("s_mov_b32 s%d, 0x%x" % (LIN[r], 2 * OOBS))
    A("s_mov_b32 s%d, -1\ns_mov_b32 s%d, 0\ns_mov_b32 s%d, 0xffff\ns_mov_b32 s%d, 0xffff" % (sStep, sHd, sEv, sEv + 1))
    A("s_mov_b32 s%d, 1" % sLive)
    if opt.get('stamp'):
        A("s_mov_b32 s55, 0")
        lin(sTS, DBGW, [(cu, 4 * 4096), (sW, 4096)])
        A("s_cmp_eq_u32 s%d, 0\ns_cselect_b32 s%d, s%d, 0x%x" % (sL, sTS, sTS, OOBS))
    A("s_cmp_lg_u32 s%d, 0\ns_cbranch_scc1 L_rec_mixed" % sMix)
    step_loop(A, opt, '', 'a')
    A("L_rec_mixed:")
    step_loop(A, opt, 'sc1', 'b')
```

```python
import sys
from common import *
import rec, gemm

import os
HEADER = open(os.path.join(os.path.dirname(os.path.abspath(__file__)), '..', NAME + '.s.ref')).read().split('; Override launch')[0]
PLACES = {
    0: [[('q', 0, 18), ('b', 0, 4), ('s', 0, 10)], [('q', 18, 18), ('b', 4, 4), ('s', 10, 10)], [('q', 36, 18), ('b', 8, 4), ('s', 20, 10)], [('q', 54, 18), ('b', 12, 4), ('s', 30, 10)]],
    1: [[('q', 0, 12), ('b', 0, 10), ('s', 0, 10)], [('q', 12, 20), ('b', 10, 2), ('s', 20, 10)],
        [('q', 32, 20), ('b', 12, 2), ('s', 10, 5), ('s', 30, 5)], [('q', 52, 20), ('b', 14, 2), ('s', 15, 5), ('s', 35, 5)]],
    2: [[('q', 0, 13), ('b', 0, 9), ('s', 0, 10)], [('q', 13, 20), ('b', 9, 2), ('s', 20, 10)],
        [('q', 33, 20), ('b', 11, 2), ('s', 10, 5), ('s', 30, 5)], [('q', 53, 19), ('b', 13, 3), ('s', 15, 5), ('s', 35, 5)]],
    3: [[('q', 0, 18), ('b', 0, 4), ('s', 0, 5), ('s', 35, 5)], [('q', 18, 18), ('b', 4, 4), ('s', 20, 10)],
        [('q', 36, 18), ('b', 8, 4), ('s', 5, 10)], [('q', 54, 18), ('b', 12, 4), ('s', 15, 5), ('s', 30, 5)]],
    4: [[('q', 0, 16), ('b', 0, 6), ('s', 0, 5), ('s', 35, 5)], [('q', 16, 18), ('b', 6, 4), ('s', 20, 10)],
        [('q', 34, 18), ('b', 10, 4), ('s', 5, 10)], [('q', 52, 20), ('b', 14, 2), ('s', 15, 5), ('s', 30, 5)]],
    5: [[('q', 64, 4), ('b', 0, 4), ('b', 8, 4), ('s', 0, 15), ('s', 30, 5)], [('q', 68, 4), ('b', 4, 4), ('b', 12, 4), ('s', 15, 15), ('s', 35, 5)], [('q', 0, 32)], [('q', 32, 32)]],
    6: [[('q', 54, 9), ('b', 0, 4), ('b', 8, 4), ('s', 0, 15)], [('q', 63, 9), ('b', 4, 4), ('b', 12, 4), ('s', 15, 15)], [('q', 0, 27), ('s', 30, 5)], [('q', 27, 27), ('s', 35, 5)]],
    7: [[('q', 56, 8), ('b', 0, 4), ('s', 0, 15), ('s', 30, 5)], [('q', 64, 8), ('b', 4, 4), ('s', 15, 15), ('s', 35, 5)], [('q', 0, 28), ('b', 8, 4)], [('q', 28, 28), ('b', 12, 4)]],
}
def build(opt):
    A = Asm()
    for k, d in (('hold', 10), ('alt', 55), ('uorder', list(range(10)) + list(range(16, 21)) + list(range(10, 16))), ('helpers', (8, 12)), ('lead_q', (22, 53)), ('lead_o', 13), ('lead_b', 14)): opt.setdefault(k, d)
    if opt['helpers'] and len(opt['lead_q']) == 2: opt['lead_q'] += (64 - opt['helpers'][1],)
    for k in opt.get('reuse', ''): LS[k] = 0
    opt.setdefault('place', PLACES[opt.get('pl', 1)])
    RING[0] = opt.get('ring', 1)
    for k in ('lead_o', 'lead_b'):
        T = gemm.table(opt[k]); assert max(T[:i].count(0) - T[:i].count(1) for i in range(len(T))) <= 15
    prologue(A, opt)
    gemm.WFL[0] = opt.get('wfl', '')
    roles = opt.setdefault('roles', ['rec', 'qkv', 'leaf', 'root', 'bq', 'bo', 'ln0'])
    sIdx = 101
    A("s_mov_b32 s%d, 0" % gemm.sMir)
    if 'rec' in roles:
        A("s_cmp_lt_u32 s%d, 64\ns_cbranch_scc1 L_role_rec\ns_cmp_lt_u32 s%d, 128\ns_cbranch_scc1 L_second" % (sRole, sRole))
    A("s_cmp_lt_u32 s%d, 128\ns_cbranch_scc1 L_idle" % sRole)
    pos = 128; gemm.WHERE.clear()
    for g, ranges in enumerate(opt['place']):
        assert sum(r[2] for r in ranges) == 32
        for kind, first, n in ranges:
            for i in range(n): gemm.WHERE[(kind, first + i)] = pos + i
            A("s_sub_u32 s%d, s%d, %d\ns_cmp_lt_u32 s%d, %d\ns_cbranch_scc1 %s" % (sIdx, sRole, pos - first, sRole, pos + n, {'q': 'L_role_qkv', 'b': 'L_to_bq', 's': 'L_sets'}[kind]))
            pos += n
    assert len(gemm.WHERE) == 128
    A("L_sets:")
    A("s_sub_u32 s42, s%d, 30\ns_cmp_lt_u32 s42, 5\ns_cbranch_scc1 L_nofill\ns_sub_u32 s42, s%d, 5\ns_cmp_lt_u32 s%d, 30\ns_cselect_b32 s42, s%d, s42" % (sIdx, sIdx, sIdx, sIdx))
    fill(A, 42, opt)
    A("L_nofill:")
    lo = 0
    for nm, n, keep in (('leaf', 25, 0), ('root', 5, 1), ('ln0', 5, 0), ('bo', 5, 0)):
        A("s_cmp_lt_u32 s%d, %d\ns_cbranch_scc1 %s" % (sIdx, lo + n, 'L_role_' + nm if nm in roles else 'L_idle'))
        if keep: lo = n
        else: A("s_sub_u32 s%d, s%d, %d" % (sIdx, sIdx, lo + n)); lo = 0
    A("L_idle:")
    A("L_end:\ns_endpgm")
    A("L_second:\ns_and_b32 s%d, s%d, 63" % (sIdx, sRole))
    A("s_mov_b32 s%d, 1\ns_branch %s" % (gemm.sMir, 'L_role_qkv' if opt['helpers'] else 'L_role_rec'))
    A("L_to_bq:\ns_cmp_lt_u32 s%d, %d\ns_cbranch_scc1 L_role_bq" % (sIdx, 8 if opt['helpers'] else 99))
    A("s_add_u32 s%d, s%d, 56\ns_mov_b32 s%d, 2\ns_branch L_role_qkv" % (sIdx, sIdx, gemm.sMir))
    A("L_helper_done:")
    if opt.get('lstamp'): ldump(A, gemm.vT0, gemm.vL16, 11, 170, 262144)
    A("v_mbcnt_lo_u32_b32 v0, -1, 0\nv_mbcnt_hi_u32_b32 v0, -1, v0\ns_sub_u32 s%d, s%d, 56" % (sIdx, sIdx))
    A("s_cmp_eq_u32 s%d, 1\ns_cbranch_scc1 L_role_rec\ns_branch L_role_bq" % gemm.sMir)
    for nm in ('ln0', 'root', 'qkv', 'leaf', 'bq', 'bo'):
        if nm in roles: getattr(gemm, nm + '_role')(A, opt, sIdx)
    if 'rec' in roles: rec.rec_role(A, opt)
    if opt.get('hack'):
        import re
        on = False
        for i, l in enumerate(A.L):
            if re.match(r'L_(qk|v|leaf)_body0:', l): on = True
            if re.match(r'L_(qk|v|leaf)_entry0:', l): on = False
            if on:
                for pat, rep in opt['hack']: A.L[i] = re.sub(pat, rep, A.L[i])
    k = NAME + '_kernel'
    t = HEADER + "; @launch grid=(256,1,1) block=(256,1,1) lds=163840\n; leads %r\n; place %r\n" % ([opt['lead_q'], opt['lead_o'], opt['lead_b']], opt['place'])
    t += "; alt %r\n" % opt['alt']
    if opt.get('lite'): t += "; lite %r\n" % list(opt['lite'])
    t += '.amdgcn_target "amdgcn-amd-amdhsa--gfx950"\n.text\n.globl %s\n.p2align 8\n.type %s,@function\n%s:\n' % (k, k, k)
    t += tidy(A.finish()) if opt.get('tidy', 1) else A.finish()
    t += '.section .rodata,"a"\n.p2align 6\n.amdhsa_kernel %s\n' % k
    t += "  .amdhsa_next_free_vgpr 512\n  .amdhsa_next_free_sgpr 102\n  .amdhsa_accum_offset 256\n  .amdhsa_group_segment_fixed_size 0\n"
    t += "  .amdhsa_kernarg_size 104\n  .amdhsa_user_sgpr_count 2\n  .amdhsa_user_sgpr_kernarg_segment_ptr 1\n  .amdhsa_system_sgpr_workgroup_id_x 1\n"
    t += "  .amdhsa_float_denorm_mode_32 3\n.end_amdhsa_kernel\n"
    return t
if __name__ == '__main__':
    opt = eval(sys.argv[2]) if len(sys.argv) > 2 else {}
    open(sys.argv[1], 'w').write(build(opt))
```
